```python
import torch

def _softmax(x, axis=-1):
    return torch.softmax(x, dim=axis)
def _gelu(x):
    return torch.nn.functional.gelu(x, approximate="tanh")
def _silu(x):
    return torch.nn.functional.silu(x)
def _sigmoid(x):
    return torch.sigmoid(x)
def _layernorm(x, axis=-1, eps=1e-5):
    m = x.mean(dim=axis, keepdim=True)
    v = x.var(dim=axis, keepdim=True, unbiased=False)
    return (x - m) / torch.sqrt(v + eps)
def _scatter_add(tgt, idx, src, axis=0):
    return tgt.clone().index_add_(axis, idx, src)
def _segment_sum(src, seg, n):
    out = torch.zeros((n,) + src.shape[1:], dtype=src.dtype)
    return out.index_add_(0, seg, src)
def _pad(x, pw):
    flat = tuple(v for pair in reversed(pw) for v in pair)
    return torch.nn.functional.pad(x, flat)

kernel_name = 'gather_scatter__edge_featured_mpnn_egc__graph'

def setup_inputs():

    _w = (lambda a: (lambda t: t.to(torch.bfloat16) if t.is_floating_point() else t)(torch.as_tensor(a)))
    N, deg, D, De = 25000, 16, 128, max(16, 1)
    E = N * deg
    return {
        "x": _w((lambda *s: torch.randn(*s, dtype=torch.bfloat16) * 0.2)(N, D)),
        "e_attr": _w((lambda *s: torch.randn(*s, dtype=torch.bfloat16) * 0.2)(E, De)),
        "src": _w((lambda lo, hi, *s: torch.randint(lo, hi, s))(0, N, E).to(torch.int64)),
        "dst": _w((lambda lo, hi, *s: torch.randint(lo, hi, s))(0, N, E).to(torch.int64)),
        "u_w": _w((lambda *s: torch.randn(*s, dtype=torch.bfloat16) * 0.05)(D, D)),
        "v_w": _w((lambda *s: torch.randn(*s, dtype=torch.bfloat16) * 0.05)(D, D)),
        "g_w": _w((lambda *s: torch.randn(*s, dtype=torch.bfloat16) * 0.2)(2 * D + De, D)),
    }

def reference(x, e_attr, src, dst, u_w, v_w, g_w):
    N, D = x.shape
    g_in = torch.concatenate([x[dst], x[src], e_attr], axis=-1)
    eta = _sigmoid(g_in @ g_w)
    hv = x @ v_w
    msg = eta * hv[src]
    agg = _segment_sum(msg, dst, N)
    return _silu(x @ u_w + agg)
```

```python
N=25000; E=400000; NB=98; NWG=256
CH=1600; NCH=250
RS=640
WS_QH   = 1<<20
WS_ENT  = 20<<20
WS_CELL = 22<<20
WS_DBG  = 32<<20
M49=87652394; M25=171798692
LOG2E=1.4426950408889634
import struct
def f2u(x): return struct.unpack('<I',struct.pack('<f',x))[0]

class Asm:
    def __init__(s): s.L=[]
    def __call__(s, t):
        for l in t.split('\n'):
            l=l.strip()
            if l: s.L.append(l if l.endswith(':') or l.startswith('.') or l.startswith(';') else '  '+l)
    def text(s): return '\n'.join(s.L)

def vr(a,n=1): return f"v{a}" if n==1 else f"v[{a}:{a+n-1}]"
def sr(a,n=1): return f"s{a}" if n==1 else f"s[{a}:{a+n-1}]"

def kstart(name):
    return f""".text
.globl {name}
.p2align 8
.type {name},@function
{name}:"""
def kdesc(name, v, s=102):
    return f""".section .rodata,"a"
.p2align 6
.amdhsa_kernel {name}
  .amdhsa_next_free_vgpr {v}
  .amdhsa_next_free_sgpr {s}
  .amdhsa_accum_offset {(v+3)//4*4}
  .amdhsa_group_segment_fixed_size 0
  .amdhsa_kernarg_size 80
  .amdhsa_user_sgpr_count 2
  .amdhsa_user_sgpr_kernarg_segment_ptr 1
  .amdhsa_system_sgpr_workgroup_id_x 1
  .amdhsa_float_denorm_mode_32 3
.end_amdhsa_kernel"""
def kk(p):
    s=p>>4; h=(p>>2)&1; i=((p>>3)&1)*4+(p&3)
    return 16*s+8*h+i
def srd(a, s, lo, size, add=0, w3=0x20000):
    if add:
        a(f"s_add_u32 s{s}, s{lo}, {add}\ns_addc_u32 s{s+1}, s{lo+1}, 0")
    elif s!=lo:
        a(f"s_mov_b32 s{s}, s{lo}\ns_mov_b32 s{s+1}, s{lo+1}")
    a(f"s_mov_b32 s{s+2}, {size}\ns_mov_b32 s{s+3}, {w3:#x}")

MFMA="v_mfma_f32_32x32x16_bf16"
L_W=0; L_XS=65536
def stage_xw(a, sW, sB, srdX, srdM0, srdM1, vl, t):
    t0,t1,t2,t3=t
    a(f"""; ---- weights: rows 4m+(lane>>4), source chunk (lane&15)^(4*(lane>>4))
    v_lshrrev_b32 v{t0}, 4, v{vl}
    v_and_b32 v{t1}, 15, v{vl}
    v_lshlrev_b32 v{t2}, 2, v{t0}
    v_xor_b32 v{t2}, v{t2}, v{t1}
    v_lshlrev_b32 v{t2}, 4, v{t2}
    v_lshl_add_u32 v{t2}, v{t0}, 8, v{t2}
    s_lshl_b32 s44, s{sW}, 11
    v_add_u32 v{t2}, s44, v{t2}
    s_mov_b32 m0, s44
    s_and_b32 s45, s{sW}, 3
    s_lshl_b32 s45, s45, 3
    buffer_load_dwordx4 v{t2}, {sr(srdM0,4)}, 0 offen lds
    buffer_load_dwordx4 v{t2}, {sr(srdM0,4)}, 0 offen offset:1024 lds
    s_add_u32 s46, s44, 32768
    s_mov_b32 m0, s46
    v_add_u32 v{t0}, s45, v{t0}
    s_lshr_b32 s45, s{sW}, 2
    buffer_load_dwordx4 v{t2}, {sr(srdM1,4)}, 0 offen lds
    buffer_load_dwordx4 v{t2}, {sr(srdM1,4)}, 0 offen offset:1024 lds
    s_mul_i32 s47, s{sB}, {NB}
    s_add_u32 s47, s47, s45
    s_add_u32 s46, s44, {L_XS}
    s_sub_u32 s45, {NB}, s45""")
    for q in range(2):
        a(f"""v_and_b32 v{t2}, 15, v{t0}
        v_xor_b32 v{t2}, v{t2}, v{t1}
        v_lshlrev_b32 v{t3}, 2, v{t0}
        v_cmp_gt_u32 vcc, s45, v{t3}
        v_add_u32 v{t3}, s47, v{t3}
        v_lshlrev_b32 v{t3}, 8, v{t3}
        v_lshl_add_u32 v{t2}, v{t2}, 4, v{t3}
        s_mov_b32 m0, s46
        v_mov_b32 v{t3}, 0x7fff0000
        v_cndmask_b32 v{t2}, v{t3}, v{t2}, vcc
        s_add_u32 s46, s46, 1024
        buffer_load_dwordx4 v{t2}, {sr(srdX,4)}, 0 offen lds""")
        if q==0: a(f"v_add_u32 v{t0}, 4, v{t0}")
def gemm16(a, sW, vl, D0, D1, vA, vB, t):
    ta,tb,tc=t
    a(f"""; A address
    v_and_b32 v{ta}, 31, v{vl}
    v_lshrrev_b32 v{tb}, 5, v{vl}
    v_and_b32 v{tc}, 15, v{ta}
    v_xor_b32 v{tc}, v{tc}, v{tb}
    v_lshlrev_b32 v{tc}, 4, v{tc}
    v_lshl_add_u32 v{ta}, v{ta}, 8, v{tc}
    s_lshr_b32 s44, s{sW}, 2
    s_lshl_b32 s44, s44, 13
    s_add_u32 s44, s44, {L_XS}
    v_add_u32 v{ta}, s44, v{ta}
    ; B address: (8h+r)*256 + ((4j+2*g16+(c>>1))^(4r))*16 + (c&1)*8
    v_bfe_u32 v{tc}, v{vl}, 2, 2
    v_lshl_add_u32 v{tb}, v{tb}, 3, v{tc}
    v_lshlrev_b32 v{tb}, 8, v{tb}
    v_lshlrev_b32 v{tc}, 2, v{tc}
    s_and_b32 s44, s{sW}, 3
    s_lshl_b32 s44, s44, 2
    v_xor_b32 v{tc}, s44, v{tc}
    v_lshl_add_u32 v{tb}, v{tc}, 4, v{tb}
    v_bfe_u32 v{tc}, v{vl}, 4, 1
    v_lshl_add_u32 v{tb}, v{tc}, 5, v{tb}
    v_and_b32 v{tc}, 3, v{vl}
    v_lshl_add_u32 v{tb}, v{tc}, 3, v{tb}""")
    def rd(ks):
        p=ks&1
        if ks==0: a(f"ds_read_b128 {vr(vA,4)}, v{ta}")
        else:
            a(f"v_xor_b32 v{tc}, {32*ks}, v{ta}")
            a(f"ds_read_b128 {vr(vA+4*p,4)}, v{tc}")
        for m in range(2):
            for q in range(2):
                a(f"ds_read_b64_tr_b16 {vr(vB+8*p+4*m+2*q,2)}, v{tb} offset:{m*32768+ks*4096+q*1024}")
    rd(0)
    for ks in range(8):
        p=ks&1
        if ks<7:
            rd(ks+1); a("s_waitcnt lgkmcnt(5)")
        else: a("s_waitcnt lgkmcnt(0)")
        a(f"{MFMA} {vr(D0,16)}, {vr(vA+4*p,4)}, {vr(vB+8*p,4)}, {'0' if ks==0 else vr(D0,16)}")
        a(f"{MFMA} {vr(D1,16)}, {vr(vA+4*p,4)}, {vr(vB+8*p+4,4)}, {'0' if ks==0 else vr(D1,16)}")
```

```python
from common import *
K1_CNT=98304; K1_BASE=K1_CNT+1024; K1_SORT=K1_BASE+7*1024; K1_LDS=K1_SORT+6400
QSCALE=-LOG2E*(1-0.0027)
def gen_k1(a, opt):
    a(kstart('prep_kernel'))
    VL=1
    a(f"""s_cmp_ge_u32 s2, {NWG}
    s_cbranch_scc1 K1_done
    s_load_dwordx2 s[4:5], s[0:1], 0
    s_load_dwordx4 s[16:19], s[0:1], 16
    s_load_dwordx4 s[36:39], s[0:1], 40
    s_load_dwordx2 s[40:41], s[0:1], 72
    v_lshrrev_b32 v2, 6, v0
    v_and_b32 v{VL}, 63, v0
    v_readfirstlane_b32 s3, v2
    v_lshlrev_b32 v2, 2, v0
    v_mov_b32 v3, 0
    v_add_u32 v2, {K1_CNT}, v2
    v_cmp_gt_u32 vcc, 256, v0
    s_and_saveexec_b64 s[42:43], vcc
    ds_write_b32 v2, v3
    s_mov_b64 exec, s[42:43]
    s_waitcnt lgkmcnt(0)""")
    a("s_mov_b32 s20, s18\ns_mov_b32 s21, s19")
    srd(a,16,16,E*4); srd(a,20,20,E*4); srd(a,4,4,N*256)
    srd(a,8,38,32768,add=32768); srd(a,12,36,32768)
    srd(a,24,40,N*RS,add=WS_QH); srd(a,28,40,NCH*CH*4,add=WS_ENT); srd(a,32,40,NCH*1024,add=WS_CELL)
    a(f"""s_mul_i32 s48, s2, {CH*4}
    v_lshlrev_b32 v4, 4, v0
    v_add_u32 v5, s48, v4
    v_cmp_gt_u32 vcc, {CH//4}, v0
    s_cmp_lt_u32 s2, {NCH}
    s_cselect_b64 s[50:51], vcc, 0
    s_mov_b64 exec, s[50:51]
    s_cbranch_execz K1_noload
    buffer_load_dwordx4 v[8:11], v5, s[20:23], 0 offen
    buffer_load_dwordx4 v[12:15], v5, s[16:19], 0 offen
    K1_noload:
    s_mov_b64 exec, -1""")
    stage_xw(a,3,2,4,8,12,VL,(16,17,18,19))
    a(f"""s_barrier
    s_mov_b64 exec, s[50:51]
    s_cbranch_execz K1_norank
    s_mov_b32 s44, {M49}
    s_movk_i32 s45, {NB}
    s_movk_i32 s46, {CH}
    v_lshlrev_b32 v6, 2, v0
    v_mov_b32 v7, 1
    s_waitcnt vmcnt(6)""")
    for i in range(4):
        a(f"""v_lshrrev_b32 v16, 1, v{8+i}
        v_mul_hi_u32 v16, v16, s44
        v_mul_u32_u24 v17, s45, v16
        v_sub_u32 v17, v{8+i}, v17
        v_mad_u32_u24 v17, v{12+i}, s45, v17
        v_add_u32 v18, {i}, v6
        v_mad_u32_u24 v{12+i}, v17, s46, v18
        v_and_b32 v17, 7, v16
        v_lshrrev_b32 v16, 3, v16
        v_lshl_add_u32 v16, v17, 5, v16
        v_lshlrev_b32 v{8+i}, 2, v16
        v_add_u32 v16, {K1_CNT}, v{8+i}
        ds_add_rtn_u32 v{20+i}, v16, v7""")
    a(f"""K1_norank:
    s_mov_b64 exec, -1
    s_waitcnt vmcnt(0) lgkmcnt(0)
    s_barrier
    s_cmp_ge_u32 s3, 7
    s_cbranch_scc1 K1_noscan
    s_cmp_ge_u32 s2, {NCH}
    s_cbranch_scc1 K1_noscan
    v_lshlrev_b32 v16, 4, v{VL}
    v_add_u32 v17, {K1_CNT}, v16
    ds_read_b128 v[24:27], v17
    s_lshl_b32 s44, s3, 10
    s_add_u32 s44, s44, {K1_BASE}
    s_waitcnt lgkmcnt(0)
    v_add_u32 v29, v24, v25
    v_add_u32 v30, v29, v26
    v_add_u32 v31, v30, v27
    v_mov_b32 v32, v31
    s_nop 1
    v_add_u32_dpp v32, v32, v32 row_shr:1 row_mask:0xf bank_mask:0xf bound_ctrl:0
    s_nop 1
    v_add_u32_dpp v32, v32, v32 row_shr:2 row_mask:0xf bank_mask:0xf bound_ctrl:0
    s_nop 1
    v_add_u32_dpp v32, v32, v32 row_shr:4 row_mask:0xf bank_mask:0xf bound_ctrl:0
    s_nop 1
    v_add_u32_dpp v32, v32, v32 row_shr:8 row_mask:0xf bank_mask:0xf bound_ctrl:0
    s_nop 1
    v_add_u32_dpp v32, v32, v32 row_bcast:15 row_mask:0xa bank_mask:0xf
    s_nop 1
    v_add_u32_dpp v32, v32, v32 row_bcast:31 row_mask:0xc bank_mask:0xf
    s_nop 1
    v_sub_u32 v28, v32, v31
    v_add_u32 v29, v29, v28
    v_add_u32 v30, v30, v28
    v_add_u32 v31, v28, v24
    ; bases: v28, v31, v29, v30
    v_mov_b32 v32, v28
    v_mov_b32 v33, v31
    v_mov_b32 v34, v29
    v_mov_b32 v35, v30
    v_add_u32 v17, s44, v16
    ds_write_b128 v17, v[32:35]
    s_cmp_lg_u32 s3, 0
    s_cbranch_scc1 K1_nocell
    v_lshl_or_b32 v24, v24, 16, v32
    v_lshl_or_b32 v25, v25, 16, v33
    v_lshl_or_b32 v26, v26, 16, v34
    v_lshl_or_b32 v27, v27, 16, v35
    s_lshl_b32 s45, s2, 10
    v_add_u32 v16, s45, v16
    buffer_store_dwordx4 v[24:27], v16, s[32:35], 0 offen
    K1_nocell:
    s_mov_b64 exec, s[50:51]""")
    for i in range(4):
        a(f"v_add_u32 v16, s44, v{8+i}\nds_read_b32 v{36+i}, v16")
    a("s_waitcnt lgkmcnt(0)")
    for i in range(4):
        a(f"v_add_u32 v16, v{36+i}, v{20+i}\nv_lshlrev_b32 v16, 2, v16\nv_add_u32 v16, {K1_SORT}, v16\nds_write_b32 v16, v{12+i}")
    a("""s_mov_b64 exec, -1
    K1_noscan:""")
    DQ=48; DH=64
    gemm16(a,3,VL,DQ,DH,80,88,(16,17,18))
    a(f"""s_barrier
    s_mov_b64 exec, s[50:51]
    s_cbranch_execz K1_noent
    v_add_u32 v16, {K1_SORT}, v4
    ds_read_b128 v[8:11], v16
    s_waitcnt lgkmcnt(0)
    buffer_store_dwordx4 v[8:11], v5, s[28:31], 0 offen
    K1_noent:
    s_mov_b64 exec, -1
    s_mul_i32 s44, s2, {NB}
    s_lshr_b32 s45, s3, 2
    s_add_u32 s44, s44, s45
    s_mul_i32 s44, s44, {RS}
    s_and_b32 s46, s3, 3
    s_lshl_b32 s46, s46, 7
    s_add_u32 s44, s44, s46
    v_lshrrev_b32 v16, 5, v{VL}
    v_mul_u32_u24 v16, {16*RS}, v16
    v_and_b32 v17, 31, v{VL}
    v_lshl_add_u32 v16, v17, 2, v16
    v_add_u32 v16, s44, v16
    s_mov_b32 s47, {f2u(QSCALE):#x}
    s_nop 3""")
    for r in range(13):
        a(f"v_mul_f32 v{DQ+r}, s47, v{DQ+r}")
        a(f"v_cvt_pk_bf16_f32 v{DQ+r}, v{DH+r}, v{DQ+r}")
    for r in range(13):
        off=(8*(r>>2)+(r&3))*4*RS
        if r==12:
            a(f"""s_cmp_ge_u32 s45, 2
            s_cbranch_scc1 K1_done
            s_mov_b32 exec_hi, 0""")
        if r and (r&3)==0: a(f"v_add_u32 v16, {5*4*RS}, v16")
        elif r: a(f"v_add_u32 v16, {4*RS}, v16")
        a(f"buffer_store_dword v{DQ+r}, v16, s[24:27], 0 offen")
    a("K1_done:\ns_endpgm")
    a(kdesc('prep_kernel',112))
```

```python
from common import *
CAP=2048
L_ST=98304
L_OFFS=L_ST+40960
NSLOT=CAP+160
L_META=L_OFFS+NSLOT*4
L_TBL=L_META+NSLOT*4
L_CNT=L_TBL+2560
L_MISC=L_CNT+256
L_STATE=L_MISC+64
K2_LDS=L_STATE+1024
assert K2_LDS<=163840
V_ACC=0; V_G=16; V_Z=48; V_IDX=64; V_P=80; V_C=88; V_E=92; V_S=100; V_MSG=108; V_META=116
V_IA=118; V_MA=119; V_H16=120; V_TB=121; V_SW=122; V_SR=123; V_T0=124; V_T1=125; V_ONE=126; V_TID=127
NV=128
S_QH=8; S_EA=12; S_NT=16; S_80=17; S_M31=18; S_W=20; S_T=21; S_MX=22; S_MORE=23; S_FIRST=60
def issue_next(a, nxt):
    G=V_G+16*nxt
    a(f"v_and_or_b32 v{V_T1}, v{V_META+nxt}, s{S_M31}, v{V_H16}")
    for i in range(16): a(f"buffer_load_dword v{G+i}, v{V_IDX+i}, {sr(S_QH,4)}, 0 offen")
    a(f"buffer_load_dwordx4 {vr(V_E+4*nxt,4)}, v{V_T1}, {sr(S_EA,4)}, 0 offen")
def read_next(a, nxt):
    for q in range(4): a(f"ds_read_b128 {vr(V_IDX+4*q,4)}, v{V_IA} offset:{32*q}")
    a(f"ds_read_b32 v{V_META+nxt}, v{V_MA}")
def tile_body(a, cur, last, opt):
    prio=opt.get('prio',1); bar=opt.get('bar',2)
    nxt=1-cur; G=V_G+16*cur; Z=V_Z
    if not last: read_next(a,nxt)
    a(f"v_and_b32 v{V_T0}, 31, v{V_META+cur}")
    a(f"v_mad_u32_u24 v{V_T1}, v{V_T0}, s{S_80}, v{V_TB}")
    a(f"v_mad_u32_u24 v{V_T0}, v{V_T0}, s{S_80}, v{V_SW}")
    a(f"ds_read_b128 {vr(V_S,4)}, v{V_T1}")
    a(f"ds_read_b128 {vr(V_S+4,4)}, v{V_T1} offset:32")
    if not last:
        a(f"v_add_u32 v{V_IA}, 128, v{V_IA}")
        a(f"v_add_u32 v{V_MA}, 128, v{V_MA}")
        a("s_waitcnt lgkmcnt(2)")
        if bar==2: a("s_barrier")
        issue_next(a,nxt)
        if bar==1: a("s_barrier")
        a("s_waitcnt vmcnt(17) lgkmcnt(0)")
    else:
        if bar: a("s_barrier")
        a("s_waitcnt vmcnt(0) lgkmcnt(0)")
    a(f"{MFMA} {vr(Z,16)}, {vr(V_E+4*cur,4)}, {vr(V_C,4)}, {vr(G,16)}")
    a(f"{MFMA} {vr(Z,16)}, {vr(V_S,4)}, {vr(V_P,4)}, {vr(Z,16)}")
    a(f"{MFMA} {vr(Z,16)}, {vr(V_S+4,4)}, {vr(V_P+4,4)}, {vr(Z,16)}")
    a(f"ds_write_b16_d16_hi v{V_T0}, v{V_ONE}")
    a(f"ds_read_b128 {vr(V_S,4)}, v{V_SR}")
    a(f"ds_read_b128 {vr(V_S+4,4)}, v{V_SR} offset:32")
    a(f"ds_write_b16 v{V_T0}, v{V_ONE}")
    a("s_nop 0")
    for i in range(16): a(f"v_lshlrev_b32 v{G+i}, 16, v{G+i}")
    if prio: a("s_setprio 1")
    for i in range(16): a(f"v_exp_f32 v{Z+i}, v{Z+i}")
    if prio: a("s_setprio 0")
    for i in range(16): a(f"v_add_f32 v{Z+i}, 1.0, v{Z+i}")
    if prio: a("s_setprio 1")
    for i in range(16): a(f"v_rcp_f32 v{Z+i}, v{Z+i}")
    if prio: a("s_setprio 0")
    for i in range(16): a(f"v_mul_f32 v{Z+i}, v{Z+i}, v{G+i}")
    for i in range(8): a(f"v_cvt_pk_bf16_f32 v{V_MSG+i}, v{Z+2*i}, v{Z+2*i+1}")
    a("s_waitcnt lgkmcnt(0)")
    a("s_nop 0")
    a(f"{MFMA} {vr(V_ACC,16)}, {vr(V_S,4)}, {vr(V_MSG,4)}, {vr(V_ACC,16)}")
    a(f"{MFMA} {vr(V_ACC,16)}, {vr(V_S+4,4)}, {vr(V_MSG+4,4)}, {vr(V_ACC,16)}")

def gen_k2(a, opt):
    bar=opt.get('bar',2)
    a(kstart('edge_kernel'))
    VL=V_MSG
    a(f"""s_cmp_ge_u32 s2, {NWG}
    s_cbranch_scc1 K2_done
    s_load_dwordx4 s[4:7], s[0:1], 0
    s_load_dwordx2 s[28:29], s[0:1], 32
    s_load_dwordx4 s[48:51], s[0:1], 48
    s_load_dwordx2 s[56:57], s[0:1], 72
    v_mov_b32 v{V_TID}, v0
    v_lshrrev_b32 v2, 6, v0
    v_and_b32 v{VL}, 63, v0
    v_readfirstlane_b32 s{S_W}, v2
    s_and_b32 s44, s2, 7
    s_lshl_b32 s44, s44, 5
    s_lshr_b32 s45, s2, 3
    s_add_u32 s44, s44, s45
    s_lshl_b32 s44, s44, 2
    v_lshrrev_b32 v3, 2, v0
    v_lshl_add_u32 v4, v3, 10, s44
    s_waitcnt lgkmcnt(0)
    s_mov_b32 s12, s6
    s_mov_b32 s13, s7""")
    srd(a,36,56,NCH*1024,add=WS_CELL)
    a("buffer_load_dword v5, v4, s[36:39], 0 offen")
    srd(a,4,4,N*256); srd(a,12,12,E*32); srd(a,24,48,32768); srd(a,28,28,32768)
    srd(a,40,48,4096,add=65536); srd(a,32,56,NCH*CH*4,add=WS_ENT); srd(a,52,50,N*256)
    a(f"""s_and_b32 s44, s{S_W}, 3
    s_lshl_b32 s44, s44, 7
    s_add_u32 s44, s44, {WS_QH-128}
    s_add_u32 s8, s56, s44
    s_addc_u32 s9, s57, 0
    s_or_b32 s9, s9, 0x40000
    s_mov_b32 s10, {N*RS+128}
    s_mov_b32 s11, 0x800000""")
    stage_xw(a,S_W,2,4,24,28,VL,(16,17,18,19))
    a(f"""v_lshrrev_b32 v16, 5, v{VL}
    v_lshlrev_b32 v{V_H16}, 4, v16
    v_and_b32 v17, 31, v{VL}
    s_and_b32 s44, s{S_W}, 3
    s_lshl_b32 s44, s44, 6
    v_lshlrev_b32 v18, 11, v16
    v_lshl_add_u32 v18, v17, 1, v18
    v_add_u32 v18, s44, v18""")
    for i in range(8): a(f"buffer_load_ushort v{V_S+i}, v18, s[40:43], 0 offen offset:{256*i}")
    a(f"""v_add_u32 v{V_TB}, {L_TBL}, v{V_H16}
    s_mul_i32 s19, s{S_W}, 2560
    s_add_u32 s19, s19, {L_ST}
    s_movk_i32 s{S_80}, 80
    s_mov_b32 s{S_M31}, 0xffffffe0
    v_mad_u32_u24 v{V_SR}, v17, s{S_80}, v{V_H16}
    v_add_u32 v{V_SR}, s19, v{V_SR}
    v_and_b32 v19, 19, v17
    v_and_b32 v20, 4, v17
    v_lshl_add_u32 v19, v20, 1, v19
    v_and_b32 v20, 8, v17
    v_lshrrev_b32 v20, 1, v20
    v_add_u32 v19, v19, v20
    v_lshlrev_b32 v19, 1, v19
    v_add_u32 v{V_SW}, s19, v19
    v_mov_b32 v{V_ONE}, 0x3f800000
    v_mov_b32 v24, 0
    v_mov_b32 v25, 0
    v_mov_b32 v26, 0
    v_mov_b32 v27, 0
    v_lshl_add_u32 v20, v{VL}, 4, s19
    ds_write_b128 v20, v[24:27]
    ds_write_b128 v20, v[24:27] offset:1024
    v_and_b32 v20, 31, v{VL}
    v_lshl_add_u32 v20, v20, 4, s19
    ds_write_b128 v20, v[24:27] offset:2048
    s_cmp_lg_u32 s{S_W}, 1
    s_cbranch_scc1 K2_notbl
    v_lshlrev_b32 v20, 4, v{VL}
    v_add_u32 v20, {L_TBL}, v20
    ds_write_b128 v20, v[24:27]
    ds_write_b128 v20, v[24:27] offset:1024
    v_lshlrev_b32 v20, 4, v17
    v_add_u32 v20, {L_TBL+2048}, v20
    ds_write_b128 v20, v[24:27]
    v_mad_u32_u24 v20, v17, s{S_80}, v19
    v_add_u32 v20, {L_TBL}, v20
    ds_write_b16_d16_hi v20, v{V_ONE}
    K2_notbl:
    s_mov_b32 s{S_FIRST}, 1
    s_waitcnt vmcnt(14)
    s_branch K2_round1
    K2_round:
    v_mov_b32 v24, 0
    v_mov_b32 v25, 0
    v_mov_b32 v26, 0
    v_mov_b32 v27, 0
    v_lshrrev_b32 v19, 2, v{V_TID}
    v_lshlrev_b32 v20, 2, v19
    v_add_u32 v20, {L_STATE}, v20
    v_and_b32 v{VL}, 63, v{V_TID}
    ds_read_b32 v21, v20
    s_waitcnt lgkmcnt(0)
    s_barrier
    s_branch K2_round2
    K2_round1:
    v_mov_b32 v21, v5
    v_lshrrev_b32 v19, 2, v{V_TID}
    K2_round2:
    s_cmp_lg_u32 s{S_W}, 0
    s_cbranch_scc1 K2_noclr
    v_lshlrev_b32 v20, 4, v{VL}
    v_min_u32 v20, 256, v20
    v_add_u32 v20, {L_CNT}, v20
    ds_write_b128 v20, v[24:27]
    K2_noclr:
    v_lshrrev_b32 v22, 16, v21
    v_min_u32 v23, 32, v22
    v_and_b32 v21, 0xffff, v21
    v_and_b32 v28, 3, v{V_TID}
    v_mov_b32 v29, {L_MISC}
    v_cmp_eq_u32 vcc, 0, v28
    s_waitcnt lgkmcnt(0)
    s_barrier
    s_and_saveexec_b64 s[44:45], vcc
    ds_add_rtn_u32 v30, v29, v23
    s_waitcnt lgkmcnt(0)
    v_add_u32 v30, v30, v23
    v_cmp_ge_u32 vcc, {CAP}, v30
    s_nop 1
    v_cndmask_b32 v23, 0, v23, vcc
    v_sub_u32 v22, v22, v23
    v_add_u32 v30, v21, v23
    v_lshl_or_b32 v30, v22, 16, v30
    v_lshlrev_b32 v31, 2, v19
    v_add_u32 v31, {L_STATE}, v31
    ds_write_b32 v31, v30
    v_cmp_lt_u32 vcc, 0, v22
    s_and_b64 exec, exec, vcc
    v_mov_b32 v30, 1
    ds_write_b32 v29, v30 offset:4
    s_mov_b64 exec, s[44:45]
    s_nop 4
    v_mov_b32_dpp v23, v23 quad_perm:[0,0,0,0] row_mask:0xf bank_mask:0xf
    s_movk_i32 s46, {CH}
    v_mad_u32_u24 v30, v19, s46, v21
    v_lshlrev_b32 v28, 2, v28
    v_add_u32 v30, v30, v28
    v_lshlrev_b32 v30, 2, v30
    v_mul_u32_u24 v31, s46, v19
    v_sub_u32 v23, v23, v28
    v_cmp_lt_i32 s[62:63], 0, v23
    v_cmp_lt_i32 s[70:71], 16, v23
    s_mov_b64 exec, s[62:63]
    s_cbranch_execz K2_nold
    buffer_load_dwordx4 v[32:35], v30, s[32:35], 0 offen
    s_mov_b64 exec, s[70:71]
    s_cbranch_execz K2_nold
    buffer_load_dwordx4 v[36:39], v30, s[32:35], 0 offen offset:64
    K2_nold:
    s_mov_b64 exec, -1""")
    for i in range(1,4):
        a(f"v_cmp_lt_i32 s[{62+2*i}:{63+2*i}], {i}, v23")
        a(f"v_cmp_lt_i32 s[{70+2*i}:{71+2*i}], {16+i}, v23")
    a(f"""s_mov_b32 s44, {M25}
    s_mov_b32 s45, {M49}
    s_movk_i32 s47, {NB}
    s_movk_i32 s58, {RS}
    v_mov_b32 v29, 1
    s_waitcnt vmcnt(0)""")
    for i in range(8):
        if i==4: a("s_cmp_eq_u64 s[70:71], 0\ns_cbranch_scc1 K2_nodec2")
        e=32+i
        a(f"""v_lshrrev_b32 v16, 6, v{e}
        v_mul_hi_u32 v16, v16, s44
        v_mul_u32_u24 v17, s46, v16
        v_sub_u32 v17, v{e}, v17
        v_add_u32 v17, v17, v31
        v_lshrrev_b32 v18, 1, v16
        v_mul_hi_u32 v18, v18, s45
        v_mul_u32_u24 v20, s47, v18
        v_sub_u32 v16, v16, v20
        v_min_u32 v18, {N-1}, v18
        v_mul_u32_u24 v{40+i}, s58, v18
        v_lshrrev_b32 v20, 2, v16
        v_lshl_or_b32 v{48+i}, v17, 5, v20
        v_and_b32 v16, 3, v16
        v_lshrrev_b32 v18, 11, v18
        v_and_b32 v18, 15, v18
        v_lshl_add_u32 v16, v16, 4, v18
        v_lshlrev_b32 v{56+i}, 2, v16
        v_add_u32 v16, {L_CNT}, v{56+i}
        s_mov_b64 exec, s[{62+2*i}:{63+2*i}]
        ds_add_rtn_u32 v{64+i}, v16, v29
        s_mov_b64 exec, -1""")
    a(f"""K2_nodec2:
    s_waitcnt lgkmcnt(0)
    s_barrier
    v_lshlrev_b32 v16, 2, v{VL}
    v_add_u32 v16, {L_CNT}, v16
    ds_read_b32 v17, v16
    v_mov_b32 v16, {L_MISC}
    ds_read_b32 v18, v16 offset:4
    s_waitcnt lgkmcnt(0)
    v_mov_b32 v20, v17
    v_readfirstlane_b32 s{S_MORE}, v18
    s_nop 0
    v_add_u32_dpp v20, v20, v20 row_shr:1 row_mask:0xf bank_mask:0xf bound_ctrl:0
    s_nop 1
    v_add_u32_dpp v20, v20, v20 row_shr:2 row_mask:0xf bank_mask:0xf bound_ctrl:0
    s_nop 1
    v_add_u32_dpp v20, v20, v20 row_shr:4 row_mask:0xf bank_mask:0xf bound_ctrl:0
    s_nop 1
    v_add_u32_dpp v20, v20, v20 row_shr:8 row_mask:0xf bank_mask:0xf bound_ctrl:0
    s_nop 1
    v_readlane_b32 s80, v20, 15
    v_readlane_b32 s81, v20, 31
    v_readlane_b32 s82, v20, 47
    v_readlane_b32 s83, v20, 63
    v_sub_u32 v20, v20, v17
    ; tiles per group s84..s87, start tile s88..s91""")
    for g in range(4): a(f"s_add_u32 s{84+g}, s{80+g}, 31\ns_lshr_b32 s{84+g}, s{84+g}, 5")
    a(f"""s_mov_b32 s88, 0
    s_mov_b32 s89, s84
    s_add_u32 s90, s89, s85
    s_add_u32 s91, s90, s86
    s_max_u32 s{S_MX}, s84, s85
    s_max_u32 s44, s86, s87
    s_max_u32 s{S_MX}, s{S_MX}, s44
    s_lshl_b32 s44, s84, 5
    s_lshl_b32 s45, s85, 5
    s_lshl_b32 s47, s86, 5
    v_mov_b32 v17, 0
    v_cmp_lt_u32 vcc, 15, v{VL}
    v_mov_b32 v16, s44
    s_nop 0
    v_cndmask_b32 v18, 0, v16, vcc
    v_add_u32 v20, v20, v18
    v_cmp_lt_u32 vcc, 31, v{VL}
    v_mov_b32 v16, s45
    s_nop 0
    v_cndmask_b32 v18, 0, v16, vcc
    v_add_u32 v20, v20, v18
    v_cmp_lt_u32 vcc, 47, v{VL}
    v_mov_b32 v16, s47
    s_nop 0
    v_cndmask_b32 v18, 0, v16, vcc
    v_add_u32 v20, v20, v18
    ; v20 = base position of key (lane)""")
    for i in range(8):
        if i==4: a("s_cmp_eq_u64 s[70:71], 0\ns_cbranch_scc1 K2_nopos2a")
        a(f"ds_bpermute_b32 v{56+i}, v{56+i}, v20")
    a("K2_nopos2a:\ns_waitcnt lgkmcnt(0)")
    for i in range(8):
        if i==4: a("s_cmp_eq_u64 s[70:71], 0\ns_cbranch_scc1 K2_nopos2")
        a(f"""v_add_u32 v16, v{56+i}, v{64+i}
        v_and_b32 v17, 4, v16
        v_lshlrev_b32 v17, 5, v17
        v_sub_u32 v17, 128, v17
        v_add_u32 v17, v17, v{40+i}
        v_lshlrev_b32 v16, 2, v16
        v_add_u32 v16, {L_OFFS}, v16
        s_mov_b64 exec, s[{62+2*i}:{63+2*i}]
        ds_write_b32 v16, v17
        ds_write_b32 v16, v{48+i} offset:{L_META-L_OFFS}
        s_mov_b64 exec, -1""")
    a(f"""K2_nopos2:
    s_lshr_b32 s47, s{S_W}, 2
    s_mov_b32 s44, s80
    s_mov_b32 s{S_NT}, s84
    s_mov_b32 s45, s88""")
    for g in range(1,4):
        a(f"""s_cmp_eq_u32 s47, {g}
        s_cselect_b32 s44, s{80+g}, s44
        s_cselect_b32 s{S_NT}, s{84+g}, s{S_NT}
        s_cselect_b32 s45, s{88+g}, s45""")
    a(f"""; padding entries (all four waves of the group write the same values)
    v_and_b32 v16, 31, v{VL}
    s_and_b32 s58, s44, 31
    s_cbranch_scc0 K2_nopad
    v_cmp_le_u32 vcc, s58, v16
    s_add_u32 s59, s45, s{S_NT}
    s_sub_u32 s59, s59, 1
    s_lshl_b32 s59, s59, 7
    s_add_u32 s59, s59, {L_OFFS}
    v_and_b32 v17, 4, v16
    v_lshlrev_b32 v17, 5, v17
    v_sub_u32 v17, {(N-32)*RS+128}, v17
    v_mul_u32_u24 v18, {RS}, v16
    v_add_u32 v17, v17, v18
    v_lshl_add_u32 v18, v16, 2, s59
    v_mov_b32 v19, 31
    s_and_saveexec_b64 s[62:63], vcc
    ds_write_b32 v18, v17
    ds_write_b32 v18, v19 offset:{L_META-L_OFFS}
    s_mov_b64 exec, s[62:63]
    K2_nopad:
    s_lshl_b32 s45, s45, 7
    s_add_u32 s45, s45, {L_OFFS}
    v_add_u32 v{V_IA}, s45, v{V_H16}
    s_add_u32 s45, s45, {L_META-L_OFFS}
    v_lshl_add_u32 v{V_MA}, v16, 2, s45
    s_waitcnt lgkmcnt(0)
    s_barrier
    s_sub_u32 s{S_MX}, s{S_MX}, s{S_NT}
    s_cmp_eq_u32 s{S_NT}, 0
    s_cbranch_scc1 K2_nofirst""")
    read_next(a,0)
    a(f"v_add_u32 v{V_IA}, 128, v{V_IA}\nv_add_u32 v{V_MA}, 128, v{V_MA}\ns_waitcnt lgkmcnt(0)")
    issue_next(a,0)
    a(f"""K2_nofirst:
    s_cmp_eq_u32 s{S_FIRST}, 0
    s_cbranch_scc1 K2_nogemm""")
    gemm16(a,S_W,VL,V_Z,V_ACC,V_IDX,V_G+16,(V_IDX+8,V_IDX+9,V_IDX+10))
    a(f"s_mov_b32 s44, {f2u(-LOG2E):#x}")
    for i in range(8): a(f"v_lshlrev_b32 v{V_S+i}, 16, v{V_S+i}\nv_mul_f32 v{V_S+i}, s44, v{V_S+i}")
    for i in range(4): a(f"v_cvt_pk_bf16_f32 v{V_C+i}, v{V_S+2*i}, v{V_S+2*i+1}")
    for r in range(16): a(f"v_mul_f32 v{V_Z+r}, s44, v{V_Z+r}")
    for r in range(8): a(f"v_cvt_pk_bf16_f32 v{V_P+r}, v{V_Z+2*r}, v{V_Z+2*r+1}")
    a(f"""s_mov_b32 s{S_FIRST}, 0
    K2_nogemm:
    s_cmp_eq_u32 s{S_NT}, 0
    s_cbranch_scc1 K2_tiles_done
    s_cmp_eq_u32 s{S_NT}, 1
    s_cbranch_scc1 K2_last0
    .p2align 3
    K2_loop:""")
    tile_body(a,0,False,opt)
    a(f"s_cmp_eq_u32 s{S_NT}, 2\ns_cbranch_scc1 K2_last1")
    tile_body(a,1,False,opt)
    a(f"""s_sub_u32 s{S_NT}, s{S_NT}, 2
    s_cmp_gt_u32 s{S_NT}, 1
    s_cbranch_scc1 K2_loop
    K2_last0:""")
    tile_body(a,0,True,opt)
    a("s_branch K2_tiles_done\nK2_last1:")
    tile_body(a,1,True,opt)
    a("K2_tiles_done:")
    if bar:
        a(f"""K2_xbar:
        s_cmp_eq_u32 s{S_MX}, 0
        s_cbranch_scc1 K2_xbar_done
        s_barrier
        s_sub_u32 s{S_MX}, s{S_MX}, 1
        s_branch K2_xbar
        K2_xbar_done:""")
    a(f"""s_cmp_lg_u32 s{S_MORE}, 0
    s_cbranch_scc1 K2_round
    s_mul_i32 s44, s2, {NB}
    s_lshr_b32 s45, s{S_W}, 2
    s_add_u32 s44, s44, s45
    s_lshl_b32 s44, s44, 8
    s_and_b32 s46, s{S_W}, 3
    s_lshl_b32 s46, s46, 6
    s_add_u32 s44, s44, s46
    v_and_b32 v17, 31, v{V_TID}
    v_lshlrev_b32 v16, 8, v{V_H16}
    v_lshl_add_u32 v16, v17, 1, v16
    v_add_u32 v16, s44, v16
    s_mov_b32 s47, {f2u(-LOG2E):#x}
    s_nop 4""")
    for r in range(13): a(f"v_mul_f32 v{V_Z+r}, s47, v{V_ACC+r}")
    for r in range(13): a(f"v_exp_f32 v{V_Z+r}, v{V_Z+r}")
    for r in range(13): a(f"v_add_f32 v{V_Z+r}, 1.0, v{V_Z+r}")
    for r in range(13): a(f"v_rcp_f32 v{V_Z+r}, v{V_Z+r}")
    for r in range(13): a(f"v_mul_f32 v{V_Z+r}, v{V_Z+r}, v{V_ACC+r}")
    for r in range(13): a(f"v_cvt_pk_bf16_f32 v{V_Z+r}, v{V_Z+r}, v{V_Z+r}")
    for r in range(13):
        if r==12:
            a(f"""s_cmp_ge_u32 s45, 2
            s_cbranch_scc1 K2_done
            s_mov_b32 exec_hi, 0""")
        if r and (r&3)==0: a(f"v_add_u32 v16, 8192, v16")
        a(f"buffer_store_short v{V_Z+r}, v16, s[52:55], 0 offen offset:{(r&3)*1024}")
    a("K2_done:\ns_endpgm")
    a(kdesc('edge_kernel',NV))
```

```python
import sys
from common import *
from k1 import *
from k2 import *
opt={k:int(v) for k,v in (kv.split('=') for kv in sys.argv[1:])}
a=Asm()
for l in open('gather_scatter__edge_featured_mpnn_egc__graph.s.ref').read().split('\n'):
    if l.startswith('; Override'): break
    a(l)
a(f"; @launch kernel=prep_kernel grid=({NWG},1,1) block=(1024,1,1) lds={K1_LDS}")
a(f"; @launch kernel=edge_kernel grid=({NWG},1,1) block=(1024,1,1) lds={K2_LDS}")
a('.amdgcn_target "amdgcn-amd-amdhsa--gfx950"')
gen_k1(a,opt); gen_k2(a,opt)
print(a.text())
```

```python
N=25000; E=400000; NB=98; NWG=256
CH=1600; NCH=250
import os
RS=int(os.environ.get('RS',512))
WS_QH   = 1<<20
WS_ENT  = 20<<20
WS_CELL = 24<<20
WS_FLAG = 25<<20
WS_DBG  = 32<<20
M49=87652394; M25=171798692
LOG2E=1.4426950408889634
import struct
def f2u(x): return struct.unpack('<I',struct.pack('<f',x))[0]

class Asm:
    def __init__(s): s.L=[]
    def __call__(s, t):
        for l in t.split('\n'):
            l=l.strip()
            if l: s.L.append(l if l.endswith(':') or l.startswith('.') or l.startswith(';') else '  '+l)
    def text(s): return '\n'.join(s.L)

def vr(a,n=1): return f"v{a}" if n==1 else f"v[{a}:{a+n-1}]"
def sr(a,n=1): return f"s{a}" if n==1 else f"s[{a}:{a+n-1}]"

def kstart(name):
    return f""".text
.globl {name}
.p2align 8
.type {name},@function
{name}:"""
def kdesc(name, v, s=102):
    return f""".section .rodata,"a"
.p2align 6
.amdhsa_kernel {name}
  .amdhsa_next_free_vgpr {v}
  .amdhsa_next_free_sgpr {s}
  .amdhsa_accum_offset {(v+3)//4*4}
  .amdhsa_group_segment_fixed_size 0
  .amdhsa_kernarg_size 80
  .amdhsa_user_sgpr_count 2
  .amdhsa_user_sgpr_kernarg_segment_ptr 1
  .amdhsa_system_sgpr_workgroup_id_x 1
  .amdhsa_float_denorm_mode_32 3
.end_amdhsa_kernel"""
def kk(p):
    s=p>>4; h=(p>>2)&1; i=((p>>3)&1)*4+(p&3)
    return 16*s+8*h+i
def srd(a, s, lo, size, add=0, w3=0x20000):
    if add:
        a(f"s_add_u32 s{s}, s{lo}, {add}\ns_addc_u32 s{s+1}, s{lo+1}, 0")
    elif s!=lo:
        a(f"s_mov_b32 s{s}, s{lo}\ns_mov_b32 s{s+1}, s{lo+1}")
    a(f"s_mov_b32 s{s+2}, {size}\ns_mov_b32 s{s+3}, {w3:#x}")

MFMA="v_mfma_f32_32x32x16_bf16"
L_W=int(os.environ.get('L_W',0)); L_XS=L_W+65536
def stage_xw(a, sW, sB, srdX, srdM0, srdM1, vl, t):
    t0,t1,t2,t3=t
    a(f"""; ---- weights: rows 4m+(lane>>4), source chunk (lane&15)^(4*(lane>>4))
    v_lshrrev_b32 v{t0}, 4, v{vl}
    v_and_b32 v{t1}, 15, v{vl}
    v_lshlrev_b32 v{t2}, 2, v{t0}
    v_xor_b32 v{t2}, v{t2}, v{t1}
    v_lshlrev_b32 v{t2}, 4, v{t2}
    v_lshl_add_u32 v{t2}, v{t0}, 8, v{t2}
    s_lshl_b32 s44, s{sW}, 11
    v_add_u32 v{t2}, s44, v{t2}
    s_mov_b32 m0, s44
    s_and_b32 s45, s{sW}, 3
    s_lshl_b32 s45, s45, 3
    buffer_load_dwordx4 v{t2}, {sr(srdM0,4)}, 0 offen lds
    buffer_load_dwordx4 v{t2}, {sr(srdM0,4)}, 0 offen offset:1024 lds
    s_add_u32 s46, s44, 32768
    s_mov_b32 m0, s46
    v_add_u32 v{t0}, s45, v{t0}
    s_lshr_b32 s45, s{sW}, 2
    buffer_load_dwordx4 v{t2}, {sr(srdM1,4)}, 0 offen lds
    buffer_load_dwordx4 v{t2}, {sr(srdM1,4)}, 0 offen offset:1024 lds
    s_mul_i32 s47, s{sB}, {NB}
    s_add_u32 s47, s47, s45
    s_add_u32 s46, s44, {L_XS}
    s_sub_u32 s45, {NB}, s45""")
    for q in range(2):
        a(f"""v_and_b32 v{t2}, 15, v{t0}
        v_xor_b32 v{t2}, v{t2}, v{t1}
        v_lshlrev_b32 v{t3}, 2, v{t0}
        v_cmp_gt_u32 vcc, s45, v{t3}
        v_add_u32 v{t3}, s47, v{t3}
        v_lshlrev_b32 v{t3}, 8, v{t3}
        v_lshl_add_u32 v{t2}, v{t2}, 4, v{t3}
        s_mov_b32 m0, s46
        v_mov_b32 v{t3}, 0x7fff0000
        v_cndmask_b32 v{t2}, v{t3}, v{t2}, vcc
        s_add_u32 s46, s46, 1024
        buffer_load_dwordx4 v{t2}, {sr(srdX,4)}, 0 offen lds""")
        if q==0: a(f"v_add_u32 v{t0}, 4, v{t0}")

def stage_w(a, sW, srdM0, srdM1, vl, t):
    t0,t1,t2=t
    a(f"""v_lshrrev_b32 v{t0}, 4, v{vl}
    v_and_b32 v{t1}, 15, v{vl}
    v_lshlrev_b32 v{t2}, 2, v{t0}
    v_xor_b32 v{t2}, v{t2}, v{t1}
    v_lshlrev_b32 v{t2}, 4, v{t2}
    v_lshl_add_u32 v{t2}, v{t0}, 8, v{t2}
    s_lshl_b32 s44, s{sW}, 11
    v_add_u32 v{t2}, s44, v{t2}
    s_add_u32 s44, s44, {L_W}
    s_mov_b32 m0, s44
    s_add_u32 s44, s44, 32768
    buffer_load_dwordx4 v{t2}, {sr(srdM0,4)}, 0 offen lds
    buffer_load_dwordx4 v{t2}, {sr(srdM0,4)}, 0 offen offset:1024 lds
    s_mov_b32 m0, s44
    s_nop 0
    buffer_load_dwordx4 v{t2}, {sr(srdM1,4)}, 0 offen lds
    buffer_load_dwordx4 v{t2}, {sr(srdM1,4)}, 0 offen offset:1024 lds""")
def stage_x(a, sW, sB, srdX, vl, t):
    t0,t1,t2,t3=t
    a(f"""v_lshrrev_b32 v{t0}, 4, v{vl}
    v_and_b32 v{t1}, 15, v{vl}
    s_and_b32 s45, s{sW}, 3
    s_lshl_b32 s45, s45, 3
    v_add_u32 v{t0}, s45, v{t0}
    s_lshr_b32 s45, s{sW}, 2
    s_mul_i32 s47, s{sB}, {NB}
    s_add_u32 s47, s47, s45
    s_lshl_b32 s46, s{sW}, 11
    s_add_u32 s46, s46, {L_XS}
    s_sub_u32 s45, {NB}, s45""")
    for q in range(2):
        a(f"""v_and_b32 v{t2}, 15, v{t0}
        v_xor_b32 v{t2}, v{t2}, v{t1}
        v_lshlrev_b32 v{t3}, 2, v{t0}
        v_cmp_gt_u32 vcc, s45, v{t3}
        v_add_u32 v{t3}, s47, v{t3}
        v_lshlrev_b32 v{t3}, 8, v{t3}
        v_lshl_add_u32 v{t2}, v{t2}, 4, v{t3}
        s_mov_b32 m0, s46
        v_mov_b32 v{t3}, 0x7fff0000
        v_cndmask_b32 v{t2}, v{t3}, v{t2}, vcc
        s_add_u32 s46, s46, 1024
        buffer_load_dwordx4 v{t2}, {sr(srdX,4)}, 0 offen lds""")
        if q==0: a(f"v_add_u32 v{t0}, 4, v{t0}")
def gemm16(a, sW, vl, D0, D1, vA, vB, t):
    ta,tb,tc=t
    a(f"""; A address
    v_and_b32 v{ta}, 31, v{vl}
    v_lshrrev_b32 v{tb}, 5, v{vl}
    v_and_b32 v{tc}, 15, v{ta}
    v_xor_b32 v{tc}, v{tc}, v{tb}
    v_lshlrev_b32 v{tc}, 4, v{tc}
    v_lshl_add_u32 v{ta}, v{ta}, 8, v{tc}
    s_lshr_b32 s44, s{sW}, 2
    s_lshl_b32 s44, s44, 13
    s_add_u32 s44, s44, {L_XS}
    v_add_u32 v{ta}, s44, v{ta}
    ; B address: (8h+r)*256 + ((4j+2*g16+(c>>1))^(4r))*16 + (c&1)*8
    v_bfe_u32 v{tc}, v{vl}, 2, 2
    v_lshl_add_u32 v{tb}, v{tb}, 3, v{tc}
    v_lshlrev_b32 v{tb}, 8, v{tb}
    v_lshlrev_b32 v{tc}, 2, v{tc}
    s_and_b32 s44, s{sW}, 3
    s_lshl_b32 s44, s44, 2
    v_xor_b32 v{tc}, s44, v{tc}
    v_lshl_add_u32 v{tb}, v{tc}, 4, v{tb}
    v_bfe_u32 v{tc}, v{vl}, 4, 1
    v_lshl_add_u32 v{tb}, v{tc}, 5, v{tb}
    v_and_b32 v{tc}, 3, v{vl}
    v_lshl_add_u32 v{tb}, v{tc}, 3, v{tb}""")
    def rd(ks):
        p=ks&1
        if ks==0: a(f"ds_read_b128 {vr(vA,4)}, v{ta}")
        else:
            a(f"v_xor_b32 v{tc}, {32*ks}, v{ta}")
            a(f"ds_read_b128 {vr(vA+4*p,4)}, v{tc}")
        for m in range(2):
            for q in range(2):
                a(f"ds_read_b64_tr_b16 {vr(vB+8*p+4*m+2*q,2)}, v{tb} offset:{m*32768+ks*4096+q*1024}")
    rd(0)
    for ks in range(8):
        p=ks&1
        if ks<7:
            rd(ks+1); a("s_waitcnt lgkmcnt(5)")
        else: a("s_waitcnt lgkmcnt(0)")
        a(f"{MFMA} {vr(D0,16)}, {vr(vA+4*p,4)}, {vr(vB+8*p,4)}, {'0' if ks==0 else vr(D0,16)}")
        a(f"{MFMA} {vr(D1,16)}, {vr(vA+4*p,4)}, {vr(vB+8*p+4,4)}, {'0' if ks==0 else vr(D1,16)}")

class Stamper:
    def __init__(s,a,on,base): s.a=a; s.on=on; s.n=0; s.base=base; s.slot={}
    def __call__(s, bit=None):
        if not s.on: return
        if bit is not None and not (s.on>>bit)&1: return
        if s.n==0:
            for k in range(1,8): s.a(f"s_mov_b32 s{s.base+k}, 0")
        if bit is None or bit not in s.slot:
            k=s.n; s.n+=1
            if bit is not None: s.slot[bit]=k
        else: k=s.slot[bit]
        s.a(f"s_memrealtime s[92:93]\ns_waitcnt lgkmcnt(0)\ns_mov_b32 s{s.base+k}, s92")
    def flush(s, kid, sW, wsreg):
        if not s.on: return
        a=s.a
        a(f"""s_mov_b64 exec, -1
        s_waitcnt vmcnt(0)""")
        s()
        a(f"""s_load_dwordx2 s[4:5], s[0:1], 72
        s_waitcnt lgkmcnt(0)
        s_mov_b32 s6, {256<<20}
        s_mov_b32 s7, 0x20000
        s_lshl_b32 s44, s2, 4
        s_add_u32 s44, s44, s{sW}
        s_lshl_b32 s44, s44, 6
        s_add_u32 s44, s44, {WS_DBG+kid*(1<<20)}
        v_mov_b32 v20, s44""")
        for i in range(s.n): a(f"v_mov_b32 v21, s{s.base+i}\nbuffer_store_dword v21, v20, s[4:7], 0 offen offset:{4*i}")

def stage_w8(a, sw8, srdM0, srdM1, vl, t):
    t0,t1,t2=t
    a(f"""v_lshrrev_b32 v{t0}, 4, v{vl}
    v_and_b32 v{t1}, 15, v{vl}
    v_lshlrev_b32 v{t2}, 2, v{t0}
    v_xor_b32 v{t2}, v{t2}, v{t1}
    v_lshlrev_b32 v{t2}, 4, v{t2}
    v_lshl_add_u32 v{t2}, v{t0}, 8, v{t2}
    s_lshl_b32 s44, s{sw8}, 12
    v_add_u32 v{t2}, s44, v{t2}
    s_add_u32 s44, s44, {L_W}
    s_mov_b32 m0, s44
    s_add_u32 s44, s44, 32768""")
    for k in range(4): a(f"buffer_load_dwordx4 v{t2}, {sr(srdM0,4)}, 0 offen offset:{1024*k} lds")
    a("s_mov_b32 m0, s44\ns_nop 0")
    for k in range(4): a(f"buffer_load_dwordx4 v{t2}, {sr(srdM1,4)}, 0 offen offset:{1024*k} lds")
def stage_x8(a, sw8, sB, srdX, vl, t):
    t0,t1,t2,t3=t
    a(f"""v_lshrrev_b32 v{t0}, 4, v{vl}
    v_and_b32 v{t1}, 15, v{vl}
    s_and_b32 s45, s{sw8}, 1
    s_lshl_b32 s45, s45, 4
    v_add_u32 v{t0}, s45, v{t0}
    s_lshr_b32 s45, s{sw8}, 1
    s_mul_i32 s47, s{sB}, {NB}
    s_add_u32 s47, s47, s45
    s_lshl_b32 s46, s{sw8}, 12
    s_add_u32 s46, s46, {L_XS}
    s_sub_u32 s45, {NB}, s45""")
    for q in range(4):
        a(f"""v_and_b32 v{t2}, 15, v{t0}
        v_xor_b32 v{t2}, v{t2}, v{t1}
        v_lshlrev_b32 v{t3}, 2, v{t0}
        v_cmp_gt_u32 vcc, s45, v{t3}
        v_add_u32 v{t3}, s47, v{t3}
        v_lshlrev_b32 v{t3}, 8, v{t3}
        v_lshl_add_u32 v{t2}, v{t2}, 4, v{t3}
        s_mov_b32 m0, s46
        v_mov_b32 v{t3}, 0x7fff0000
        v_cndmask_b32 v{t2}, v{t3}, v{t2}, vcc
        s_add_u32 s46, s46, 1024
        buffer_load_dwordx4 v{t2}, {sr(srdX,4)}, 0 offen lds""")
        if q<3: a(f"v_add_u32 v{t0}, 4, v{t0}")
def gemm_addr(a, sg, sj, vl, ta, tb, tc):
    a(f"""v_and_b32 v{ta}, 31, v{vl}
    v_lshrrev_b32 v{tb}, 5, v{vl}
    v_and_b32 v{tc}, 15, v{ta}
    v_xor_b32 v{tc}, v{tc}, v{tb}
    v_lshlrev_b32 v{tc}, 4, v{tc}
    v_lshl_add_u32 v{ta}, v{ta}, 8, v{tc}
    s_lshl_b32 s44, s{sg}, 13
    s_add_u32 s44, s44, {L_XS}
    v_add_u32 v{ta}, s44, v{ta}
    v_bfe_u32 v{tc}, v{vl}, 2, 2
    v_lshl_add_u32 v{tb}, v{tb}, 3, v{tc}
    v_lshlrev_b32 v{tb}, 8, v{tb}
    v_lshlrev_b32 v{tc}, 2, v{tc}
    s_lshl_b32 s44, s{sj}, 2
    v_xor_b32 v{tc}, s44, v{tc}
    v_lshl_add_u32 v{tb}, v{tc}, 4, v{tb}
    v_bfe_u32 v{tc}, v{vl}, 4, 1
    v_lshl_add_u32 v{tb}, v{tc}, 5, v{tb}
    v_and_b32 v{tc}, 3, v{vl}
    v_lshl_add_u32 v{tb}, v{tc}, 3, v{tb}""")
    if L_W: a(f"v_add_u32 v{tb}, {L_W}, v{tb}")
def gemm32(a, sg, sj, vl, D, vA, vB, t):
    ta,tb,tc,td=t
    gemm_addr(a,sg,sj,vl,ta,tb,tc)
    a(f"v_xor_b32 v{td}, 64, v{tb}")
    def rd(ks):
        p=ks&1
        if ks==0: a(f"ds_read_b128 {vr(vA,4)}, v{ta}")
        else:
            a(f"v_xor_b32 v{tc}, {32*ks}, v{ta}")
            a(f"ds_read_b128 {vr(vA+4*p,4)}, v{tc}")
        for b in range(2):
            if b and ks: a("s_waitcnt lgkmcnt(11)")
            for m in range(2):
                for q in range(2):
                    a(f"ds_read_b64_tr_b16 {vr(vB+16*p+8*b+4*m+2*q,2)}, v{td if b else tb} offset:{m*32768+ks*4096+q*1024}")
    rd(0)
    for ks in range(8):
        p=ks&1
        if ks<7:
            rd(ks+1); a("s_waitcnt lgkmcnt(9)")
        else: a("s_waitcnt lgkmcnt(0)")
        for u in range(4):
            a(f"{MFMA} {vr(D+16*u,16)}, {vr(vA+4*p,4)}, {vr(vB+16*p+4*u,4)}, {'0' if ks==0 else vr(D+16*u,16)}")

def gemm_core(a, ta, tb, tc, D0, D1, vA, vB):
    def rd(ks):
        p=ks&1
        if ks==0: a(f"ds_read_b128 {vr(vA,4)}, v{ta}")
        else:
            a(f"v_xor_b32 v{tc}, {32*ks}, v{ta}")
            a(f"ds_read_b128 {vr(vA+4*p,4)}, v{tc}")
        for m in range(2):
            for q in range(2):
                a(f"ds_read_b64_tr_b16 {vr(vB+8*p+4*m+2*q,2)}, v{tb} offset:{m*32768+ks*4096+q*1024}")
    rd(0)
    for ks in range(8):
        p=ks&1
        if ks<7:
            rd(ks+1); a("s_waitcnt lgkmcnt(5)")
        else: a("s_waitcnt lgkmcnt(0)")
        a(f"{MFMA} {vr(D0,16)}, {vr(vA+4*p,4)}, {vr(vB+8*p,4)}, {'0' if ks==0 else vr(D0,16)}")
        a(f"{MFMA} {vr(D1,16)}, {vr(vA+4*p,4)}, {vr(vB+8*p+4,4)}, {'0' if ks==0 else vr(D1,16)}")
```

```python
import os
os.environ['L_W']='4096'
from common import *
KNAME='gather_scatter__edge_featured_mpnn_egc__graph_kernel'
QBIAS=1-0.0027
CAP=2048
L_TBL=0; L_CNT=2560; L_MISC=L_CNT+256; L_STATE=L_MISC+64
assert L_STATE+1024<=L_W
STW=2080; PADROW=25
L_ST=L_XS+32768
L_ER=L_ST+16*STW
L_OFFS=L_ER+8192
NSLOT=CAP+160
L_META=L_OFFS+NSLOT*4
F_LDS=L_META+NSLOT*4
assert F_LDS<=163840
B_CNT=L_ST; B_BASE=B_CNT+1024; B_SORT=B_BASE+7*1024
assert B_SORT+CH*8<=L_OFFS
SPIN=20000
M_TICKET=0; M_MORE=4; M_QPUB=8; M_CPUB=12; M_DMA=16; M_PU=20; M_RANK=24; M_BV=28
V_ACC=0; V_G=16; V_Z=48; V_IDX=64; V_P=80; V_C=88; V_E=92; V_I4=96; V_S=100; V_MSG=108; V_META=116
V_H16=118; V_SW=119; V_SR=120; V_ONE=121; V_ML=122; V_XA=123; V_WB=124; V_XC=125; V_T0=126; V_T1=127
NV=128
S_QH=8; S_EA=12; S_80=17; S_M31=18; S_W=20; S_W8=21; S_MORE=23; S_FIRST=60; S_NONCE=61
S_STEP=62; S_NSTEP=63; S_PB=64; S_PA=65; S_RB=66; S_RA=67; S_CUR=68; S_NXT=69; S_M0=70; S_255=71; S_K=16; S_PH=22; S_ERB=72; S_ERD=73; S_J=74
VL=V_MSG; VT=V_MSG+1

def lane_tid(a):
    a(f"""v_mbcnt_lo_u32_b32 v{VL}, -1, 0
    v_mbcnt_hi_u32_b32 v{VL}, -1, v{VL}
    v_lshl_add_u32 v{VT}, s{S_W}, 6, v{VL}""")
def lds_arrive(a, off, vt, sdst=None):
    a(f"v_mov_b32 v{vt}, 0\nv_mov_b32 v{vt+1}, 1\ns_mov_b64 exec, 1")
    if sdst is None: a(f"ds_add_u32 v{vt}, v{vt+1} offset:{L_MISC+off}\ns_mov_b64 exec, -1")
    else: a(f"ds_add_rtn_u32 v{vt+1}, v{vt}, v{vt+1} offset:{L_MISC+off}\ns_mov_b64 exec, -1\ns_waitcnt lgkmcnt(0)\nv_readfirstlane_b32 s{sdst}, v{vt+1}")
def lds_wait(a, off, target, vt, lab):
    a(f"""v_mov_b32 v{vt}, 0
    {lab}:
    ds_read_b32 v{vt+1}, v{vt} offset:{L_MISC+off}
    s_waitcnt lgkmcnt(0)
    v_readfirstlane_b32 s44, v{vt+1}
    s_cmp_lt_u32 s44, {target}
    s_cbranch_scc1 {lab}""")
def scan_row(a, v):
    for sh in (1,2,4,8): a(f"s_nop 1\nv_add_u32_dpp v{v}, v{v}, v{v} row_shr:{sh} row_mask:0xf bank_mask:0xf bound_ctrl:0")

def choose_next(a):
    a(f"""s_add_u32 s44, s{S_STEP}, 1
    s_cmp_ge_u32 s44, s{S_K}
    s_cselect_b32 s45, s{S_RA}, 0
    s_min_u32 s{S_NXT}, s45, 1
    s_xor_b32 s44, s44, s{S_PH}
    s_and_b32 s44, s44, 1
    s_cselect_b32 s45, 0, s{S_RB}
    s_cmp_lg_u32 s45, 0
    s_cselect_b32 s{S_NXT}, 2, s{S_NXT}""")
def issue_e(a, nxt, lab):
    a(f"""s_cmp_lg_u32 s{S_J}, 0
    s_cbranch_scc1 {lab}
    s_add_u32 s44, s{S_ERB}, {1024*nxt}
    s_mov_b32 m0, s44
    v_and_or_b32 v{V_T1}, v{V_META+nxt}, s{S_M31}, v{V_H16}
    buffer_load_dwordx4 v{V_T1}, {sr(S_EA,4)}, 0 offen lds
    {lab}:""")
def issue_a(a, nxt, lab):
    G=V_G+16*nxt
    a(f"v_add_u32 v{V_T1}, s{S_PA}, v{V_ML}")
    a(f"ds_read_b32 v{V_META+nxt}, v{V_T1}")
    a(f"v_add_u32 v{V_T1}, s{S_PA}, v{V_H16}")
    for q in range(4): a(f"ds_read_b128 {vr(V_IDX+4*q,4)}, v{V_T1} offset:{32*q}")
    a(f"s_add_u32 s{S_PA}, s{S_PA}, 128\ns_sub_u32 s{S_RA}, s{S_RA}, 1")
    a("s_waitcnt lgkmcnt(4)")
    issue_e(a,nxt,lab)
    a("s_waitcnt lgkmcnt(0)")
    for i in range(16): a(f"buffer_load_dword v{G+i}, v{V_IDX+i}, {sr(S_QH,4)}, 0 offen sc1")
def issue_b(a, nxt, lab):
    a(f"""v_lshrrev_b32 v{V_T1}, 8, v{V_XC}
    v_add_u32 v{V_T1}, s{S_PB}, v{V_T1}
    ds_read_b32 v{V_IDX}, v{V_T1}
    v_add_u32 v{V_T1}, s{S_PB}, v{V_ML}
    ds_read_b32 v{V_META+nxt}, v{V_T1}
    s_add_u32 s{S_PB}, s{S_PB}, 128
    s_sub_u32 s{S_RB}, s{S_RB}, 1
    s_mov_b32 m0, s{S_M0}
    s_add_u32 s44, s{S_M0}, {2048-64}
    s_waitcnt lgkmcnt(0)
    v_and_or_b32 v{V_IDX}, v{V_XC}, s{S_255}, v{V_IDX}
    buffer_load_dwordx4 v{V_IDX}, s[4:7], 0 offen lds
    s_mov_b32 m0, s44
    s_nop 0
    buffer_load_dwordx4 v{V_IDX}, s[4:7], 0 offen offset:64 lds""")
    issue_e(a,nxt,lab)
def wait_older(a, n, lab):
    a(f"""s_waitcnt vmcnt({n+1})
    s_cmp_eq_u32 s{S_J}, 0
    s_cbranch_scc1 {lab}
    s_waitcnt vmcnt({n})
    {lab}:""")
def st_build(a):
    a(f"ds_write_b16_d16_hi v{V_T0}, v{V_ONE}")
    a(f"ds_read_b128 {vr(V_S,4)}, v{V_SR}")
    a(f"ds_read_b128 {vr(V_S+4,4)}, v{V_SR} offset:32")
    a(f"ds_write_b16 v{V_T0}, v{V_ONE}")
def sigmoid_tail(a, G, opt):
    prio=opt.get('prio',0); Z=V_Z
    if prio&1: a("s_setprio 1")
    for i in range(16): a(f"v_exp_f32 v{Z+i}, v{Z+i}")
    if prio&1: a("s_setprio 0")
    for i in range(16): a(f"v_add_f32 v{Z+i}, 1.0, v{Z+i}")
    if prio&1: a("s_setprio 1")
    for i in range(16): a(f"v_rcp_f32 v{Z+i}, v{Z+i}")
    if prio&1: a("s_setprio 0")
    for i in range(16): a(f"v_mul_f32 v{Z+i}, v{Z+i}, v{G+i}")
    for i in range(8): a(f"v_cvt_pk_bf16_f32 v{V_MSG+i}, v{Z+2*i}, v{Z+2*i+1}")
    a("s_waitcnt lgkmcnt(0)")
    a("s_nop 0")
    a(f"{MFMA} {vr(V_ACC,16)}, {vr(V_S,4)}, {vr(V_MSG,4)}, {vr(V_ACC,16)}")
    a(f"{MFMA} {vr(V_ACC,16)}, {vr(V_S+4,4)}, {vr(V_MSG+4,4)}, {vr(V_ACC,16)}")
def compute_a(a, cur, opt):
    G=V_G+16*cur; Z=V_Z
    a(f"{MFMA} {vr(Z,16)}, {vr(V_E,4)}, {vr(V_C,4)}, {vr(G,16)}")
    a(f"{MFMA} {vr(Z,16)}, {vr(V_S,4)}, {vr(V_P,4)}, {vr(Z,16)}")
    a(f"{MFMA} {vr(Z,16)}, {vr(V_S+4,4)}, {vr(V_P+4,4)}, {vr(Z,16)}")
    st_build(a)
    a("s_nop 0")
    for i in range(16): a(f"v_lshlrev_b32 v{G+i}, 16, v{G+i}")
def compute_b(a, cur, opt, u):
    G=V_G+16*cur; Gn=V_G+16*(1-cur); nxt=1-cur; Z=V_Z; vA=V_MSG; vB=V_IDX
    prio=opt.get('prio',0)
    if prio&2: a("s_setprio 2")
    def rd(ks):
        p=ks&1
        a(f"ds_read_b128 {vr(vA+4*p,4)}, v{V_XA} offset:{2048*(ks>>1)}")
        a(f"v_xor_b32 v{V_XA}, 32, v{V_XA}")
        for m in range(2):
            for q in range(2):
                a(f"ds_read_b64_tr_b16 {vr(vB+8*p+4*m+2*q,2)}, v{V_WB} offset:{m*32768+ks*4096+q*1024}")
    a(f"v_add_u32 v{V_T1}, s{S_PA}, v{V_ML}")
    a(f"ds_read_b32 v{V_META+nxt}, v{V_T1}")
    rd(0)
    a("s_waitcnt lgkmcnt(5)")
    a(f"{MFMA} {vr(Z,16)}, {vr(V_E,4)}, {vr(V_C,4)}, 0")
    a(f"{MFMA} {vr(Z,16)}, {vr(V_S,4)}, {vr(V_P,4)}, {vr(Z,16)}")
    a(f"{MFMA} {vr(Z,16)}, {vr(V_S+4,4)}, {vr(V_P+4,4)}, {vr(Z,16)}")
    a(f"s_cmp_eq_u32 s{S_NXT}, 1\ns_cbranch_scc0 H_be{u}")
    issue_e(a,nxt,f"H_be{u}")
    a(f"v_add_u32 v{V_T1}, s{S_PA}, v{V_H16}")
    for ks in range(8):
        p=ks&1
        if p==0: a(f"ds_read_b128 {vr(V_I4,4)}, v{V_T1} offset:{32*(ks>>1)}")
        if ks<7:
            rd(ks+1); a("s_waitcnt lgkmcnt(5)")
        else:
            st_build(a); a("s_waitcnt lgkmcnt(4)")
        a(f"{MFMA} {vr(G,16)}, {vr(vA+4*p,4)}, {vr(vB+8*p+4,4)}, {'0' if ks==0 else vr(G,16)}")
        a(f"{MFMA} {vr(Z,16)}, {vr(vA+4*p,4)}, {vr(vB+8*p,4)}, {vr(Z,16)}")
        if p==0:
            a(f"s_cmp_eq_u32 s{S_NXT}, 1\ns_cbranch_scc0 H_bg{u}{ks}")
            for i in range(4): a(f"buffer_load_dword v{Gn+2*ks+i}, v{V_I4+i}, {sr(S_QH,4)}, 0 offen sc1")
            a(f"H_bg{u}{ks}:")
    if prio&2: a("s_setprio 0")
    a(f"""s_and_b32 s44, s{S_NXT}, 1
    s_sub_u32 s{S_RA}, s{S_RA}, s44
    s_lshl_b32 s44, s44, 7
    s_add_u32 s{S_PA}, s{S_PA}, s44
    s_nop 7""")
def step_body(a, par, opt):
    cur=par; nxt=1-par; u=str(par)
    a("s_barrier")
    a(f"""v_and_b32 v{V_T0}, 31, v{V_META+cur}
    v_mad_u32_u24 v{V_T1}, v{V_T0}, s{S_80}, v{V_H16}
    v_mad_u32_u24 v{V_T0}, v{V_T0}, s{S_80}, v{V_SW}
    ds_read_b128 {vr(V_S,4)}, v{V_T1} offset:{L_TBL}
    ds_read_b128 {vr(V_S+4,4)}, v{V_T1} offset:{L_TBL+32}
    v_lshl_add_u32 v{V_T1}, v{V_H16}, 5, s{S_ERD}
    v_lshl_add_u32 v{V_T1}, v{V_ML}, 2, v{V_T1}
    ds_read_b128 {vr(V_E,4)}, v{V_T1} offset:{1024*cur}""")
    choose_next(a)
    a(f"""s_cmp_eq_u32 s{S_CUR}, 2
    s_cbranch_scc1 H_cB{u}
    s_cmp_eq_u32 s{S_NXT}, 1
    s_cbranch_scc0 H_nA{u}""")
    issue_a(a,nxt,f"H_ea{u}")
    wait_older(a,16,f"H_wa{u}")
    a(f"""s_branch H_go{u}
    H_nA{u}:
    s_cmp_eq_u32 s{S_NXT}, 2
    s_cbranch_scc0 H_nB{u}""")
    issue_b(a,nxt,f"H_eb{u}")
    wait_older(a,2,f"H_wb{u}")
    a(f"""s_branch H_go{u}
    H_nB{u}:
    s_waitcnt vmcnt(0) lgkmcnt(0)
    H_go{u}:
    s_cmp_eq_u32 s{S_CUR}, 1
    s_cbranch_scc0 H_idle{u}""")
    compute_a(a,cur,opt)
    a(f"""s_branch H_tail{u}
    H_cB{u}:""")
    compute_b(a,cur,opt,u)
    a(f"H_tail{u}:")
    sigmoid_tail(a,V_G+16*cur,opt)
    a(f"H_idle{u}:")
    if par==0:
        a(f"""s_cmp_eq_u32 s{S_FIRST}, 0
        s_cbranch_scc1 H_nopoll
        s_mov_b32 s{S_FIRST}, 0
        s_cmp_lt_u32 s{S_W}, 12
        s_cbranch_scc1 H_nopoll
        v_mbcnt_lo_u32_b32 v{V_T0}, -1, 0
        v_mbcnt_hi_u32_b32 v{V_T0}, -1, v{V_T0}
        s_and_b32 s44, s{S_W}, 3
        v_lshl_add_u32 v{V_T0}, s44, 6, v{V_T0}
        v_lshlrev_b32 v{V_T0}, 7, v{V_T0}
        s_movk_i32 s44, {SPIN}
        H_flag_poll:
        buffer_load_dword v{V_T1}, v{V_T0}, s[40:43], 0 offen sc1
        s_waitcnt vmcnt(0)
        v_cmp_ne_u32 vcc, s{S_NONCE}, v{V_T1}
        s_and_b64 exec, exec, vcc
        s_cbranch_execz H_flag_ok
        s_sub_u32 s44, s44, 1
        s_cbranch_scc1 H_flag_ok
        s_sleep 1
        s_branch H_flag_poll
        H_flag_ok:
        s_mov_b64 exec, -1
        H_nopoll:""")
    a(f"""s_mov_b32 s{S_CUR}, s{S_NXT}
    s_waitcnt vmcnt(16)
    s_cmp_eq_u32 s{S_NXT}, 2
    s_cbranch_scc0 H_nw{u}
    s_waitcnt vmcnt(0)
    H_nw{u}:
    s_add_u32 s{S_STEP}, s{S_STEP}, 1
    s_cmp_ge_u32 s{S_STEP}, s{S_NSTEP}""")

def main_loop(a,opt,st):
    a(f"s_mov_b32 s{S_STEP}, -1")
    choose_next(a)
    a(f"""s_cmp_eq_u32 s{S_NXT}, 1
    s_cbranch_scc0 H_pA""")
    issue_a(a,0,"H_pea")
    a(f"""s_waitcnt vmcnt(16)
    s_branch H_pgo
    H_pA:
    s_cmp_eq_u32 s{S_NXT}, 2
    s_cbranch_scc0 H_pgo""")
    issue_b(a,0,"H_peb")
    a(f"""s_waitcnt vmcnt(0)
    H_pgo:
    s_mov_b32 s{S_CUR}, s{S_NXT}
    s_mov_b32 s{S_STEP}, 0""")
    st(7)
    a(".p2align 3\nH_loop:")
    step_body(a,0,opt)
    a("s_cbranch_scc1 H_done")
    step_body(a,1,opt)
    a("s_cbranch_scc0 H_loop\nH_done:")
    st(8)

def prologue(a, opt, st):
    TH=opt.get('th',50); NGA=(TH+24)//25; K0=opt.get('k0',2) if TH>0 else 0
    xl=opt.get('xlate',1)
    a(f"""s_load_dwordx4 s[4:7], s[0:1], 0
    s_load_dwordx4 s[64:67], s[0:1], 16
    s_load_dwordx4 s[28:31], s[0:1], 32
    s_load_dwordx4 s[48:51], s[0:1], 48
    s_load_dwordx4 s[80:83], s[0:1], 64
    s_memrealtime s[58:59]
    v_lshrrev_b32 v2, 6, v0
    v_and_b32 v{VL}, 63, v0
    v_readfirstlane_b32 s{S_W}, v2
    v_mov_b32 v{VT}, v0
    s_mul_i32 s45, s2, {CH*4}
    v_lshlrev_b32 v4, 4, v0
    v_add_u32 v5, s45, v4
    v_cmp_gt_u32 vcc, {CH//4}, v0
    s_cmp_lt_u32 s2, {NCH}
    s_cselect_b64 s[78:79], vcc, 0
    s_waitcnt lgkmcnt(0)
    s_mov_b32 s68, s66
    s_mov_b32 s69, s67""")
    srd(a,64,64,E*4); srd(a,68,68,E*4)
    a(f"""s_mov_b64 exec, s[78:79]
    s_cbranch_execz F_noload
    buffer_load_dwordx4 v[8:11], v5, s[68:71], 0 offen
    buffer_load_dwordx4 v[12:15], v5, s[64:67], 0 offen
    F_noload:
    s_mov_b64 exec, -1
    s_mov_b32 s12, s6
    s_mov_b32 s13, s7
    s_mov_b32 s56, s82
    s_mov_b32 s57, s83
    s_mov_b32 s76, s30
    s_mov_b32 s77, s31""")
    srd(a,80,80,256)
    a(f"""s_or_b32 s58, s58, 1
    v_mov_b32 v6, 0
    v_mov_b32 v7, s58
    s_add_u32 s45, s2, s{S_W}
    s_cmp_lg_u32 s45, 0
    s_cbranch_scc1 F_nononce
    s_mov_b64 exec, 1
    buffer_store_dword v7, v6, s[80:83], 0 offen sc1
    s_mov_b64 exec, -1
    F_nononce:""")
    srd(a,4,4,N*256); srd(a,24,48,32768); srd(a,28,28,32768)
    a(f"""s_and_b32 s{S_W8}, s{S_W}, 7
    s_cmp_lt_u32 s{S_W}, 8
    s_cbranch_scc1 F_nodma""")
    stage_w8(a,S_W8,24,28,VL,(16,17,18))
    if xl==0: stage_x8(a,S_W8,2,4,VL,(16,17,18,19))
    a("F_nodma:")
    srd(a,12,12,E*32); srd(a,32,56,NCH*CH*8,add=WS_ENT); srd(a,36,56,NCH*2048,add=WS_CELL); srd(a,52,50,N*256)
    srd(a,72,56,N*RS,add=WS_QH); srd(a,40,56,32768,add=WS_FLAG); srd(a,84,48,4096,add=65536)
    a(f"""s_and_b32 s46, s{S_W}, 3
    s_lshl_b32 s44, s46, 7
    s_add_u32 s44, s44, {WS_QH-128}
    s_add_u32 s8, s56, s44
    s_addc_u32 s9, s57, 0
    s_or_b32 s9, s9, 0x40000
    s_mov_b32 s10, {N*RS+128}
    s_mov_b32 s11, 0x800000
    v_lshrrev_b32 v16, 5, v{VL}
    v_lshlrev_b32 v{V_H16}, 4, v16
    v_and_b32 v17, 31, v{VL}
    s_lshl_b32 s44, s46, 6
    v_lshlrev_b32 v18, 11, v16
    v_lshl_add_u32 v18, v17, 1, v18
    v_add_u32 v18, s44, v18""")
    for i in range(8): a(f"buffer_load_ushort v{V_S+i}, v18, s[84:87], 0 offen offset:{256*i}")
    a(f"""s_mul_i32 s19, s{S_W}, {STW}
    s_add_u32 s19, s19, {L_ST}
    s_movk_i32 s{S_80}, 80
    s_mov_b32 s{S_M31}, 0xffffffe0
    v_mad_u32_u24 v{V_SR}, v17, s{S_80}, v{V_H16}
    v_add_u32 v{V_SR}, s19, v{V_SR}
    v_and_b32 v19, 19, v17
    v_and_b32 v20, 4, v17
    v_lshl_add_u32 v19, v20, 1, v19
    v_and_b32 v20, 8, v17
    v_lshrrev_b32 v20, 1, v20
    v_add_u32 v19, v19, v20
    v_lshlrev_b32 v19, 1, v19
    v_add_u32 v{V_SW}, s19, v19
    v_mov_b32 v{V_ONE}, 0x3f800000
    v_lshlrev_b32 v{V_ML}, 2, v17
    v_add_u32 v{V_ML}, {L_META-L_OFFS}, v{V_ML}
    s_lshr_b32 s47, s{S_W}, 2
    s_lshl_b32 s45, s47, 13
    s_add_u32 s45, s45, {L_XS}
    v_bfe_u32 v20, v17, 2, 2
    v_xor_b32 v20, v20, v16
    v_lshlrev_b32 v20, 4, v20
    v_and_b32 v21, 15, v17
    v_lshl_add_u32 v20, v21, 6, v20
    v_lshrrev_b32 v21, 4, v17
    v_lshl_add_u32 v20, v21, 10, v20
    v_add_u32 v{V_XA}, s45, v20
    v_bfe_u32 v20, v{VL}, 4, 2
    v_and_b32 v21, 3, v{VL}
    v_xor_b32 v20, v20, v21
    v_lshlrev_b32 v20, 4, v20
    s_and_b32 s44, s46, 1
    s_lshl_b32 s44, s44, 7
    v_add_u32 v20, s44, v20
    v_lshrrev_b32 v21, 2, v{VL}
    s_lshr_b32 s44, s46, 1
    s_lshl_b32 s58, s44, 4
    v_add_u32 v21, s58, v21
    v_lshl_add_u32 v{V_XC}, v21, 10, v20
    s_and_b32 s58, s46, 1
    s_lshl_b32 s58, s58, 2
    s_add_u32 s58, s58, s44
    s_lshl_b32 s58, s58, 10
    s_add_u32 s3, s45, s58
    v_mov_b32 v24, 0
    v_mov_b32 v25, 0
    v_mov_b32 v26, 0
    v_mov_b32 v27, 0
    s_cmp_lg_u32 s{S_W}, 7
    s_cbranch_scc1 F_noinit
    v_lshlrev_b32 v20, 4, v{VL}
    v_add_u32 v21, {B_CNT}, v20
    ds_write_b128 v21, v[24:27]
    ds_write_b128 v20, v[24:27]
    ds_write_b128 v20, v[24:27] offset:1024
    ds_write_b128 v20, v[24:27] offset:2048
    v_mad_u32_u24 v20, v17, s{S_80}, v19
    ds_write_b16_d16_hi v20, v{V_ONE} offset:{L_TBL}
    s_waitcnt lgkmcnt(0)
    F_noinit:
    s_mov_b32 s{S_FIRST}, 1
    s_barrier""")
    if xl==1:
        a(f"s_cmp_lt_u32 s{S_W}, 8\ns_cbranch_scc1 F_nox1\ns_waitcnt vmcnt(0)")
        stage_x8(a,S_W8,2,4,VL,(16,17,18,19))
        a("F_nox1:")
    a(f"""s_mov_b64 exec, s[78:79]
    s_cbranch_execz F_norank
    s_mov_b32 s44, {M49}
    s_movk_i32 s45, {NB}
    s_movk_i32 s46, 25
    s_mul_i32 s47, s2, {CH}
    v_lshl_add_u32 v3, v0, 2, s47
    v_lshlrev_b32 v3, 5, v3
    v_mov_b32 v7, 1
    s_waitcnt vmcnt(8)""")
    for i in range(4):
        a(f"""v_lshrrev_b32 v16, 1, v{8+i}
        v_mul_hi_u32 v16, v16, s44
        v_mul_u32_u24 v17, s45, v16
        v_sub_u32 v17, v{8+i}, v17
        v_and_b32 v18, 7, v16
        v_bfe_u32 v16, v16, 3, 5
        v_lshl_add_u32 v16, v18, 5, v16
        v_lshlrev_b32 v{8+i}, 2, v16
        v_add_u32 v16, {B_CNT}, v{8+i}
        ds_add_rtn_u32 v{20+i}, v16, v7
        v_lshrrev_b32 v16, 2, v17
        v_add3_u32 v{41+2*i}, v3, v16, {32*i if i<3 else 64}
        v_and_b32 v17, 3, v17
        v_bfe_u32 v16, v{12+i}, 12, 3
        v_lshl_add_u32 v16, v17, 4, v16
        v_lshrrev_b32 v17, 1, v{12+i}
        v_mul_hi_u32 v17, v17, s44
        v_mul_u32_u24 v17, s45, v17
        v_sub_u32 v17, v{12+i}, v17
        v_lshrrev_b32 v18, 2, v17
        v_and_b32 v17, 3, v17
        v_mad_u32_u24 v17, v17, s46, v18
        v_cmp_gt_u32 vcc, {TH}, v17
        v_lshlrev_b32 v17, 9, v{12+i}
        v_add_u32 v18, 8, v16
        v_cndmask_b32 v16, v16, v18, vcc
        v_lshl_or_b32 v{40+2*i}, v16, 26, v17""")
        if i==3: a(f"v_add_u32 v{41+2*i}, 32, v{41+2*i}")
    a(f"""F_norank:
    s_mov_b64 exec, -1
    v_mov_b32 v6, 0
    buffer_load_dword v7, v6, s[80:83], 0 offen sc1
    s_waitcnt lgkmcnt(0)""")
    st(1)
    a(f"""s_barrier
    s_cmp_eq_u64 s[78:79], 0
    s_cbranch_scc1 F_noscan
    v_lshlrev_b32 v16, 4, v{VL}
    v_add_u32 v17, {B_CNT}, v16
    ds_read_b128 v[24:27], v17
    s_lshl_b32 s44, s{S_W}, 10
    s_add_u32 s44, s44, {B_BASE}
    s_waitcnt lgkmcnt(0)
    v_add_u32 v29, v24, v25
    v_add_u32 v30, v29, v26
    v_add_u32 v31, v30, v27
    v_mov_b32 v32, v31""")
    scan_row(a,32)
    a(f"""s_nop 1
    v_add_u32_dpp v32, v32, v32 row_bcast:15 row_mask:0xa bank_mask:0xf
    s_nop 1
    v_add_u32_dpp v32, v32, v32 row_bcast:31 row_mask:0xc bank_mask:0xf
    s_nop 1
    v_sub_u32 v32, v32, v31
    v_add_u32 v33, v32, v24
    v_add_u32 v34, v32, v29
    v_add_u32 v35, v32, v30
    v_add_u32 v17, s44, v16
    ds_write_b128 v17, v[32:35]
    v_lshl_or_b32 v48, v24, 16, v32
    v_lshl_or_b32 v50, v25, 16, v33
    v_lshl_or_b32 v52, v26, 16, v34
    v_lshl_or_b32 v54, v27, 16, v35
    s_mov_b64 exec, s[78:79]""")
    for i in range(4):
        a(f"v_add_u32 v16, s44, v{8+i}\nds_read_b32 v{36+i}, v16")
    a("s_waitcnt lgkmcnt(0)")
    for i in range(4):
        a(f"v_add_u32 v16, v{36+i}, v{20+i}\nv_lshlrev_b32 v16, 3, v16\nv_add_u32 v16, {B_SORT}, v16\nds_write_b64 v16, v[{40+2*i}:{41+2*i}]")
    a(f"""s_mov_b64 exec, -1
    s_waitcnt lgkmcnt(0)
    F_noscan:
    s_barrier
    s_mov_b64 exec, s[78:79]
    s_cbranch_execz F_noent
    v_add_u32 v16, {B_SORT}, v4
    ds_read_b128 v[8:11], v16
    ds_read_b128 v[12:15], v16 offset:{CH*4}
    s_mul_i32 s45, s2, {CH*8}
    v_add_u32 v5, s45, v4
    v_add_u32 v17, {CH*4}, v5
    s_waitcnt lgkmcnt(1)
    buffer_store_dwordx4 v[8:11], v5, s[32:35], 0 offen sc1
    s_waitcnt lgkmcnt(0)
    buffer_store_dwordx4 v[12:15], v17, s[32:35], 0 offen sc1
    F_noent:
    s_mov_b64 exec, -1
    s_movk_i32 s44, {SPIN}
    F_nonce_poll:
    s_waitcnt vmcnt(0)
    v_readfirstlane_b32 s{S_NONCE}, v7
    s_sub_u32 s44, s44, 1
    s_cbranch_scc1 F_nonce_ok
    s_cmp_lg_u32 s{S_NONCE}, 0
    s_cbranch_scc1 F_nonce_ok
    s_sleep 1
    buffer_load_dword v7, v6, s[80:83], 0 offen sc1
    s_branch F_nonce_poll
    F_nonce_ok:""")
    st(2)
    a(f"""s_cmp_ge_u32 s{S_W}, 8
    s_cbranch_scc1 F_garr
    s_cmp_eq_u64 s[78:79], 0
    s_cbranch_scc1 F_pu""")
    lds_arrive(a,M_CPUB,16,44)
    a(f"""s_cmp_lg_u32 s44, 6
    s_cbranch_scc1 F_pu
    v_mov_b32 v49, s{S_NONCE}
    v_mov_b32 v51, s{S_NONCE}
    v_mov_b32 v53, s{S_NONCE}
    v_mov_b32 v55, s{S_NONCE}
    s_lshl_b32 s45, s2, 11
    v_lshl_add_u32 v16, v{VL}, 5, s45
    buffer_store_dwordx4 v[48:51], v16, s[36:39], 0 offen sc1
    buffer_store_dwordx4 v[52:55], v16, s[36:39], 0 offen offset:16 sc1
    s_branch F_pu
    F_garr:""")
    lds_arrive(a,M_DMA,16)
    a("F_pu:")
    lds_wait(a,M_DMA,8,16,"F_w1")
    a(f"s_lshr_b32 s46, s{S_W}, 2\ns_and_b32 s47, s{S_W}, 3")
    gemm_addr(a,46,47,VL,16,V_WB,17)
    gemm_core(a,16,V_WB,17,64,V_ACC,24,32)
    lds_arrive(a,M_PU,18)
    a(f"s_mov_b32 s44, {f2u(-LOG2E):#x}")
    for i in range(8): a(f"v_lshlrev_b32 v{V_S+i}, 16, v{V_S+i}\nv_mul_f32 v{V_S+i}, s44, v{V_S+i}")
    for i in range(4): a(f"v_cvt_pk_bf16_f32 v{V_C+i}, v{V_S+2*i}, v{V_S+2*i+1}")
    for r in range(16): a(f"v_mul_f32 v{64+r}, s44, v{64+r}")
    for r in range(8): a(f"v_cvt_pk_bf16_f32 v{V_P+r}, v{64+2*r}, v{64+2*r+1}")
    st(3)
    a(f"""s_cmp_ge_u32 s{S_W}, 8
    s_cbranch_scc1 F_gpath
    s_and_b32 s44, s2, 7
    s_lshl_b32 s44, s44, 5
    s_lshr_b32 s45, s2, 3
    s_add_u32 s44, s44, s45
    s_lshl_b32 s44, s44, 3
    v_lshrrev_b32 v19, 1, v{VT}
    v_lshl_add_u32 v18, v19, 11, s44
    v_cmp_le_u32 vcc, {NCH}, v19
    s_mov_b64 s[46:47], vcc
    s_movk_i32 s44, {SPIN}
    F_cell_poll:
    buffer_load_dwordx2 v[20:21], v18, s[36:39], 0 offen sc1
    s_waitcnt vmcnt(0)
    v_cmp_eq_u32 vcc, s{S_NONCE}, v21
    s_or_b64 s[58:59], vcc, s[46:47]
    s_cmp_eq_u64 s[58:59], -1
    s_cbranch_scc1 F_cell_ok
    s_sub_u32 s44, s44, 1
    s_cbranch_scc1 F_cell_ok
    s_sleep 1
    s_branch F_cell_poll
    F_cell_ok:
    v_cndmask_b32 v21, 0, v20, vcc""")
    st(4)
    a(f"""s_branch F_take
    F_gpath:""")
    lds_wait(a,M_PU,16,16,"F_w2")
    srd(a,24,48,32768,add=32768); srd(a,28,76,32768)
    stage_w8(a,S_W8,24,28,VL,(16,17,18))
    a(f"""s_cmp_ge_u32 s2, {NCH}
    s_cbranch_scc1 F_w3_done""")
    lds_wait(a,M_CPUB,7,16,"F_w3")
    a(f"""F_w3_done:
    v_mov_b32 v24, 0
    v_mov_b32 v25, 0
    v_mov_b32 v26, 0
    v_mov_b32 v27, 0
    v_lshlrev_b32 v16, 4, v{VT}
    v_add_u32 v16, {L_ST-8192}, v16""")
    for k in range(5): a(f"ds_write_b128 v16, v[24:27] offset:{8192*k}")
    a(f"""s_lshl_b32 s44, s{S_W8}, 12
    s_add_u32 s44, s44, {L_W}
    v_lshl_add_u32 v16, v{VL}, 4, s44
    s_mov_b32 s45, {f2u(-LOG2E):#x}
    s_waitcnt vmcnt(4)""")
    for k in range(4): a(f"ds_read_b128 {vr(32+4*k,4)}, v16 offset:{1024*k}")
    a("s_waitcnt lgkmcnt(0)")
    for r in range(16):
        a(f"""v_lshlrev_b32 v17, 16, v{32+r}
        v_and_b32 v18, 0xffff0000, v{32+r}
        v_mul_f32 v17, s45, v17
        v_mul_f32 v18, s45, v18
        v_cvt_pk_bf16_f32 v{32+r}, v17, v18""")
    for k in range(4): a(f"ds_write_b128 v16, {vr(32+4*k,4)} offset:{1024*k}")
    a("s_waitcnt vmcnt(0) lgkmcnt(0)")
    lds_arrive(a,M_BV,16)
    if NGA:
        lds_wait(a,M_BV,8,16,"F_w4")
        st(4)
        for rep in range((4*NGA+7)//8):
            if 8*rep+8>4*NGA: a(f"s_cmp_ge_u32 s{S_W8}, {4*NGA-8*rep}\ns_cbranch_scc1 F_qdone")
            a(f"s_lshr_b32 s46, s{S_W8}, 2\ns_add_u32 s46, s46, {2*rep}\ns_and_b32 s47, s{S_W8}, 3")
            gemm_addr(a,46,47,VL,16,17,18)
            Q=48; H=64
            gemm_core(a,16,17,18,Q,H,24,32)
            a(f"""s_mul_i32 s44, s2, {NB}
            s_add_u32 s44, s44, s46
            s_mul_i32 s44, s44, {RS}
            s_lshl_b32 s45, s47, 7
            s_add_u32 s44, s44, s45
            v_mul_u32_u24 v16, {RS}, v{V_H16}
            v_and_b32 v17, 31, v{VL}
            v_lshl_add_u32 v16, v17, 2, v16
            v_add_u32 v16, s44, v16
            s_mov_b32 s45, {f2u(QBIAS):#x}
            s_nop 1""")
            for r in range(13):
                a(f"v_mul_f32 v{Q+r}, s45, v{Q+r}")
                a(f"v_cvt_pk_bf16_f32 v{Q+r}, v{H+r}, v{Q+r}")
                if r and (r&3)==0: a(f"v_add_u32 v16, {5*4*RS}, v16")
                elif r: a(f"v_add_u32 v16, {4*RS}, v16")
                if r==12: a(f"s_cmp_ge_u32 s46, 2\ns_cbranch_scc1 F_q{rep}\ns_mov_b32 exec_hi, 0")
                a(f"buffer_store_dword v{Q+r}, v16, s[72:75], 0 offen sc1")
            a(f"F_q{rep}:\ns_mov_b64 exec, -1")
    a("F_qdone:\ns_waitcnt vmcnt(0)")
    lds_arrive(a,M_QPUB,16,44)
    a(f"""s_cmp_lg_u32 s44, 7
    s_cbranch_scc1 F_nopub
    s_lshl_b32 s44, s2, 7
    v_mov_b32 v16, s44
    v_mov_b32 v17, s{S_NONCE}
    s_mov_b64 exec, 1
    buffer_store_dword v17, v16, s[40:43], 0 offen sc1
    s_mov_b64 exec, -1
    F_nopub:""")
    st(5)
    a(f"""s_branch F_b6
    K2_round:""")
    lane_tid(a)
    a(f"""s_barrier
    s_cmp_lg_u32 s{S_W}, 7
    s_cbranch_scc1 F_noclr
    v_mov_b32 v24, 0
    v_mov_b32 v25, 0
    v_mov_b32 v26, 0
    v_mov_b32 v27, 0
    v_lshlrev_b32 v20, 4, v{VL}
    v_min_u32 v20, 304, v20
    ds_write_b128 v20, v[24:27] offset:{L_CNT}
    s_waitcnt lgkmcnt(0)
    F_noclr:
    s_barrier
    s_cmp_ge_u32 s{S_W}, 8
    s_cbranch_scc1 F_b6
    v_lshrrev_b32 v19, 1, v{VT}
    v_lshlrev_b32 v20, 2, v19
    ds_read_b32 v21, v20 offset:{L_STATE}
    s_waitcnt lgkmcnt(0)
    F_take:
    v_lshrrev_b32 v22, 16, v21
    v_min_u32 v23, 32, v22
    v_and_b32 v21, 0xffff, v21
    v_and_b32 v28, 1, v{VT}
    v_mov_b32 v29, 0
    v_cmp_eq_u32 vcc, 0, v28
    s_and_saveexec_b64 s[44:45], vcc
    ds_add_rtn_u32 v30, v29, v23 offset:{L_MISC+M_TICKET}
    s_waitcnt lgkmcnt(0)
    v_add_u32 v30, v30, v23
    v_cmp_ge_u32 vcc, {CAP}, v30
    s_nop 1
    v_cndmask_b32 v23, 0, v23, vcc
    v_sub_u32 v22, v22, v23
    v_add_u32 v30, v21, v23
    v_lshl_or_b32 v30, v22, 16, v30
    v_lshlrev_b32 v31, 2, v19
    ds_write_b32 v31, v30 offset:{L_STATE}
    v_cmp_lt_u32 vcc, 0, v22
    s_and_b64 exec, exec, vcc
    v_mov_b32 v30, 1
    ds_write_b32 v29, v30 offset:{L_MISC+M_MORE}
    s_mov_b64 exec, s[44:45]
    s_nop 4
    v_mov_b32_dpp v23, v23 quad_perm:[0,0,2,2] row_mask:0xf bank_mask:0xf
    s_movk_i32 s46, {CH}
    v_mad_u32_u24 v30, v19, s46, v21
    v_lshlrev_b32 v28, 1, v28
    v_add_u32 v30, v30, v28
    v_lshlrev_b32 v30, 3, v30
    v_sub_u32 v23, v23, v28""")
    for k in range(8):
        a(f"""v_cmp_lt_i32 vcc, {4*k}, v23
        s_cbranch_vccz F_ld_done
        s_mov_b64 exec, vcc
        buffer_load_dwordx4 v[{32+4*k}:{35+4*k}], v30, s[32:35], 0 offen offset:{32*k} sc1
        s_mov_b64 exec, -1""")
    a(f"""F_ld_done:
    v_mov_b32 v29, 1
    s_waitcnt vmcnt(0)""")
    for k in range(8):
        for i in range(2):
            a(f"v_cmp_lt_i32 vcc, {4*k+i}, v23")
            if i==0: a("s_cbranch_vccz F_rk_done")
            a(f"""v_lshrrev_b32 v16, 24, v{32+4*k+2*i}
            s_mov_b64 exec, vcc
            ds_add_rtn_u32 v{64+2*k+i}, v16, v29 offset:{L_CNT}
            s_mov_b64 exec, -1""")
    a(f"""F_rk_done:
    s_waitcnt lgkmcnt(0)""")
    lds_arrive(a,M_RANK,16)
    st(5)
    a("F_b6:")
    lds_wait(a,M_RANK,8,16,"F_w6")
    a(f"""v_lshlrev_b32 v16, 2, v{VL}
    ds_read_b32 v17, v16 offset:{L_CNT}
    v_mov_b32 v16, 0
    ds_read_b32 v18, v16 offset:{L_MISC+M_MORE}
    s_waitcnt lgkmcnt(0)
    v_mov_b32 v20, v17
    v_readfirstlane_b32 s{S_MORE}, v18""")
    scan_row(a,20)
    a("s_nop 1")
    for g in range(4): a(f"v_readlane_b32 s{80+g}, v20, {16*g+15}\nv_readlane_b32 s{72+g}, v20, {16*g+7}")
    a("v_sub_u32 v20, v20, v17")
    for g in range(4): a(f"s_add_u32 s{84+g}, s{80+g}, 31\ns_lshr_b32 s{84+g}, s{84+g}, 5\ns_add_u32 s{72+g}, s{72+g}, 31\ns_lshr_b32 s{72+g}, s{72+g}, 5")
    a(f"""s_mov_b32 s88, 0
    s_mov_b32 s89, s84
    s_add_u32 s90, s89, s85
    s_add_u32 s91, s90, s86
    s_cmp_ge_u32 s{S_W}, 8
    s_cbranch_scc1 F_grp""")
    for g in range(4):
        a(f"""s_add_u32 s44, s{88+g}, s{72+g}
        s_lshl_b32 s44, s44, 16
        s_add_u32 s44, s44, s{88+g}
        s_lshl_b32 s44, s44, 5
        v_mov_b32 v16, s44
        s_nop 1
        v_add_u32_dpp v20, v16, v20 quad_perm:[0,1,2,3] row_mask:{1<<g:#x} bank_mask:0xf""")
    a(f"""s_mov_b32 s46, 0xffffff
    s_mov_b32 s47, {(N-1)*RS}""")
    for k in range(8):
        a(f"v_cmp_lt_i32 vcc, {4*k}, v23\ns_cbranch_vccz F_pos_done")
        for i in range(2):
            a(f"v_lshrrev_b32 v{16+i}, 24, v{32+4*k+2*i}\nds_bpermute_b32 v{16+i}, v{16+i}, v20")
        for i in range(2):
            a(f"v_and_b32 v{24+i}, s46, v{32+4*k+2*i}\nv_min_u32 v{24+i}, s47, v{24+i}")
        a("s_waitcnt lgkmcnt(0)")
        for i in range(2):
            a(f"""v_lshrrev_b32 v19, 16, v{16+i}
            v_and_b32 v{16+i}, 0xffff, v{16+i}
            v_add_u32 v{16+i}, v{16+i}, v{64+2*k+i}
            v_cmp_lt_u32 vcc, v{16+i}, v19
            v_and_b32 v18, 4, v{16+i}
            v_lshlrev_b32 v18, 5, v18
            v_sub_u32 v18, 128, v18
            v_add_u32 v18, v18, v{24+i}
            v_lshrrev_b32 v{24+i}, 1, v{24+i}
            v_cndmask_b32 v18, v18, v{24+i}, vcc
            v_cmp_lt_i32 vcc, {4*k+i}, v23
            v_lshlrev_b32 v{16+i}, 2, v{16+i}
            v_add_u32 v{16+i}, {L_OFFS}, v{16+i}
            s_mov_b64 exec, vcc
            ds_write_b32 v{16+i}, v18
            ds_write_b32 v{16+i}, v{33+4*k+2*i} offset:{L_META-L_OFFS}
            s_mov_b64 exec, -1""")
    a(f"""F_pos_done:
    F_grp:
    s_mul_i32 s{S_K}, s{S_FIRST}, {K0}
    s_mov_b32 s{S_NSTEP}, 1""")
    for g in range(4):
        p=g>>1
        a(f"""s_lshl_b32 s44, s{72+g}, 1
        s_add_u32 s44, s44, {p}
        s_sub_u32 s44, s44, 1
        s_cmp_eq_u32 s{72+g}, 0
        s_cselect_b32 s44, 0, s44
        s_max_u32 s{S_NSTEP}, s{S_NSTEP}, s44
        s_add_u32 s44, s{S_K}, {1-p}
        s_lshr_b32 s44, s44, 1
        s_min_u32 s44, s44, s{72+g}
        s_sub_u32 s44, s{84+g}, s44
        s_add_u32 s44, s44, s{S_K}
        s_cmp_eq_u32 s{84+g}, s{72+g}
        s_cselect_b32 s44, 0, s44
        s_max_u32 s{S_NSTEP}, s{S_NSTEP}, s44""")
    a(f"""s_lshr_b32 s47, s{S_W}, 2
    s_lshr_b32 s{S_PH}, s47, 1
    s_mov_b32 s44, s80
    s_mov_b32 s46, s84
    s_mov_b32 s45, s88
    s_mov_b32 s{S_RB}, s72""")
    for g in range(1,4):
        a(f"""s_cmp_eq_u32 s47, {g}
        s_cselect_b32 s44, s{80+g}, s44
        s_cselect_b32 s46, s{84+g}, s46
        s_cselect_b32 s45, s{88+g}, s45
        s_cselect_b32 s{S_RB}, s{72+g}, s{S_RB}""")
    a(f"""s_sub_u32 s{S_RA}, s46, s{S_RB}
    s_lshl_b32 s{S_PB}, s45, 7
    s_add_u32 s{S_PB}, s{S_PB}, {L_OFFS}
    s_lshl_b32 s{S_PA}, s{S_RB}, 7
    s_add_u32 s{S_PA}, s{S_PA}, s{S_PB}
    s_mov_b32 s{S_M0}, s3
    s_and_b32 s{S_J}, s{S_W}, 3
    s_lshl_b32 s{S_ERB}, s47, 11
    s_add_u32 s{S_ERB}, s{S_ERB}, {L_ER}
    s_sub_u32 s{S_ERD}, s{S_ERB}, {4*(L_META-L_OFFS)}
    s_movk_i32 s{S_255}, 255
    v_and_b32 v16, 31, v{VL}
    s_and_b32 s58, s44, 31
    s_cbranch_scc0 K2_nopad
    v_cmp_le_u32 vcc, s58, v16
    s_add_u32 s59, s45, s46
    s_sub_u32 s59, s59, 1
    s_lshl_b32 s59, s59, 7
    s_add_u32 s59, s59, {L_OFFS}
    s_mul_i32 s58, s2, {NB*RS}
    v_and_b32 v17, 4, v16
    v_lshlrev_b32 v17, 5, v17
    v_sub_u32 v17, 128, v17
    v_add_u32 v17, s58, v17
    s_cmp_lg_u32 s{S_RA}, 0
    s_cbranch_scc1 K2_padA
    s_lshr_b32 s58, s58, 1
    v_mov_b32 v17, s58
    K2_padA:
    v_lshl_add_u32 v18, v16, 2, s59
    v_mov_b32 v19, {PADROW}
    s_and_saveexec_b64 s[46:47], vcc
    ds_write_b32 v18, v17
    ds_write_b32 v18, v19 offset:{L_META-L_OFFS}
    s_mov_b64 exec, s[46:47]
    K2_nopad:
    s_waitcnt lgkmcnt(0)""")
    st(6)
    a("s_barrier")

def epilogue(a,opt,st):
    a(f"""s_cmp_lg_u32 s{S_MORE}, 0
    s_cbranch_scc1 K2_round
    s_mul_i32 s44, s2, {NB}
    s_lshr_b32 s45, s{S_W}, 2
    s_add_u32 s44, s44, s45
    s_lshl_b32 s44, s44, 8
    s_and_b32 s46, s{S_W}, 3
    s_lshl_b32 s46, s46, 6
    s_add_u32 s44, s44, s46
    s_sub_u32 s44, s44, {(L_META-L_OFFS)//2}
    v_lshlrev_b32 v16, 8, v{V_H16}
    v_lshrrev_b32 v17, 1, v{V_ML}
    v_add3_u32 v16, v16, v17, s44
    s_mov_b32 s47, {f2u(-LOG2E):#x}
    s_nop 4""")
    for r in range(13): a(f"v_mul_f32 v{V_Z+r}, s47, v{V_ACC+r}")
    for r in range(13): a(f"v_exp_f32 v{V_Z+r}, v{V_Z+r}")
    for r in range(13): a(f"v_add_f32 v{V_Z+r}, 1.0, v{V_Z+r}")
    for r in range(13): a(f"v_rcp_f32 v{V_Z+r}, v{V_Z+r}")
    for r in range(13): a(f"v_mul_f32 v{V_Z+r}, v{V_Z+r}, v{V_ACC+r}")
    for r in range(13): a(f"v_cvt_pk_bf16_f32 v{V_Z+r}, v{V_Z+r}, v{V_Z+r}")
    for r in range(13):
        if r==12:
            a(f"""s_cmp_ge_u32 s45, 2
            s_cbranch_scc1 K2_done
            s_mov_b32 exec_hi, 0""")
        if r and (r&3)==0: a(f"v_add_u32 v16, 8192, v16")
        a(f"buffer_store_short v{V_Z+r}, v16, s[52:55], 0 offen offset:{(r&3)*1024}")

def gen(a,opt):
    assert RS==512
    st=Stamper(a,opt.get('stamp',0),94)
    a(kstart(KNAME))
    a(f"s_cmp_ge_u32 s2, {NWG}\ns_cbranch_scc1 K2_exit")
    st()
    prologue(a,opt,st); main_loop(a,opt,st); epilogue(a,opt,st)
    a("K2_done:"); st.flush(0,S_W,56); a("K2_exit:\ns_endpgm")
    a(kdesc(KNAME,NV))
```

```python
import sys
from f3 import *
opt={k:int(v) for k,v in (kv.split('=') for kv in sys.argv[1:])}
a=Asm()
for l in open('gather_scatter__edge_featured_mpnn_egc__graph.s.ref').read().split('\n'):
    if l.startswith('; Override'): break
    a(l)
if opt.get('list',0): a(f"; @launch kernel={KNAME} grid=({NWG},1,1) block=(1024,1,1) lds={F_LDS}")
else: a(f"; @launch grid=({NWG},1,1) block=(1024,1,1) lds={F_LDS}")
a('.amdgcn_target "amdgcn-amd-amdhsa--gfx950"')
gen(a,opt)
print(a.text())
```

```python
from common import *
from k2 import *
from k1 import QSCALE
KNAME='gather_scatter__edge_featured_mpnn_egc__graph_kernel'
B_CNT=L_OFFS; B_BASE=B_CNT+1024; B_SORT=B_BASE+7*1024
assert B_SORT+6400<=L_TBL
S_NONCE=61
SPIN=20000
def gen_fused(a, opt):
    bar=opt.get('bar',1)
    VL=V_MSG
    st=Stamper(a,opt.get('stamp',0),94)
    a(kstart(KNAME))
    a(f"""s_cmp_ge_u32 s2, {NWG}
    s_cbranch_scc1 K2_exit""")
    st()
    a(f"""s_load_dwordx4 s[4:7], s[0:1], 0
    s_load_dwordx4 s[64:67], s[0:1], 16
    s_load_dwordx4 s[28:31], s[0:1], 32
    s_load_dwordx4 s[48:51], s[0:1], 48
    s_load_dwordx4 s[80:83], s[0:1], 64
    s_memrealtime s[58:59]
    v_mov_b32 v{V_TID}, v0
    v_lshrrev_b32 v2, 6, v0
    v_and_b32 v{VL}, 63, v0
    v_readfirstlane_b32 s{S_W}, v2
    s_mul_i32 s45, s2, {CH*4}
    v_lshlrev_b32 v4, 4, v0
    v_add_u32 v5, s45, v4
    v_cmp_gt_u32 vcc, {CH//4}, v0
    s_cmp_lt_u32 s2, {NCH}
    s_cselect_b64 s[78:79], vcc, 0
    s_waitcnt lgkmcnt(0)
    s_mov_b32 s68, s66
    s_mov_b32 s69, s67""")
    srd(a,64,64,E*4); srd(a,68,68,E*4)
    a(f"""s_mov_b64 exec, s[78:79]
    s_cbranch_execz F_noload
    buffer_load_dwordx4 v[8:11], v5, s[68:71], 0 offen
    buffer_load_dwordx4 v[12:15], v5, s[64:67], 0 offen
    F_noload:
    s_mov_b64 exec, -1
    s_mov_b32 s12, s6
    s_mov_b32 s13, s7
    s_mov_b32 s56, s82
    s_mov_b32 s57, s83
    s_mov_b32 s90, s28
    s_mov_b32 s91, s29""")
    srd(a,80,80,256)
    a(f"""s_or_b32 s58, s58, 1
    v_mov_b32 v6, 0
    v_mov_b32 v7, s58
    s_add_u32 s45, s2, s{S_W}
    s_cmp_lg_u32 s45, 0
    s_cbranch_scc1 F_nononce
    s_mov_b64 exec, 1
    buffer_store_dword v7, v6, s[80:83], 0 offen sc1
    s_mov_b64 exec, -1
    F_nononce:""")
    srd(a,4,4,N*256); srd(a,12,12,E*32); srd(a,24,48,32768,add=32768); srd(a,28,30,32768)
    srd(a,40,48,4096,add=65536); srd(a,32,56,NCH*CH*4,add=WS_ENT); srd(a,36,56,NCH*2048,add=WS_CELL); srd(a,52,50,N*256)
    srd(a,72,56,N*RS,add=WS_QH)
    stage_x(a,S_W,2,4,VL,(16,17,18,19))
    stage_w(a,S_W,24,28,VL,(16,17,18))
    a(f"""s_and_b32 s44, s{S_W}, 3
    s_lshl_b32 s44, s44, 7
    s_add_u32 s44, s44, {WS_QH-128}
    s_add_u32 s8, s56, s44
    s_addc_u32 s9, s57, 0
    s_or_b32 s9, s9, 0x40000
    s_mov_b32 s10, {N*RS+128}
    s_mov_b32 s11, 0x800000
    v_lshrrev_b32 v16, 5, v{VL}
    v_lshlrev_b32 v{V_H16}, 4, v16
    v_and_b32 v17, 31, v{VL}
    s_and_b32 s44, s{S_W}, 3
    s_lshl_b32 s44, s44, 6
    v_lshlrev_b32 v18, 11, v16
    v_lshl_add_u32 v18, v17, 1, v18
    v_add_u32 v18, s44, v18""")
    for i in range(8): a(f"buffer_load_ushort v{V_S+i}, v18, s[40:43], 0 offen offset:{256*i}")
    a(f"""v_add_u32 v{V_TB}, {L_TBL}, v{V_H16}
    s_mul_i32 s19, s{S_W}, 2560
    s_add_u32 s19, s19, {L_ST}
    s_movk_i32 s{S_80}, 80
    s_mov_b32 s{S_M31}, 0xffffffe0
    v_mad_u32_u24 v{V_SR}, v17, s{S_80}, v{V_H16}
    v_add_u32 v{V_SR}, s19, v{V_SR}
    v_and_b32 v19, 19, v17
    v_and_b32 v20, 4, v17
    v_lshl_add_u32 v19, v20, 1, v19
    v_and_b32 v20, 8, v17
    v_lshrrev_b32 v20, 1, v20
    v_add_u32 v19, v19, v20
    v_lshlrev_b32 v19, 1, v19
    v_add_u32 v{V_SW}, s19, v19
    v_mov_b32 v{V_ONE}, 0x3f800000
    v_mov_b32 v24, 0
    v_mov_b32 v25, 0
    v_mov_b32 v26, 0
    v_mov_b32 v27, 0
    s_cmp_lg_u32 s{S_W}, 15
    s_cbranch_scc1 F_nocnt
    v_lshlrev_b32 v20, 4, v{VL}
    v_add_u32 v20, {B_CNT}, v20
    ds_write_b128 v20, v[24:27]
    v_lshlrev_b32 v20, 4, v{VL}
    v_min_u32 v20, 256, v20
    v_add_u32 v20, {L_CNT}, v20
    ds_write_b128 v20, v[24:27]
    F_nocnt:
    v_lshl_add_u32 v20, v{VL}, 4, s19
    ds_write_b128 v20, v[24:27]
    ds_write_b128 v20, v[24:27] offset:1024
    v_lshl_add_u32 v20, v17, 4, s19
    ds_write_b128 v20, v[24:27] offset:2048
    s_cmp_lg_u32 s{S_W}, 14
    s_cbranch_scc1 F_notbl
    v_lshlrev_b32 v20, 4, v{VL}
    v_add_u32 v20, {L_TBL}, v20
    ds_write_b128 v20, v[24:27]
    ds_write_b128 v20, v[24:27] offset:1024
    v_lshlrev_b32 v20, 4, v17
    v_add_u32 v20, {L_TBL+2048}, v20
    ds_write_b128 v20, v[24:27]
    v_mad_u32_u24 v20, v17, s{S_80}, v19
    v_add_u32 v20, {L_TBL}, v20
    ds_write_b16_d16_hi v20, v{V_ONE}
    F_notbl:
    s_mov_b32 s{S_FIRST}, 1
    s_waitcnt lgkmcnt(0)
    s_barrier
    s_mov_b64 exec, s[78:79]
    s_cbranch_execz F_norank
    s_mov_b32 s44, {M49}
    s_movk_i32 s45, {NB}
    s_movk_i32 s46, {CH}
    v_lshlrev_b32 v6, 2, v0
    v_mov_b32 v7, 1
    s_waitcnt vmcnt(14)""")
    for i in range(4):
        a(f"""v_lshrrev_b32 v16, 1, v{8+i}
        v_mul_hi_u32 v16, v16, s44
        v_mul_u32_u24 v17, s45, v16
        v_sub_u32 v17, v{8+i}, v17
        v_mad_u32_u24 v17, v{12+i}, s45, v17
        v_add_u32 v18, {i}, v6
        v_mad_u32_u24 v{12+i}, v17, s46, v18
        v_and_b32 v17, 7, v16
        v_bfe_u32 v16, v16, 3, 5
        v_lshl_add_u32 v16, v17, 5, v16
        v_lshlrev_b32 v{8+i}, 2, v16
        v_add_u32 v16, {B_CNT}, v{8+i}
        ds_add_rtn_u32 v{20+i}, v16, v7""")
    a(f"""F_norank:
    s_mov_b64 exec, -1
    v_mov_b32 v6, 0
    buffer_load_dword v7, v6, s[80:83], 0 offen sc1
    s_waitcnt lgkmcnt(0)""")
    st(1)
    a(f"""s_barrier
    s_cmp_eq_u64 s[78:79], 0
    s_cbranch_scc1 F_noscan
    v_lshlrev_b32 v16, 4, v{VL}
    v_add_u32 v17, {B_CNT}, v16
    ds_read_b128 v[24:27], v17
    s_lshl_b32 s44, s{S_W}, 10
    s_add_u32 s44, s44, {B_BASE}
    s_waitcnt lgkmcnt(0)
    v_add_u32 v29, v24, v25
    v_add_u32 v30, v29, v26
    v_add_u32 v31, v30, v27
    v_mov_b32 v32, v31
    s_nop 1
    v_add_u32_dpp v32, v32, v32 row_shr:1 row_mask:0xf bank_mask:0xf bound_ctrl:0
    s_nop 1
    v_add_u32_dpp v32, v32, v32 row_shr:2 row_mask:0xf bank_mask:0xf bound_ctrl:0
    s_nop 1
    v_add_u32_dpp v32, v32, v32 row_shr:4 row_mask:0xf bank_mask:0xf bound_ctrl:0
    s_nop 1
    v_add_u32_dpp v32, v32, v32 row_shr:8 row_mask:0xf bank_mask:0xf bound_ctrl:0
    s_nop 1
    v_add_u32_dpp v32, v32, v32 row_bcast:15 row_mask:0xa bank_mask:0xf
    s_nop 1
    v_add_u32_dpp v32, v32, v32 row_bcast:31 row_mask:0xc bank_mask:0xf
    s_nop 1
    v_sub_u32 v32, v32, v31
    v_add_u32 v33, v32, v24
    v_add_u32 v34, v32, v29
    v_add_u32 v35, v32, v30
    v_add_u32 v17, s44, v16
    ds_write_b128 v17, v[32:35]
    v_lshl_or_b32 v40, v24, 16, v32
    v_lshl_or_b32 v42, v25, 16, v33
    v_lshl_or_b32 v44, v26, 16, v34
    v_lshl_or_b32 v46, v27, 16, v35
    s_mov_b64 exec, s[78:79]""")
    for i in range(4):
        a(f"v_add_u32 v16, s44, v{8+i}\nds_read_b32 v{36+i}, v16")
    a("s_waitcnt lgkmcnt(0)")
    for i in range(4):
        a(f"v_add_u32 v16, v{36+i}, v{20+i}\nv_lshlrev_b32 v16, 2, v16\nv_add_u32 v16, {B_SORT}, v16\nds_write_b32 v16, v{12+i}")
    a(f"""s_mov_b64 exec, -1
    s_waitcnt lgkmcnt(0)
    F_noscan:
    s_barrier
    s_mov_b64 exec, s[78:79]
    s_cbranch_execz F_noent
    v_add_u32 v16, {B_SORT}, v4
    ds_read_b128 v[8:11], v16
    s_waitcnt lgkmcnt(0)
    buffer_store_dwordx4 v[8:11], v5, s[32:35], 0 offen sc1
    F_noent:
    s_mov_b64 exec, -1
    s_movk_i32 s44, {SPIN}
    F_nonce_poll:
    s_waitcnt vmcnt(0)
    v_readfirstlane_b32 s{S_NONCE}, v7
    s_sub_u32 s44, s44, 1
    s_cbranch_scc1 F_nonce_ok
    s_cmp_lg_u32 s{S_NONCE}, 0
    s_cbranch_scc1 F_nonce_ok
    s_sleep 1
    buffer_load_dword v7, v6, s[80:83], 0 offen sc1
    s_branch F_nonce_poll
    F_nonce_ok:""")
    st(2)
    a(f"""s_barrier
    s_cmp_lg_u32 s{S_W}, 0
    s_cbranch_scc1 F_nocell
    s_cmp_ge_u32 s2, {NCH}
    s_cbranch_scc1 F_nocell
    v_mov_b32 v41, s{S_NONCE}
    v_mov_b32 v43, s{S_NONCE}
    v_mov_b32 v45, s{S_NONCE}
    v_mov_b32 v47, s{S_NONCE}
    s_lshl_b32 s45, s2, 11
    v_lshl_add_u32 v16, v{VL}, 5, s45
    buffer_store_dwordx4 v[40:43], v16, s[36:39], 0 offen sc1
    buffer_store_dwordx4 v[44:47], v16, s[36:39], 0 offen offset:16 sc1
    F_nocell:""")
    DQ=48; DH=64
    gemm16(a,S_W,VL,DQ,DH,16,24,(8,9,10))
    st(3)
    a(f"""s_mul_i32 s44, s2, {NB}
    s_lshr_b32 s45, s{S_W}, 2
    s_add_u32 s44, s44, s45
    s_mul_i32 s44, s44, {RS}
    s_and_b32 s46, s{S_W}, 3
    s_lshl_b32 s46, s46, 7
    s_add_u32 s44, s44, s46
    v_mul_u32_u24 v16, {RS}, v{V_H16}
    v_and_b32 v17, 31, v{VL}
    v_lshl_add_u32 v16, v17, 2, v16
    v_add_u32 v16, s44, v16
    s_mov_b32 s47, {f2u(QSCALE):#x}
    s_nop 1""")
    for r in range(13):
        a(f"v_mul_f32 v{DQ+r}, s47, v{DQ+r}")
        a(f"v_cvt_pk_bf16_f32 v{DQ+r}, v{DH+r}, v{DQ+r}")
        if r==12:
            a(f"""s_cmp_ge_u32 s45, 2
            s_cbranch_scc1 F_qdone
            s_mov_b32 exec_hi, 0""")
        if r and (r&3)==0: a(f"v_add_u32 v16, {5*4*RS}, v16")
        elif r: a(f"v_add_u32 v16, {4*RS}, v16")
        a(f"buffer_store_dword v{DQ+r}, v16, s[72:75], 0 offen sc1")
    a(f"""F_qdone:
    s_mov_b64 exec, -1
    s_barrier""")
    srd(a,24,48,32768); srd(a,28,90,32768); srd(a,40,56,1024,add=WS_FLAG)
    stage_w(a,S_W,24,28,VL,(16,17,18))
    a(f"""; poll this thread's cell
    s_and_b32 s44, s2, 7
    s_lshl_b32 s44, s44, 5
    s_lshr_b32 s45, s2, 3
    s_add_u32 s44, s44, s45
    s_lshl_b32 s44, s44, 3
    v_lshrrev_b32 v19, 2, v{V_TID}
    v_lshl_add_u32 v4, v19, 11, s44
    v_cmp_le_u32 vcc, {NCH}, v19
    s_mov_b64 s[62:63], vcc
    s_movk_i32 s44, {SPIN}
    F_cell_poll:
    buffer_load_dwordx2 v[20:21], v4, s[36:39], 0 offen sc1
    s_waitcnt vmcnt(0)
    v_cmp_eq_u32 vcc, s{S_NONCE}, v21
    s_or_b64 s[64:65], vcc, s[62:63]
    s_cmp_eq_u64 s[64:65], -1
    s_cbranch_scc1 F_cell_ok
    s_sub_u32 s44, s44, 1
    s_cbranch_scc1 F_cell_ok
    s_sleep 1
    s_branch F_cell_poll
    F_cell_ok:
    v_cndmask_b32 v21, 0, v20, vcc""")
    st(4)
    a(f"""s_branch K2_round2
    K2_round:
    v_mov_b32 v24, 0
    v_mov_b32 v25, 0
    v_mov_b32 v26, 0
    v_mov_b32 v27, 0
    v_lshrrev_b32 v19, 2, v{V_TID}
    v_lshlrev_b32 v20, 2, v19
    v_add_u32 v20, {L_STATE}, v20
    v_and_b32 v{VL}, 63, v{V_TID}
    ds_read_b32 v21, v20
    s_waitcnt lgkmcnt(0)
    s_barrier
    s_cmp_lg_u32 s{S_W}, 0
    s_cbranch_scc1 K2_round2
    v_lshlrev_b32 v20, 4, v{VL}
    v_min_u32 v20, 256, v20
    v_add_u32 v20, {L_CNT}, v20
    ds_write_b128 v20, v[24:27]
    K2_round2:
    v_lshrrev_b32 v22, 16, v21
    v_min_u32 v23, 32, v22
    v_and_b32 v21, 0xffff, v21
    v_and_b32 v28, 3, v{V_TID}
    v_mov_b32 v29, {L_MISC}
    v_cmp_eq_u32 vcc, 0, v28
    s_waitcnt lgkmcnt(0)
    s_barrier
    s_cmp_eq_u32 s{S_FIRST}, 0
    s_cbranch_scc1 F_noflag
    s_cmp_lg_u32 s{S_W}, 0
    s_cbranch_scc1 F_noflag
    s_lshl_b32 s44, s2, 2
    v_mov_b32 v30, s44
    v_mov_b32 v31, s{S_NONCE}
    s_mov_b64 exec, 1
    buffer_store_dword v31, v30, s[40:43], 0 offen sc1
    s_mov_b64 exec, -1
    F_noflag:
    s_and_saveexec_b64 s[44:45], vcc
    ds_add_rtn_u32 v30, v29, v23
    s_waitcnt lgkmcnt(0)
    v_add_u32 v30, v30, v23
    v_cmp_ge_u32 vcc, {CAP}, v30
    s_nop 1
    v_cndmask_b32 v23, 0, v23, vcc
    v_sub_u32 v22, v22, v23
    v_add_u32 v30, v21, v23
    v_lshl_or_b32 v30, v22, 16, v30
    v_lshlrev_b32 v31, 2, v19
    v_add_u32 v31, {L_STATE}, v31
    ds_write_b32 v31, v30
    v_cmp_lt_u32 vcc, 0, v22
    s_and_b64 exec, exec, vcc
    v_mov_b32 v30, 1
    ds_write_b32 v29, v30 offset:4
    s_mov_b64 exec, s[44:45]
    s_nop 4
    v_mov_b32_dpp v23, v23 quad_perm:[0,0,0,0] row_mask:0xf bank_mask:0xf
    s_movk_i32 s46, {CH}
    v_mad_u32_u24 v30, v19, s46, v21
    v_lshlrev_b32 v28, 2, v28
    v_add_u32 v30, v30, v28
    v_lshlrev_b32 v30, 2, v30
    v_mul_u32_u24 v31, s46, v19
    v_sub_u32 v23, v23, v28
    v_cmp_lt_i32 s[62:63], 0, v23
    v_cmp_lt_i32 s[70:71], 16, v23
    s_mov_b64 exec, s[62:63]
    s_cbranch_execz K2_nold
    buffer_load_dwordx4 v[32:35], v30, s[32:35], 0 offen sc1
    s_mov_b64 exec, s[70:71]
    s_cbranch_execz K2_nold
    buffer_load_dwordx4 v[36:39], v30, s[32:35], 0 offen offset:64 sc1
    K2_nold:
    s_mov_b64 exec, -1""")
    for i in range(1,4):
        a(f"v_cmp_lt_i32 s[{62+2*i}:{63+2*i}], {i}, v23")
        a(f"v_cmp_lt_i32 s[{70+2*i}:{71+2*i}], {16+i}, v23")
    a(f"""s_mov_b32 s44, {M25}
    s_mov_b32 s45, {M49}
    s_movk_i32 s47, {NB}
    s_movk_i32 s58, {RS}
    v_mov_b32 v29, 1
    s_waitcnt vmcnt(0)""")
    st(5)
    lists_and_main(a,opt,st,fused=True)
```

```python
from common import *
K1_CNT=98304; K1_BASE=K1_CNT+1024; K1_SORT=K1_BASE+7*1024; K1_LDS=K1_SORT+6400
QSCALE=-LOG2E*(1-0.0027)
def gen_k1(a, opt):
    a(kstart('prep_kernel'))
    VL=1
    SF={0:'',1:' sc1',2:' sc0 sc1',3:' nt',4:' sc1 nt'}[opt.get('k1sf',1)]
    st=Stamper(a,opt.get('stamp',0),60)
    a(f"""s_cmp_ge_u32 s2, {NWG}
    s_cbranch_scc1 K1_exit""")
    st()
    a(f"""s_load_dwordx2 s[4:5], s[0:1], 0
    s_load_dwordx4 s[16:19], s[0:1], 16
    s_load_dwordx4 s[36:39], s[0:1], 40
    s_load_dwordx2 s[40:41], s[0:1], 72
    v_lshrrev_b32 v2, 6, v0
    v_and_b32 v{VL}, 63, v0
    v_readfirstlane_b32 s3, v2
    v_lshlrev_b32 v2, 2, v0
    v_mov_b32 v3, 0
    v_add_u32 v2, {K1_CNT}, v2
    v_cmp_gt_u32 vcc, 256, v0
    s_and_saveexec_b64 s[42:43], vcc
    ds_write_b32 v2, v3
    s_mov_b64 exec, s[42:43]
    s_waitcnt lgkmcnt(0)""")
    a("s_mov_b32 s20, s18\ns_mov_b32 s21, s19")
    srd(a,16,16,E*4); srd(a,20,20,E*4); srd(a,4,4,N*256)
    srd(a,8,38,32768,add=32768); srd(a,12,36,32768)
    srd(a,24,40,N*RS,add=WS_QH); srd(a,28,40,NCH*CH*4,add=WS_ENT); srd(a,32,40,NCH*1024,add=WS_CELL)
    a(f"""s_mul_i32 s48, s2, {CH*4}
    v_lshlrev_b32 v4, 4, v0
    v_add_u32 v5, s48, v4
    v_cmp_gt_u32 vcc, {CH//4}, v0
    s_cmp_lt_u32 s2, {NCH}
    s_cselect_b64 s[50:51], vcc, 0
    s_mov_b64 exec, s[50:51]
    s_cbranch_execz K1_noload
    buffer_load_dwordx4 v[8:11], v5, s[20:23], 0 offen
    buffer_load_dwordx4 v[12:15], v5, s[16:19], 0 offen
    K1_noload:
    s_mov_b64 exec, -1""")
    stage_xw(a,3,2,4,8,12,VL,(16,17,18,19))
    a(f"""s_barrier
    s_mov_b64 exec, s[50:51]
    s_cbranch_execz K1_norank
    s_mov_b32 s44, {M49}
    s_movk_i32 s45, {NB}
    s_movk_i32 s46, {CH}
    v_lshlrev_b32 v6, 2, v0
    v_mov_b32 v7, 1
    s_waitcnt vmcnt(6)""")
    for i in range(4):
        a(f"""v_lshrrev_b32 v16, 1, v{8+i}
        v_mul_hi_u32 v16, v16, s44
        v_mul_u32_u24 v17, s45, v16
        v_sub_u32 v17, v{8+i}, v17
        v_mad_u32_u24 v17, v{12+i}, s45, v17
        v_add_u32 v18, {i}, v6
        v_mad_u32_u24 v{12+i}, v17, s46, v18
        v_and_b32 v17, 7, v16
        v_lshrrev_b32 v16, 3, v16
        v_lshl_add_u32 v16, v17, 5, v16
        v_lshlrev_b32 v{8+i}, 2, v16
        v_add_u32 v16, {K1_CNT}, v{8+i}
        ds_add_rtn_u32 v{20+i}, v16, v7""")
    a("K1_norank:\ns_mov_b64 exec, -1"); st()
    a("s_waitcnt vmcnt(0) lgkmcnt(0)"); st()
    a("s_barrier"); st()
    a(f"""
    s_cmp_ge_u32 s3, 7
    s_cbranch_scc1 K1_noscan
    s_cmp_ge_u32 s2, {NCH}
    s_cbranch_scc1 K1_noscan
    v_lshlrev_b32 v16, 4, v{VL}
    v_add_u32 v17, {K1_CNT}, v16
    ds_read_b128 v[24:27], v17
    s_lshl_b32 s44, s3, 10
    s_add_u32 s44, s44, {K1_BASE}
    s_waitcnt lgkmcnt(0)
    v_add_u32 v29, v24, v25
    v_add_u32 v30, v29, v26
    v_add_u32 v31, v30, v27
    v_mov_b32 v32, v31
    s_nop 1
    v_add_u32_dpp v32, v32, v32 row_shr:1 row_mask:0xf bank_mask:0xf bound_ctrl:0
    s_nop 1
    v_add_u32_dpp v32, v32, v32 row_shr:2 row_mask:0xf bank_mask:0xf bound_ctrl:0
    s_nop 1
    v_add_u32_dpp v32, v32, v32 row_shr:4 row_mask:0xf bank_mask:0xf bound_ctrl:0
    s_nop 1
    v_add_u32_dpp v32, v32, v32 row_shr:8 row_mask:0xf bank_mask:0xf bound_ctrl:0
    s_nop 1
    v_add_u32_dpp v32, v32, v32 row_bcast:15 row_mask:0xa bank_mask:0xf
    s_nop 1
    v_add_u32_dpp v32, v32, v32 row_bcast:31 row_mask:0xc bank_mask:0xf
    s_nop 1
    v_sub_u32 v28, v32, v31
    v_add_u32 v29, v29, v28
    v_add_u32 v30, v30, v28
    v_add_u32 v31, v28, v24
    ; bases: v28, v31, v29, v30
    v_mov_b32 v32, v28
    v_mov_b32 v33, v31
    v_mov_b32 v34, v29
    v_mov_b32 v35, v30
    v_add_u32 v17, s44, v16
    ds_write_b128 v17, v[32:35]
    s_cmp_lg_u32 s3, 0
    s_cbranch_scc1 K1_nocell
    v_lshl_or_b32 v24, v24, 16, v32
    v_lshl_or_b32 v25, v25, 16, v33
    v_lshl_or_b32 v26, v26, 16, v34
    v_lshl_or_b32 v27, v27, 16, v35
    s_lshl_b32 s45, s2, 10
    v_add_u32 v16, s45, v16
    buffer_store_dwordx4 v[24:27], v16, s[32:35], 0 offen{SF}
    K1_nocell:
    s_mov_b64 exec, s[50:51]""")
    for i in range(4):
        a(f"v_add_u32 v16, s44, v{8+i}\nds_read_b32 v{36+i}, v16")
    a("s_waitcnt lgkmcnt(0)")
    for i in range(4):
        a(f"v_add_u32 v16, v{36+i}, v{20+i}\nv_lshlrev_b32 v16, 2, v16\nv_add_u32 v16, {K1_SORT}, v16\nds_write_b32 v16, v{12+i}")
    a("""s_mov_b64 exec, -1
    K1_noscan:""")
    DQ=48; DH=64
    st()
    gemm16(a,3,VL,DQ,DH,80,88,(16,17,18))
    st()
    a(f"""; QH store offsets: (base+g+16h)*RS + j*128 + n*4
    s_mul_i32 s44, s2, {NB}
    s_lshr_b32 s45, s3, 2
    s_add_u32 s44, s44, s45
    s_mul_i32 s44, s44, {RS}
    s_and_b32 s46, s3, 3
    s_lshl_b32 s46, s46, 7
    s_add_u32 s44, s44, s46
    v_lshrrev_b32 v16, 5, v{VL}
    v_mul_u32_u24 v16, {16*RS}, v16
    v_and_b32 v17, 31, v{VL}
    v_lshl_add_u32 v16, v17, 2, v16
    v_add_u32 v16, s44, v16
    s_mov_b32 s47, {f2u(QSCALE):#x}
    s_nop 3""")
    for r in range(13):
        a(f"v_mul_f32 v{DQ+r}, s47, v{DQ+r}")
        a(f"v_cvt_pk_bf16_f32 v{DQ+r}, v{DH+r}, v{DQ+r}")
    for r in range(13):
        off=(8*(r>>2)+(r&3))*4*RS
        if r==12:
            a(f"""s_cmp_ge_u32 s45, 2
            s_cbranch_scc1 K1_qdone
            s_mov_b32 exec_hi, 0""")
        if r and (r&3)==0: a(f"v_add_u32 v16, {5*4*RS}, v16")
        elif r: a(f"v_add_u32 v16, {4*RS}, v16")
        a(f"buffer_store_dword v{DQ+r}, v16, s[24:27], 0 offen{SF}")
    a(f"""K1_qdone:
    s_barrier
    s_mov_b64 exec, s[50:51]
    s_cbranch_execz K1_done
    v_add_u32 v16, {K1_SORT}, v4
    ds_read_b128 v[8:11], v16
    s_waitcnt lgkmcnt(0)
    buffer_store_dwordx4 v[8:11], v5, s[28:31], 0 offen{SF}""")
    a("K1_done:"); st(); st.flush(0,3,40); a("K1_exit:\ns_endpgm")
    a(kdesc('prep_kernel',112))
```

```python
from common import *
CAP=2048
L_ST=98304
L_OFFS=L_ST+40960
NSLOT=CAP+160
L_META=L_OFFS+NSLOT*4
L_TBL=L_META+NSLOT*4
L_CNT=L_TBL+2560
L_MISC=L_CNT+256
L_STATE=L_MISC+64
K2_LDS=L_STATE+1024
assert K2_LDS<=163840
V_ACC=0; V_G=16; V_Z=48; V_IDX=64; V_P=80; V_C=88; V_E=92; V_S=100; V_MSG=108; V_META=116
V_IA=118; V_MA=119; V_H16=120; V_TB=121; V_SW=122; V_SR=123; V_T0=124; V_T1=125; V_ONE=126; V_TID=127
NV=128
S_QH=8; S_EA=12; S_NT=16; S_80=17; S_M31=18; S_W=20; S_T=21; S_MX=22; S_MORE=23; S_FIRST=60
QF=' sc1'
def issue_next(a, nxt):
    G=V_G+16*nxt
    a(f"v_and_or_b32 v{V_T1}, v{V_META+nxt}, s{S_M31}, v{V_H16}")
    for i in range(16): a(f"buffer_load_dword v{G+i}, v{V_IDX+i}, {sr(S_QH,4)}, 0 offen{QF}")
    a(f"buffer_load_dwordx4 {vr(V_E+4*nxt,4)}, v{V_T1}, {sr(S_EA,4)}, 0 offen")
def read_next(a, nxt):
    for q in range(4): a(f"ds_read_b128 {vr(V_IDX+4*q,4)}, v{V_IA} offset:{32*q}")
    a(f"ds_read_b32 v{V_META+nxt}, v{V_MA}")
def tile_body(a, cur, last, opt):
    prio=opt.get('prio',0); bar=opt.get('bar',1)
    nxt=1-cur; G=V_G+16*cur; Z=V_Z
    if not last: read_next(a,nxt)
    a(f"v_and_b32 v{V_T0}, 31, v{V_META+cur}")
    a(f"v_mad_u32_u24 v{V_T1}, v{V_T0}, s{S_80}, v{V_TB}")
    a(f"v_mad_u32_u24 v{V_T0}, v{V_T0}, s{S_80}, v{V_SW}")
    a(f"ds_read_b128 {vr(V_S,4)}, v{V_T1}")
    a(f"ds_read_b128 {vr(V_S+4,4)}, v{V_T1} offset:32")
    if not last:
        a(f"v_add_u32 v{V_IA}, 128, v{V_IA}")
        a(f"v_add_u32 v{V_MA}, 128, v{V_MA}")
        a("s_waitcnt lgkmcnt(2)")
        if bar==2: a("s_barrier")
        issue_next(a,nxt)
        if bar==1: a("s_barrier")
        a("s_waitcnt vmcnt(17) lgkmcnt(0)")
    else:
        if bar: a("s_barrier")
        a("s_waitcnt vmcnt(0) lgkmcnt(0)")
    a(f"{MFMA} {vr(Z,16)}, {vr(V_E+4*cur,4)}, {vr(V_C,4)}, {vr(G,16)}")
    a(f"{MFMA} {vr(Z,16)}, {vr(V_S,4)}, {vr(V_P,4)}, {vr(Z,16)}")
    a(f"{MFMA} {vr(Z,16)}, {vr(V_S+4,4)}, {vr(V_P+4,4)}, {vr(Z,16)}")
    a(f"ds_write_b16_d16_hi v{V_T0}, v{V_ONE}")
    a(f"ds_read_b128 {vr(V_S,4)}, v{V_SR}")
    a(f"ds_read_b128 {vr(V_S+4,4)}, v{V_SR} offset:32")
    a(f"ds_write_b16 v{V_T0}, v{V_ONE}")
    a("s_nop 0")
    for i in range(16): a(f"v_lshlrev_b32 v{G+i}, 16, v{G+i}")
    if prio: a("s_setprio 1")
    for i in range(16): a(f"v_exp_f32 v{Z+i}, v{Z+i}")
    if prio: a("s_setprio 0")
    for i in range(16): a(f"v_add_f32 v{Z+i}, 1.0, v{Z+i}")
    if prio: a("s_setprio 1")
    for i in range(16): a(f"v_rcp_f32 v{Z+i}, v{Z+i}")
    if prio: a("s_setprio 0")
    for i in range(16): a(f"v_mul_f32 v{Z+i}, v{Z+i}, v{G+i}")
    for i in range(8): a(f"v_cvt_pk_bf16_f32 v{V_MSG+i}, v{Z+2*i}, v{Z+2*i+1}")
    a("s_waitcnt lgkmcnt(0)")
    a("s_nop 0")
    a(f"{MFMA} {vr(V_ACC,16)}, {vr(V_S,4)}, {vr(V_MSG,4)}, {vr(V_ACC,16)}")
    a(f"{MFMA} {vr(V_ACC,16)}, {vr(V_S+4,4)}, {vr(V_MSG+4,4)}, {vr(V_ACC,16)}")

def do_gemm(a,Z,A,B,T):
    gemm16(a,S_W,V_MSG,Z,V_ACC,A,B,(T,T+1,T+2))
    a(f"s_mov_b32 s44, {f2u(-LOG2E):#x}")
    for i in range(8): a(f"v_lshlrev_b32 v{V_S+i}, 16, v{V_S+i}\nv_mul_f32 v{V_S+i}, s44, v{V_S+i}")
    for i in range(4): a(f"v_cvt_pk_bf16_f32 v{V_C+i}, v{V_S+2*i}, v{V_S+2*i+1}")
    for r in range(16): a(f"v_mul_f32 v{Z+r}, s44, v{Z+r}")
    for r in range(8): a(f"v_cvt_pk_bf16_f32 v{V_P+r}, v{Z+2*r}, v{Z+2*r+1}")

def gen_k2(a, opt):
    bar=opt.get('bar',1)
    a(kstart('edge_kernel'))
    VL=V_MSG
    st=Stamper(a,opt.get('stamp',0),94)
    a(f"""s_cmp_ge_u32 s2, {NWG}
    s_cbranch_scc1 K2_exit""")
    st()
    a(f"""s_load_dwordx4 s[4:7], s[0:1], 0
    s_load_dwordx2 s[28:29], s[0:1], 32
    s_load_dwordx4 s[48:51], s[0:1], 48
    s_load_dwordx2 s[56:57], s[0:1], 72
    v_mov_b32 v{V_TID}, v0
    v_lshrrev_b32 v2, 6, v0
    v_and_b32 v{VL}, 63, v0
    v_readfirstlane_b32 s{S_W}, v2
    s_and_b32 s44, s2, 7
    s_lshl_b32 s44, s44, 5
    s_lshr_b32 s45, s2, 3
    s_add_u32 s44, s44, s45
    s_lshl_b32 s44, s44, 2
    v_lshrrev_b32 v3, 2, v0
    v_lshl_add_u32 v4, v3, 10, s44
    s_waitcnt lgkmcnt(0)
    s_mov_b32 s12, s6
    s_mov_b32 s13, s7""")
    srd(a,36,56,NCH*1024,add=WS_CELL)
    a("buffer_load_dword v5, v4, s[36:39], 0 offen")
    srd(a,4,4,N*256); srd(a,12,12,E*32); srd(a,24,48,32768); srd(a,28,28,32768)
    srd(a,40,48,4096,add=65536); srd(a,32,56,NCH*CH*4,add=WS_ENT); srd(a,52,50,N*256)
    a(f"""s_and_b32 s44, s{S_W}, 3
    s_lshl_b32 s44, s44, 7
    s_add_u32 s44, s44, {WS_QH-128}
    s_add_u32 s8, s56, s44
    s_addc_u32 s9, s57, 0
    s_or_b32 s9, s9, 0x40000
    s_mov_b32 s10, {N*RS+128}
    s_mov_b32 s11, 0x800000""")
    stage_xw(a,S_W,2,4,24,28,VL,(16,17,18,19))
    a(f"""v_lshrrev_b32 v16, 5, v{VL}
    v_lshlrev_b32 v{V_H16}, 4, v16
    v_and_b32 v17, 31, v{VL}
    s_and_b32 s44, s{S_W}, 3
    s_lshl_b32 s44, s44, 6
    v_lshlrev_b32 v18, 11, v16
    v_lshl_add_u32 v18, v17, 1, v18
    v_add_u32 v18, s44, v18""")
    for i in range(8): a(f"buffer_load_ushort v{V_S+i}, v18, s[40:43], 0 offen offset:{256*i}")
    a(f"""v_add_u32 v{V_TB}, {L_TBL}, v{V_H16}
    s_mul_i32 s19, s{S_W}, 2560
    s_add_u32 s19, s19, {L_ST}
    s_movk_i32 s{S_80}, 80
    s_mov_b32 s{S_M31}, 0xffffffe0
    v_mad_u32_u24 v{V_SR}, v17, s{S_80}, v{V_H16}
    v_add_u32 v{V_SR}, s19, v{V_SR}
    v_and_b32 v19, 19, v17
    v_and_b32 v20, 4, v17
    v_lshl_add_u32 v19, v20, 1, v19
    v_and_b32 v20, 8, v17
    v_lshrrev_b32 v20, 1, v20
    v_add_u32 v19, v19, v20
    v_lshlrev_b32 v19, 1, v19
    v_add_u32 v{V_SW}, s19, v19
    v_mov_b32 v{V_ONE}, 0x3f800000
    v_mov_b32 v24, 0
    v_mov_b32 v25, 0
    v_mov_b32 v26, 0
    v_mov_b32 v27, 0
    v_lshl_add_u32 v20, v{VL}, 4, s19
    ds_write_b128 v20, v[24:27]
    ds_write_b128 v20, v[24:27] offset:1024
    v_and_b32 v20, 31, v{VL}
    v_lshl_add_u32 v20, v20, 4, s19
    ds_write_b128 v20, v[24:27] offset:2048
    s_cmp_lg_u32 s{S_W}, 1
    s_cbranch_scc1 K2_notbl
    v_lshlrev_b32 v20, 4, v{VL}
    v_add_u32 v20, {L_TBL}, v20
    ds_write_b128 v20, v[24:27]
    ds_write_b128 v20, v[24:27] offset:1024
    v_lshlrev_b32 v20, 4, v17
    v_add_u32 v20, {L_TBL+2048}, v20
    ds_write_b128 v20, v[24:27]
    v_mad_u32_u24 v20, v17, s{S_80}, v19
    v_add_u32 v20, {L_TBL}, v20
    ds_write_b16_d16_hi v20, v{V_ONE}
    K2_notbl:
    s_mov_b32 s{S_FIRST}, 1
    s_waitcnt vmcnt({0 if opt.get('early',0) else 14})""")
    st()
    a(f"""s_branch K2_round1
    K2_round:
    v_mov_b32 v24, 0
    v_mov_b32 v25, 0
    v_mov_b32 v26, 0
    v_mov_b32 v27, 0
    v_lshrrev_b32 v19, 2, v{V_TID}
    v_lshlrev_b32 v20, 2, v19
    v_add_u32 v20, {L_STATE}, v20
    v_and_b32 v{VL}, 63, v{V_TID}
    ds_read_b32 v21, v20
    s_waitcnt lgkmcnt(0)
    s_barrier
    s_branch K2_round2
    K2_round1:
    v_mov_b32 v21, v5
    v_lshrrev_b32 v19, 2, v{V_TID}
    K2_round2:
    s_cmp_lg_u32 s{S_W}, 0
    s_cbranch_scc1 K2_noclr
    v_lshlrev_b32 v20, 4, v{VL}
    v_min_u32 v20, 256, v20
    v_add_u32 v20, {L_CNT}, v20
    ds_write_b128 v20, v[24:27]
    K2_noclr:
    v_lshrrev_b32 v22, 16, v21
    v_min_u32 v23, 32, v22
    v_and_b32 v21, 0xffff, v21
    v_and_b32 v28, 3, v{V_TID}
    v_mov_b32 v29, {L_MISC}
    v_cmp_eq_u32 vcc, 0, v28
    s_waitcnt lgkmcnt(0)
    s_barrier
    s_and_saveexec_b64 s[44:45], vcc
    ds_add_rtn_u32 v30, v29, v23
    s_waitcnt lgkmcnt(0)
    v_add_u32 v30, v30, v23
    v_cmp_ge_u32 vcc, {CAP}, v30
    s_nop 1
    v_cndmask_b32 v23, 0, v23, vcc
    v_sub_u32 v22, v22, v23
    v_add_u32 v30, v21, v23
    v_lshl_or_b32 v30, v22, 16, v30
    v_lshlrev_b32 v31, 2, v19
    v_add_u32 v31, {L_STATE}, v31
    ds_write_b32 v31, v30
    v_cmp_lt_u32 vcc, 0, v22
    s_and_b64 exec, exec, vcc
    v_mov_b32 v30, 1
    ds_write_b32 v29, v30 offset:4
    s_mov_b64 exec, s[44:45]
    s_nop 4
    v_mov_b32_dpp v23, v23 quad_perm:[0,0,0,0] row_mask:0xf bank_mask:0xf
    s_movk_i32 s46, {CH}
    v_mad_u32_u24 v30, v19, s46, v21
    v_lshlrev_b32 v28, 2, v28
    v_add_u32 v30, v30, v28
    v_lshlrev_b32 v30, 2, v30
    v_mul_u32_u24 v31, s46, v19
    v_sub_u32 v23, v23, v28
    v_cmp_lt_i32 s[62:63], 0, v23
    v_cmp_lt_i32 s[70:71], 16, v23
    s_mov_b64 exec, s[62:63]
    s_cbranch_execz K2_nold
    buffer_load_dwordx4 v[32:35], v30, s[32:35], 0 offen
    s_mov_b64 exec, s[70:71]
    s_cbranch_execz K2_nold
    buffer_load_dwordx4 v[36:39], v30, s[32:35], 0 offen offset:64
    K2_nold:
    s_mov_b64 exec, -1""")
    for i in range(1,4):
        a(f"v_cmp_lt_i32 s[{62+2*i}:{63+2*i}], {i}, v23")
        a(f"v_cmp_lt_i32 s[{70+2*i}:{71+2*i}], {16+i}, v23")
    if opt.get('pf',0):
        npf=opt['pf']
        a(f"""s_cmp_eq_u32 s{S_FIRST}, 0
        s_cbranch_scc1 K2_nopf
        s_lshr_b32 s44, s2, 3
        s_mul_i32 s44, s44, {npf*256*RS//4}
        s_mul_i32 s45, s{S_W}, {npf*16}
        v_add_u32 v17, s45, v{VL}
        v_lshrrev_b32 v16, 2, v17
        v_mul_u32_u24 v16, {RS}, v16
        v_and_b32 v17, 3, v17
        v_lshl_add_u32 v16, v17, 7, v16
        v_add_u32 v16, s44, v16
        s_add_u32 s44, s56, {WS_QH}
        s_addc_u32 s45, s57, 0
        s_mov_b32 s46, {N*RS}
        s_mov_b32 s47, 0x20000
        v_cmp_gt_u32 vcc, {npf*16}, v{VL}
        s_and_saveexec_b64 s[58:59], vcc
        buffer_load_dword v{V_E}, v16, s[44:47], 0 offen
        s_mov_b64 exec, s[58:59]
        K2_nopf:
        s_movk_i32 s46, {CH}""")
    if opt.get('early',0):
        a(f"s_cmp_eq_u32 s{S_FIRST}, 0\ns_cbranch_scc1 K2_noearly")
        do_gemm(a,48,64,72,16)
        a("K2_noearly:")
    a(f"""s_mov_b32 s44, {M25}
    s_mov_b32 s45, {M49}
    s_movk_i32 s47, {NB}
    s_movk_i32 s58, {RS}
    v_mov_b32 v29, 1""")
    if opt.get('pf',0):
        a(f"""s_waitcnt vmcnt(1)
        s_cmp_lg_u32 s{S_FIRST}, 0
        s_cbranch_scc1 K2_w1
        s_waitcnt vmcnt(0)
        K2_w1:""")
    else: a("s_waitcnt vmcnt(0)")
    st()
    lists_and_main(a,opt,st,fused=False)

def lists_and_main(a,opt,st,fused):
    bar=opt.get('bar',1); VL=V_MSG
    for i in range(8):
        if i==4: a("s_cmp_eq_u64 s[70:71], 0\ns_cbranch_scc1 K2_nodec2")
        e=32+i
        a(f"""v_lshrrev_b32 v16, 6, v{e}
        v_mul_hi_u32 v16, v16, s44
        v_mul_u32_u24 v17, s46, v16
        v_sub_u32 v17, v{e}, v17
        v_add_u32 v17, v17, v31
        v_lshrrev_b32 v18, 1, v16
        v_mul_hi_u32 v18, v18, s45
        v_mul_u32_u24 v20, s47, v18
        v_sub_u32 v16, v16, v20
        v_min_u32 v18, {N-1}, v18
        v_mul_u32_u24 v{40+i}, s58, v18
        v_lshrrev_b32 v20, 2, v16
        v_lshl_or_b32 v{48+i}, v17, 5, v20
        v_and_b32 v16, 3, v16
        v_lshrrev_b32 v18, 11, v18
        v_and_b32 v18, 15, v18
        v_lshl_add_u32 v16, v16, 4, v18
        v_lshlrev_b32 v{56+i}, 2, v16
        v_add_u32 v16, {L_CNT}, v{56+i}
        s_mov_b64 exec, s[{62+2*i}:{63+2*i}]
        ds_add_rtn_u32 v{64+i}, v16, v29
        s_mov_b64 exec, -1""")
    a(f"""K2_nodec2:
    s_waitcnt lgkmcnt(0)
    s_barrier""")
    if fused:
        a(f"""s_cmp_lg_u32 s{S_W}, 15
        s_cbranch_scc1 F_nofl1
        v_lshlrev_b32 v21, 4, v{VL}
        buffer_load_dwordx4 v[72:75], v21, s[40:43], 0 offen sc1
        F_nofl1:""")
    a(f"""    v_lshlrev_b32 v16, 2, v{VL}
    v_add_u32 v16, {L_CNT}, v16
    ds_read_b32 v17, v16
    v_mov_b32 v16, {L_MISC}
    ds_read_b32 v18, v16 offset:4
    s_waitcnt lgkmcnt(0)
    v_mov_b32 v20, v17
    v_readfirstlane_b32 s{S_MORE}, v18
    s_nop 0
    v_add_u32_dpp v20, v20, v20 row_shr:1 row_mask:0xf bank_mask:0xf bound_ctrl:0
    s_nop 1
    v_add_u32_dpp v20, v20, v20 row_shr:2 row_mask:0xf bank_mask:0xf bound_ctrl:0
    s_nop 1
    v_add_u32_dpp v20, v20, v20 row_shr:4 row_mask:0xf bank_mask:0xf bound_ctrl:0
    s_nop 1
    v_add_u32_dpp v20, v20, v20 row_shr:8 row_mask:0xf bank_mask:0xf bound_ctrl:0
    s_nop 1
    v_readlane_b32 s80, v20, 15
    v_readlane_b32 s81, v20, 31
    v_readlane_b32 s82, v20, 47
    v_readlane_b32 s83, v20, 63
    v_sub_u32 v20, v20, v17
    ; tiles per group s84..s87, start tile s88..s91""")
    for g in range(4): a(f"s_add_u32 s{84+g}, s{80+g}, 31\ns_lshr_b32 s{84+g}, s{84+g}, 5")
    a(f"""s_mov_b32 s88, 0
    s_mov_b32 s89, s84
    s_add_u32 s90, s89, s85
    s_add_u32 s91, s90, s86
    s_max_u32 s{S_MX}, s84, s85
    s_max_u32 s44, s86, s87
    s_max_u32 s{S_MX}, s{S_MX}, s44
    s_lshl_b32 s44, s84, 5
    s_lshl_b32 s45, s85, 5
    s_lshl_b32 s47, s86, 5
    v_mov_b32 v17, 0
    v_cmp_lt_u32 vcc, 15, v{VL}
    v_mov_b32 v16, s44
    s_nop 0
    v_cndmask_b32 v18, 0, v16, vcc
    v_add_u32 v20, v20, v18
    v_cmp_lt_u32 vcc, 31, v{VL}
    v_mov_b32 v16, s45
    s_nop 0
    v_cndmask_b32 v18, 0, v16, vcc
    v_add_u32 v20, v20, v18
    v_cmp_lt_u32 vcc, 47, v{VL}
    v_mov_b32 v16, s47
    s_nop 0
    v_cndmask_b32 v18, 0, v16, vcc
    v_add_u32 v20, v20, v18
    ; v20 = base position of key (lane)""")
    for i in range(8):
        if i==4: a("s_cmp_eq_u64 s[70:71], 0\ns_cbranch_scc1 K2_nopos2a")
        a(f"ds_bpermute_b32 v{56+i}, v{56+i}, v20")
    a("K2_nopos2a:\ns_waitcnt lgkmcnt(0)")
    for i in range(8):
        if i==4: a("s_cmp_eq_u64 s[70:71], 0\ns_cbranch_scc1 K2_nopos2")
        a(f"""v_add_u32 v16, v{56+i}, v{64+i}
        v_and_b32 v17, 4, v16
        v_lshlrev_b32 v17, 5, v17
        v_sub_u32 v17, 128, v17
        v_add_u32 v17, v17, v{40+i}
        v_lshlrev_b32 v16, 2, v16
        v_add_u32 v16, {L_OFFS}, v16
        s_mov_b64 exec, s[{62+2*i}:{63+2*i}]
        ds_write_b32 v16, v17
        ds_write_b32 v16, v{48+i} offset:{L_META-L_OFFS}
        s_mov_b64 exec, -1""")
    a(f"""K2_nopos2:
    s_lshr_b32 s47, s{S_W}, 2
    s_mov_b32 s44, s80
    s_mov_b32 s{S_NT}, s84
    s_mov_b32 s45, s88""")
    for g in range(1,4):
        a(f"""s_cmp_eq_u32 s47, {g}
        s_cselect_b32 s44, s{80+g}, s44
        s_cselect_b32 s{S_NT}, s{84+g}, s{S_NT}
        s_cselect_b32 s45, s{88+g}, s45""")
    a(f"""; padding entries (all four waves of the group write the same values)
    v_and_b32 v16, 31, v{VL}
    s_and_b32 s58, s44, 31
    s_cbranch_scc0 K2_nopad
    v_cmp_le_u32 vcc, s58, v16
    s_add_u32 s59, s45, s{S_NT}
    s_sub_u32 s59, s59, 1
    s_lshl_b32 s59, s59, 7
    s_add_u32 s59, s59, {L_OFFS}
    v_and_b32 v17, 4, v16
    v_lshlrev_b32 v17, 5, v17
    v_sub_u32 v17, {(N-32)*RS+128}, v17
    v_mul_u32_u24 v18, {RS}, v16
    v_add_u32 v17, v17, v18
    v_lshl_add_u32 v18, v16, 2, s59
    v_mov_b32 v19, 31
    s_and_saveexec_b64 s[62:63], vcc
    ds_write_b32 v18, v17
    ds_write_b32 v18, v19 offset:{L_META-L_OFFS}
    s_mov_b64 exec, s[62:63]
    K2_nopad:
    s_lshl_b32 s45, s45, 7
    s_add_u32 s45, s45, {L_OFFS}
    v_add_u32 v{V_IA}, s45, v{V_H16}
    s_add_u32 s45, s45, {L_META-L_OFFS}
    v_lshl_add_u32 v{V_MA}, v16, 2, s45""")
    if fused:
        a(f"""s_cmp_lg_u32 s{S_W}, 15
        s_cbranch_scc1 F_flag_ok
        s_movk_i32 s44, 20000
        F_flag_poll:
        s_waitcnt vmcnt(0)
        v_cmp_eq_u32 vcc, s61, v72
        v_cmp_eq_u32 s[62:63], s61, v73
        v_cmp_eq_u32 s[64:65], s61, v74
        v_cmp_eq_u32 s[66:67], s61, v75
        s_and_b64 vcc, vcc, s[62:63]
        s_and_b64 s[64:65], s[64:65], s[66:67]
        s_and_b64 vcc, vcc, s[64:65]
        s_cmp_eq_u64 vcc, -1
        s_cbranch_scc1 F_flag_ok
        s_sub_u32 s44, s44, 1
        s_cbranch_scc1 F_flag_ok
        s_sleep 1
        buffer_load_dwordx4 v[72:75], v21, s[40:43], 0 offen sc1
        s_branch F_flag_poll
        F_flag_ok:""")
    a("s_waitcnt lgkmcnt(0)\ns_barrier")
    st(6)
    a(f"""s_sub_u32 s{S_MX}, s{S_MX}, s{S_NT}
    s_cmp_eq_u32 s{S_NT}, 0
    s_cbranch_scc1 K2_nofirst""")
    read_next(a,0)
    a(f"v_add_u32 v{V_IA}, 128, v{V_IA}\nv_add_u32 v{V_MA}, 128, v{V_MA}\ns_waitcnt lgkmcnt(0)")
    issue_next(a,0)
    a(f"""K2_nofirst:
    s_cmp_eq_u32 s{S_FIRST}, 0
    s_cbranch_scc1 K2_nogemm""")
    if not opt.get('early',0): do_gemm(a,V_Z,V_IDX,V_G+16,V_IDX+8)
    st(7)
    a(f"""s_mov_b32 s{S_FIRST}, 0
    K2_nogemm:
    s_cmp_eq_u32 s{S_NT}, 0
    s_cbranch_scc1 K2_tiles_done
    s_cmp_eq_u32 s{S_NT}, 1
    s_cbranch_scc1 K2_last0
    .p2align 3
    K2_loop:""")
    tile_body(a,0,False,opt)
    a(f"s_cmp_eq_u32 s{S_NT}, 2\ns_cbranch_scc1 K2_last1")
    tile_body(a,1,False,opt)
    a(f"""s_sub_u32 s{S_NT}, s{S_NT}, 2
    s_cmp_gt_u32 s{S_NT}, 1
    s_cbranch_scc1 K2_loop
    K2_last0:""")
    tile_body(a,0,True,opt)
    a("s_branch K2_tiles_done\nK2_last1:")
    tile_body(a,1,True,opt)
    a("K2_tiles_done:")
    st(8)
    if bar:
        a(f"""K2_xbar:
        s_cmp_eq_u32 s{S_MX}, 0
        s_cbranch_scc1 K2_xbar_done
        s_barrier
        s_sub_u32 s{S_MX}, s{S_MX}, 1
        s_branch K2_xbar
        K2_xbar_done:""")
    a(f"""s_cmp_lg_u32 s{S_MORE}, 0
    s_cbranch_scc1 K2_round
    s_mul_i32 s44, s2, {NB}
    s_lshr_b32 s45, s{S_W}, 2
    s_add_u32 s44, s44, s45
    s_lshl_b32 s44, s44, 8
    s_and_b32 s46, s{S_W}, 3
    s_lshl_b32 s46, s46, 6
    s_add_u32 s44, s44, s46
    v_and_b32 v17, 31, v{V_TID}
    v_lshlrev_b32 v16, 8, v{V_H16}
    v_lshl_add_u32 v16, v17, 1, v16
    v_add_u32 v16, s44, v16
    s_mov_b32 s47, {f2u(-LOG2E):#x}
    s_nop 4""")
    for r in range(13): a(f"v_mul_f32 v{V_Z+r}, s47, v{V_ACC+r}")
    for r in range(13): a(f"v_exp_f32 v{V_Z+r}, v{V_Z+r}")
    for r in range(13): a(f"v_add_f32 v{V_Z+r}, 1.0, v{V_Z+r}")
    for r in range(13): a(f"v_rcp_f32 v{V_Z+r}, v{V_Z+r}")
    for r in range(13): a(f"v_mul_f32 v{V_Z+r}, v{V_Z+r}, v{V_ACC+r}")
    for r in range(13): a(f"v_cvt_pk_bf16_f32 v{V_Z+r}, v{V_Z+r}, v{V_Z+r}")
    for r in range(13):
        if r==12:
            a(f"""s_cmp_ge_u32 s45, 2
            s_cbranch_scc1 K2_done
            s_mov_b32 exec_hi, 0""")
        if r and (r&3)==0: a(f"v_add_u32 v16, 8192, v16")
        a(f"buffer_store_short v{V_Z+r}, v16, s[52:55], 0 offen offset:{(r&3)*1024}")
    a("K2_done:"); st.flush(0 if fused else 1,S_W,56); a("K2_exit:\ns_endpgm")
    a(kdesc('gather_scatter__edge_featured_mpnn_egc__graph_kernel' if fused else 'edge_kernel',NV))
```

```python
import sys
from common import *
from fk import *
opt={k:int(v) for k,v in (kv.split('=') for kv in sys.argv[1:])}
a=Asm()
for l in open('gather_scatter__edge_featured_mpnn_egc__graph.s.ref').read().split('\n'):
    if l.startswith('; Override'): break
    a(l)
if opt.get('list',0): a(f"; @launch kernel={KNAME} grid=({NWG},1,1) block=(1024,1,1) lds={K2_LDS}")
else: a(f"; @launch grid=({NWG},1,1) block=(1024,1,1) lds={K2_LDS}")
a('.amdgcn_target "amdgcn-amd-amdhsa--gfx950"')
gen_fused(a,opt)
print(a.text())
```

```python
import os
os.environ['L_W']='4096'
from common import *
KNAME='gather_scatter__edge_featured_mpnn_egc__graph_kernel'
QSCALE=-LOG2E*(1-0.0027)
CAP=1856
L_TBL=0; L_CNT=2560; L_MISC=L_CNT+256; L_STATE=L_MISC+64
assert L_STATE+1024<=L_W
STW=2080; PADROW=25
L_ST=L_XS+32768
L_OFFS=L_ST+16*STW+512
NSLOT=CAP+160
L_META=L_OFFS+NSLOT*4
F_LDS=L_META+NSLOT*4
assert F_LDS<=163840 and (CAP+128)//32<=64
B_CNT=L_ST; B_BASE=B_CNT+1024; B_SORT=B_BASE+7*1024
assert B_SORT+CH*8<=L_OFFS
SPIN=20000
M_TICKET=0; M_MORE=4
V_ACC=0; V_G=16; V_Z=48; V_IDX=64; V_P=80; V_C=88; V_E=92; V_I4=96; V_S=100; V_MSG=108; V_META=116
V_H16=118; V_SW=119; V_SR=120; V_ONE=121; V_ML=122; V_EL=123; V_T0=126; V_T1=127
NV=128
S_QH=8; S_EA=12; S_80=17; S_M31=18; S_W=20; S_W8=21; S_MORE=23; S_FIRST=60; S_NONCE=61
S_STEP=62; S_NSTEP=63; S_NT=64; S_PA=65; S_ERB=66; S_EWB=67; S_J=68; S_P0=69
V_CR=110; VL=V_MSG; VT=V_MSG+1

def lane_tid(a):
    a(f"""v_mbcnt_lo_u32_b32 v{VL}, -1, 0
    v_mbcnt_hi_u32_b32 v{VL}, -1, v{VL}
    v_lshl_add_u32 v{VT}, s{S_W}, 6, v{VL}""")
def lds_arrive(a, off, vt, sdst=None):
    a(f"v_mov_b32 v{vt}, 0\nv_mov_b32 v{vt+1}, 1\ns_mov_b64 exec, 1")
    if sdst is None: a(f"ds_add_u32 v{vt}, v{vt+1} offset:{L_MISC+off}\ns_mov_b64 exec, -1")
    else: a(f"ds_add_rtn_u32 v{vt+1}, v{vt}, v{vt+1} offset:{L_MISC+off}\ns_mov_b64 exec, -1\ns_waitcnt lgkmcnt(0)\nv_readfirstlane_b32 s{sdst}, v{vt+1}")
def lds_wait(a, off, target, vt, lab, nap=0):
    a(f"""v_mov_b32 v{vt}, 0
    {lab}:
    {'s_sleep 1' if nap else ''}
    ds_read_b32 v{vt+1}, v{vt} offset:{L_MISC+off}
    s_waitcnt lgkmcnt(0)
    v_readfirstlane_b32 s44, v{vt+1}
    s_cmp_lt_u32 s44, {target}
    s_cbranch_scc1 {lab}""")
def scan_row(a, v):
    for sh in (1,2,4,8): a(f"s_nop 1\nv_add_u32_dpp v{v}, v{v}, v{v} row_shr:{sh} row_mask:0xf bank_mask:0xf bound_ctrl:0")

def c_loads(a):
    srd(a,84,48,4096,add=65536)
    a(f"""v_and_b32 v0, 31, v{VL}
    s_and_b32 s44, s{S_W}, 3
    s_lshl_b32 s44, s44, 6
    v_lshlrev_b32 v1, 7, v{V_H16}
    v_lshl_add_u32 v1, v0, 1, v1
    v_add_u32 v1, s44, v1""")
    for i in range(8): a(f"buffer_load_ushort v{V_CR+i}, v1, s[84:87], 0 offen offset:{256*i}")
PROF=[0]
def tick(a,k):
    if not PROF[0]: return
    a(f"s_memtime s[92:93]\ns_waitcnt lgkmcnt(0)\ns_sub_u32 s91, s92, s90\ns_add_u32 s{95+k}, s{95+k}, s91\ns_mov_b32 s90, s92")
def e_slot(a, tt, dst):
    a(f"s_lshl_b32 s45, s{tt}, 10\ns_add_u32 s{dst}, s{S_EWB}, s45")
def fetch_e(a, ahead, lab):
    a(f"""s_cmp_lg_u32 s{S_J}, 0
    s_cbranch_scc1 {lab}
    s_add_u32 s46, s{S_STEP}, {ahead}
    s_cmp_ge_u32 s46, s{S_NT}
    s_cbranch_scc1 {lab}
    s_lshl_b32 s44, s46, 7
    s_add_u32 s44, s44, s{S_P0}
    v_add_u32 v{V_T1}, s44, v{V_ML}
    ds_read_b32 v{V_T0}, v{V_T1}""")
    e_slot(a,46,44)
    a(f"""s_mov_b32 m0, s44
    s_waitcnt lgkmcnt(0)
    v_and_or_b32 v{V_T1}, v{V_T0}, s{S_M31}, v{V_H16}
    buffer_load_dwordx4 v{V_T1}, {sr(S_EA,4)}, 0 offen lds
    {lab}:""")
def fetch_g(a, par, ahead, lab):
    G=V_G+16*par
    a(f"""s_add_u32 s46, s{S_STEP}, {ahead}
    s_cmp_ge_u32 s46, s{S_NT}
    s_cbranch_scc1 {lab}
    v_add_u32 v{V_T1}, s{S_PA}, v{V_H16}""")
    for q in range(4): a(f"ds_read_b128 {vr(V_IDX+4*q,4)}, v{V_T1} offset:{32*q}")
    a(f"""v_add_u32 v{V_T1}, s{S_PA}, v{V_ML}
    ds_read_b32 v{V_META+par}, v{V_T1}
    s_add_u32 s{S_PA}, s{S_PA}, 128""")
    for q in range(4):
        a(f"s_waitcnt lgkmcnt({4-q})")
        for i in range(4*q,4*q+4): a(f"buffer_load_dword v{G+i}, v{V_IDX+i}, {sr(S_QH,4)}, 0 offen{QF[0]}")
    a(f"{lab}:")
QF=[' sc1']
def step_body(a, par, opt):
    prio=opt.get('prio',0); G=V_G+16*par; Z=V_Z; u=str(par)
    BP=opt.get('bp',4); ED=BP+2
    a("s_waitcnt lgkmcnt(0)")
    if BP==1: a("s_barrier")
    elif BP==2:
        if par==0: a("s_barrier")
        if opt.get('pp',1): a(f"s_setprio {1-par}")
    else:
        b='s_barrier' if par==0 else ''
        a(f"""s_and_b32 s44, s{S_STEP}, 2
        s_cbranch_scc1 H_p1{u}
        {b}
        s_setprio {3-par}
        s_branch H_p2{u}
        H_p1{u}:
        s_setprio {1-par}
        H_p2{u}:""")
    tick(a,0)
    a(f"""s_cmp_ge_u32 s{S_STEP}, s{S_NT}
    s_cbranch_scc1 H_idle{u}
    v_and_b32 v{V_T0}, 31, v{V_META+par}
    v_mad_u32_u24 v{V_T1}, v{V_T0}, s{S_80}, v{V_H16}
    v_mad_u32_u24 v{V_T0}, v{V_T0}, s{S_80}, v{V_SW}
    ds_read_b128 {vr(V_S,4)}, v{V_T1} offset:{L_TBL}
    ds_read_b128 {vr(V_S+4,4)}, v{V_T1} offset:{L_TBL+32}""")
    e_slot(a,S_STEP,44)
    a(f"""v_add_u32 v{V_T1}, s44, v{V_EL}
    ds_read_b128 {vr(V_E,4)}, v{V_T1}
    s_waitcnt vmcnt(17)
    s_add_u32 s44, s{S_STEP}, {ED-1}
    s_cmp_lt_u32 s44, s{S_NT}
    s_cselect_b32 s45, s{S_J}, 1
    s_cmp_eq_u32 s45, 0
    s_cbranch_scc1 H_go{u}
    s_waitcnt vmcnt(16)
    s_add_u32 s44, s{S_STEP}, 1
    s_cmp_lt_u32 s44, s{S_NT}
    s_cbranch_scc1 H_go{u}
    s_waitcnt vmcnt(0)
    H_go{u}:
    s_waitcnt lgkmcnt(0)""")
    tick(a,1)
    a(f"{MFMA} {vr(Z,16)}, {vr(V_E,4)}, {vr(V_C,4)}, {vr(G,16)}")
    a(f"{MFMA} {vr(Z,16)}, {vr(V_S,4)}, {vr(V_P,4)}, {vr(Z,16)}")
    a(f"{MFMA} {vr(Z,16)}, {vr(V_S+4,4)}, {vr(V_P+4,4)}, {vr(Z,16)}")
    a(f"ds_write_b16_d16_hi v{V_T0}, v{V_ONE}")
    a(f"ds_read_b128 {vr(V_S,4)}, v{V_SR}")
    a(f"ds_read_b128 {vr(V_S+4,4)}, v{V_SR} offset:32")
    a(f"ds_write_b16 v{V_T0}, v{V_ONE}")
    a("s_nop 0")
    for i in range(16): a(f"v_lshlrev_b32 v{G+i}, 16, v{G+i}")
    if prio&1: a("s_setprio 1")
    for i in range(16): a(f"v_exp_f32 v{Z+i}, v{Z+i}")
    if prio&1: a("s_setprio 0")
    for i in range(16): a(f"v_add_f32 v{Z+i}, 1.0, v{Z+i}")
    if prio&1: a("s_setprio 1")
    for i in range(16): a(f"v_rcp_f32 v{Z+i}, v{Z+i}")
    if prio&1: a("s_setprio 0")
    for i in range(16): a(f"v_mul_f32 v{Z+i}, v{Z+i}, v{G+i}")
    for i in range(8): a(f"v_cvt_pk_bf16_f32 v{V_MSG+i}, v{Z+2*i}, v{Z+2*i+1}")
    a("s_waitcnt lgkmcnt(0)")
    a("s_nop 0")
    a(f"{MFMA} {vr(V_ACC,16)}, {vr(V_S,4)}, {vr(V_MSG,4)}, {vr(V_ACC,16)}")
    a(f"{MFMA} {vr(V_ACC,16)}, {vr(V_S+4,4)}, {vr(V_MSG+4,4)}, {vr(V_ACC,16)}")
    tick(a,2)
    fetch_e(a,ED,f"H_fe{u}")
    tick(a,3)
    fetch_g(a,par,2,f"H_fg{u}")
    tick(a,4)
    a(f"""H_idle{u}:
    s_add_u32 s{S_STEP}, s{S_STEP}, 1
    s_cmp_ge_u32 s{S_STEP}, s{S_NSTEP}""")

def main_loop(a,opt,st):
    QF[0]=['',' sc1'][opt.get('qf',1)]
    a(f"s_mov_b32 s{S_STEP}, 0")
    if opt.get('prof',0):
        PROF[0]=1
        a("s_memtime s[92:93]\ns_waitcnt lgkmcnt(0)\ns_mov_b32 s90, s92\ns_mov_b32 s79, s92")
        for k in range(6): a(f"s_mov_b32 s{95+k}, 1")
    BP=opt.get('bp',4); ED=BP+2
    for k in range(ED-1): fetch_e(a,k,f"H_pe{k}")
    fetch_g(a,0,0,"H_pg0")
    fetch_e(a,ED-1,"H_pel")
    fetch_g(a,1,1,"H_pg1")
    st(7)
    a(f"""s_mov_b32 s{S_FIRST}, 0
    s_waitcnt vmcnt(33)
    s_cmp_ge_u32 s{S_NT}, {ED}
    s_cbranch_scc1 H_loop
    s_waitcnt vmcnt(0)
    .p2align 3
    H_loop:""")
    step_body(a,0,opt)
    a("s_cbranch_scc1 H_done")
    step_body(a,1,opt)
    a("s_cbranch_scc0 H_loop\nH_done:")
    if opt.get('prof',0): a("s_sub_u32 s100, s90, s79")
    st(8)
def pu(a,regs):
    ta,tb,tc,D,A,B=regs
    a(f"s_lshr_b32 s46, s{S_W}, 2\ns_and_b32 s47, s{S_W}, 3")
    gemm_addr(a,46,47,VL,ta,tb,tc)
    gemm_core(a,ta,tb,tc,D,V_ACC,A,B)
    a(f"s_mov_b32 s44, {f2u(-LOG2E):#x}")
    for i in range(8): a(f"v_lshlrev_b32 v{V_CR+i}, 16, v{V_CR+i}\nv_mul_f32 v{V_CR+i}, s44, v{V_CR+i}")
    for i in range(4): a(f"v_cvt_pk_bf16_f32 v{V_C+i}, v{V_CR+2*i}, v{V_CR+2*i+1}")
    for r in range(16): a(f"v_mul_f32 v{D+r}, s44, v{D+r}")
    for r in range(8): a(f"v_cvt_pk_bf16_f32 v{V_P+r}, v{D+2*r}, v{D+2*r+1}")

def prologue(a, opt, st):
    xl=opt.get('xlate',1)
    a(f"""s_load_dwordx4 s[4:7], s[0:1], 0
    s_load_dwordx4 s[64:67], s[0:1], 16
    s_load_dwordx4 s[28:31], s[0:1], 32
    s_load_dwordx4 s[48:51], s[0:1], 48
    s_load_dwordx4 s[80:83], s[0:1], 64
    s_memrealtime s[58:59]
    v_lshrrev_b32 v2, 6, v0
    v_and_b32 v{VL}, 63, v0
    v_readfirstlane_b32 s{S_W}, v2
    v_mov_b32 v{VT}, v0
    s_mul_i32 s45, s2, {CH*4}
    v_lshlrev_b32 v4, 4, v0
    v_add_u32 v5, s45, v4
    v_cmp_gt_u32 vcc, {CH//4}, v0
    s_cmp_lt_u32 s2, {NCH}
    s_cselect_b64 s[78:79], vcc, 0
    s_waitcnt lgkmcnt(0)
    s_mov_b32 s68, s66
    s_mov_b32 s69, s67""")
    srd(a,64,64,E*4); srd(a,68,68,E*4)
    a(f"""s_mov_b64 exec, s[78:79]
    s_cbranch_execz F_noload
    buffer_load_dwordx4 v[8:11], v5, s[68:71], 0 offen
    buffer_load_dwordx4 v[12:15], v5, s[64:67], 0 offen
    F_noload:
    s_mov_b64 exec, -1
    s_mov_b32 s12, s6
    s_mov_b32 s13, s7
    s_mov_b32 s56, s82
    s_mov_b32 s57, s83
    s_mov_b32 s76, s28
    s_mov_b32 s77, s29""")
    srd(a,80,80,256)
    a(f"""s_or_b32 s58, s58, 1
    v_mov_b32 v6, 0
    v_mov_b32 v7, s58
    s_add_u32 s45, s2, s{S_W}
    s_cmp_lg_u32 s45, 0
    s_cbranch_scc1 F_nononce
    s_mov_b64 exec, 1
    buffer_store_dword v7, v6, s[80:83], 0 offen sc1
    s_mov_b64 exec, -1
    F_nononce:""")
    srd(a,4,4,N*256); srd(a,24,48,32768,add=32768); srd(a,28,30,32768)
    stage_x(a,S_W,2,4,VL,(16,17,18,19))
    stage_w(a,S_W,24,28,VL,(16,17,18))
    a("v_mov_b32 v2, v18")
    srd(a,12,12,E*32); srd(a,32,56,NCH*CH*8,add=WS_ENT); srd(a,36,56,NWG*2048,add=WS_CELL); srd(a,52,50,N*256)
    srd(a,72,56,N*RS,add=WS_QH)
    a(f"""s_and_b32 s46, s{S_W}, 3
    s_lshl_b32 s44, s46, 7
    s_add_u32 s44, s44, {WS_QH-128}
    s_add_u32 s8, s56, s44
    s_addc_u32 s9, s57, 0
    s_or_b32 s9, s9, 0x40000
    s_mov_b32 s10, {N*RS+128}
    s_mov_b32 s11, 0x800000
    v_lshrrev_b32 v16, 5, v{VL}
    v_lshlrev_b32 v{V_H16}, 4, v16
    v_and_b32 v17, 31, v{VL}
    """)
    a(f"""s_mul_i32 s19, s{S_W}, {STW}
    s_add_u32 s19, s19, {L_ST}
    s_movk_i32 s{S_80}, 80
    s_mov_b32 s{S_M31}, 0xffffffe0
    v_mad_u32_u24 v{V_SR}, v17, s{S_80}, v{V_H16}
    v_add_u32 v{V_SR}, s19, v{V_SR}
    v_and_b32 v19, 19, v17
    v_and_b32 v20, 4, v17
    v_lshl_add_u32 v19, v20, 1, v19
    v_and_b32 v20, 8, v17
    v_lshrrev_b32 v20, 1, v20
    v_add_u32 v19, v19, v20
    v_lshlrev_b32 v19, 1, v19
    v_add_u32 v{V_SW}, s19, v19
    v_mov_b32 v{V_ONE}, 0x3f800000
    v_lshlrev_b32 v{V_ML}, 2, v17
    v_add_u32 v{V_ML}, {L_META-L_OFFS}, v{V_ML}
    v_lshlrev_b32 v{V_EL}, 4, v{VL}
    v_mov_b32 v24, 0
    v_mov_b32 v25, 0
    v_mov_b32 v26, 0
    v_mov_b32 v27, 0
    s_cmp_lg_u32 s{S_W}, 7
    s_cbranch_scc1 F_noinit
    v_lshlrev_b32 v20, 4, v{VL}
    v_add_u32 v21, {B_CNT}, v20
    ds_write_b128 v21, v[24:27]
    ds_write_b128 v20, v[24:27]
    ds_write_b128 v20, v[24:27] offset:1024
    ds_write_b128 v20, v[24:27] offset:2048
    v_mad_u32_u24 v20, v17, s{S_80}, v19
    ds_write_b16_d16_hi v20, v{V_ONE} offset:{L_TBL}
    s_waitcnt lgkmcnt(0)
    F_noinit:
    s_mov_b32 s{S_FIRST}, 1
    s_barrier""")
    a(f"""s_mov_b64 exec, s[78:79]
    s_cbranch_execz F_norank
    s_mov_b32 s44, {M49}
    s_movk_i32 s45, {NB}
    s_movk_i32 s46, {RS}
    s_mul_i32 s47, s2, {CH}
    v_lshl_add_u32 v3, v0, 2, s47
    v_lshlrev_b32 v3, 5, v3
    v_mov_b32 v7, 1
    s_waitcnt vmcnt(6)""")
    for i in range(4):
        a(f"""v_lshrrev_b32 v16, 1, v{8+i}
        v_mul_hi_u32 v16, v16, s44
        v_mul_u32_u24 v17, s45, v16
        v_sub_u32 v17, v{8+i}, v17
        v_and_b32 v18, 7, v16
        v_bfe_u32 v16, v16, 3, 5
        v_lshl_add_u32 v16, v18, 5, v16
        v_lshlrev_b32 v{8+i}, 2, v16
        v_add_u32 v16, {B_CNT}, v{8+i}
        ds_add_rtn_u32 v{20+i}, v16, v7
        v_lshrrev_b32 v16, 2, v17
        v_add3_u32 v{41+2*i}, v3, v16, {32*i if i<3 else 64}
        v_and_b32 v17, 3, v17
        v_bfe_u32 v16, v{12+i}, 11, 4
        v_lshl_add_u32 v16, v17, 4, v16
        v_mul_u32_u24 v17, s46, v{12+i}
        v_lshl_or_b32 v{40+2*i}, v16, 26, v17""")
        if i==3: a(f"v_add_u32 v{41+2*i}, 32, v{41+2*i}")
    a(f"""F_norank:
    s_mov_b64 exec, -1
    v_mov_b32 v6, 0
    s_waitcnt vmcnt(0) lgkmcnt(0)""")
    st(1)
    a("s_barrier\nbuffer_load_dword v7, v6, s[80:83], 0 offen sc1")
    srd(a,24,48,32768); srd(a,28,76,32768)
    for k in range(4): a(f"buffer_load_dwordx4 {vr(88+4*k,4)}, v2, s[{24+4*(k>>1)}:{27+4*(k>>1)}], 0 offen offset:{1024*(k&1)}")
    c_loads(a)
    a(f"""    s_cmp_ge_u32 s{S_W}, 7
    s_cbranch_scc1 F_noscan
    v_lshlrev_b32 v16, 4, v{VL}
    v_add_u32 v17, {B_CNT}, v16
    ds_read_b128 v[24:27], v17
    s_lshl_b32 s44, s{S_W}, 10
    s_add_u32 s44, s44, {B_BASE}
    s_waitcnt lgkmcnt(0)
    v_add_u32 v29, v24, v25
    v_add_u32 v30, v29, v26
    v_add_u32 v31, v30, v27
    v_mov_b32 v32, v31""")
    scan_row(a,32)
    a(f"""s_nop 1
    v_add_u32_dpp v32, v32, v32 row_bcast:15 row_mask:0xa bank_mask:0xf
    s_nop 1
    v_add_u32_dpp v32, v32, v32 row_bcast:31 row_mask:0xc bank_mask:0xf
    s_nop 1
    v_sub_u32 v32, v32, v31
    v_add_u32 v33, v32, v24
    v_add_u32 v34, v32, v29
    v_add_u32 v35, v32, v30
    v_add_u32 v17, s44, v16
    ds_write_b128 v17, v[32:35]
    v_lshl_or_b32 v80, v24, 16, v32
    v_lshl_or_b32 v82, v25, 16, v33
    v_lshl_or_b32 v84, v26, 16, v34
    v_lshl_or_b32 v86, v27, 16, v35
    s_mov_b64 exec, s[78:79]""")
    for i in range(4):
        a(f"v_add_u32 v16, s44, v{8+i}\nds_read_b32 v{36+i}, v16")
    a("s_waitcnt lgkmcnt(0)")
    for i in range(4):
        a(f"v_add_u32 v16, v{36+i}, v{20+i}\nv_lshlrev_b32 v16, 3, v16\nv_add_u32 v16, {B_SORT}, v16\nds_write_b64 v16, v[{40+2*i}:{41+2*i}]")
    a(f"""s_mov_b64 exec, -1
    F_noscan:
    s_lshr_b32 s46, s{S_W}, 2
    s_and_b32 s47, s{S_W}, 3""")
    gemm_addr(a,46,47,VL,8,9,10)
    Q=48; H=64
    gemm_core(a,8,9,10,Q,H,24,32)
    st(2)
    a(f"""s_movk_i32 s44, {SPIN}
    F_nonce_poll:
    s_waitcnt vmcnt(0)
    v_readfirstlane_b32 s{S_NONCE}, v7
    s_sub_u32 s44, s44, 1
    s_cbranch_scc1 F_nonce_ok
    s_cmp_lg_u32 s{S_NONCE}, 0
    s_cbranch_scc1 F_nonce_ok
    buffer_load_dword v7, v6, s[80:83], 0 offen sc1
    s_branch F_nonce_poll
    F_nonce_ok:
    s_mul_i32 s44, s2, {NB}
    s_add_u32 s44, s44, s46
    s_mul_i32 s44, s44, {RS}
    s_lshl_b32 s45, s47, 7
    s_add_u32 s44, s44, s45
    v_mul_u32_u24 v11, {RS}, v{V_H16}
    v_and_b32 v12, 31, v{VL}
    v_lshl_add_u32 v11, v12, 2, v11
    v_add_u32 v11, s44, v11
    s_mov_b32 s45, {f2u(QSCALE):#x}
    s_nop 1""")
    for r in range(13):
        a(f"v_mul_f32 v{Q+r}, s45, v{Q+r}")
        a(f"v_cvt_pk_bf16_f32 v{Q+r}, v{H+r}, v{Q+r}")
        if r and (r&3)==0: a(f"v_add_u32 v11, {5*4*RS}, v11")
        elif r: a(f"v_add_u32 v11, {4*RS}, v11")
        if r==12: a(f"s_cmp_ge_u32 s46, 2\ns_cbranch_scc1 F_q\ns_mov_b32 exec_hi, 0")
        a(f"buffer_store_dword v{Q+r}, v11, s[72:75], 0 offen sc1")
    a(f"""F_q:
    s_mov_b64 exec, -1
    s_barrier
    s_lshl_b32 s44, s{S_W}, 11
    s_add_u32 s44, s44, {L_W}
    v_lshl_add_u32 v16, v{VL}, 4, s44
    ds_write_b128 v16, v[88:91]
    ds_write_b128 v16, v[92:95] offset:1024
    ds_write_b128 v16, v[96:99] offset:32768
    ds_write_b128 v16, v[100:103] offset:33792
    v_cmp_gt_u32 vcc, {CH//2}, v{VT}
    s_cmp_lt_u32 s2, {NCH}
    s_cselect_b64 s[46:47], vcc, 0
    s_mov_b64 exec, s[46:47]
    s_cbranch_execz F_noent
    v_add_u32 v16, {B_SORT}, v4
    ds_read_b128 v[8:11], v16
    s_mul_i32 s45, s2, {CH*8}
    v_add_u32 v5, s45, v4
    s_waitcnt lgkmcnt(0)
    buffer_store_dwordx4 v[8:11], v5, s[32:35], 0 offen sc1
    F_noent:
    s_mov_b64 exec, -1
    s_waitcnt vmcnt(0) lgkmcnt(0)""")
    st(3)
    a(f"""s_barrier
    s_cmp_lg_u32 s{S_W}, 0
    s_cbranch_scc1 F_nocell
    v_mov_b32 v81, s{S_NONCE}
    v_mov_b32 v83, s{S_NONCE}
    v_mov_b32 v85, s{S_NONCE}
    v_mov_b32 v87, s{S_NONCE}
    s_lshl_b32 s45, s2, 11
    v_lshl_add_u32 v16, v{VL}, 5, s45
    buffer_store_dwordx4 v[80:83], v16, s[36:39], 0 offen sc1
    buffer_store_dwordx4 v[84:87], v16, s[36:39], 0 offen offset:16 sc1
    F_nocell:
    v_mov_b32 v24, 0
    v_mov_b32 v25, 0
    v_mov_b32 v26, 0
    v_mov_b32 v27, 0
    v_add_u32 v16, {L_ST}, v4
    ds_write_b128 v16, v[24:27]
    ds_write_b128 v16, v[24:27] offset:16384
    v_and_b32 v16, 0x3f0, v4
    v_add_u32 v16, {L_ST+32768}, v16
    ds_write_b128 v16, v[24:27]""")
    if opt.get('pufirst',1): pu(a,(16,17,18,64,24,32))
    a(f"""s_and_b32 s44, s2, 7
    s_lshl_b32 s44, s44, 5
    s_lshr_b32 s45, s2, 3
    s_add_u32 s44, s44, s45
    s_lshl_b32 s44, s44, 3
    v_lshrrev_b32 v19, 2, v{VT}
    v_lshl_add_u32 v18, v19, 11, s44
    """)
    if not opt.get('pufirst',1):
        a("buffer_load_dwordx2 v[20:21], v18, s[36:39], 0 offen sc1")
        pu(a,(16,17,22,64,24,32))
        a(f"s_movk_i32 s44, {SPIN}\ns_branch F_cell_chk")
    a(f"""s_movk_i32 s44, {SPIN}
    F_cell_poll:
    buffer_load_dwordx2 v[20:21], v18, s[36:39], 0 offen sc1
    F_cell_chk:
    s_waitcnt vmcnt(0)
    v_cmp_eq_u32 vcc, s{S_NONCE}, v21
    s_cmp_eq_u64 vcc, -1
    s_cbranch_scc1 F_cell_ok
    s_sub_u32 s44, s44, 1
    s_cbranch_scc1 F_cell_ok
    s_sleep {opt.get('csleep',1)}
    s_branch F_cell_poll
    F_cell_ok:
    v_cndmask_b32 v21, 0, v20, vcc""")
    st(4)
    a(f"""s_branch F_take
    K2_round:""")
    lane_tid(a)
    a(f"""s_barrier
    s_cmp_lg_u32 s{S_W}, 7
    s_cbranch_scc1 F_noclr
    v_mov_b32 v24, 0
    v_mov_b32 v25, 0
    v_mov_b32 v26, 0
    v_mov_b32 v27, 0
    v_lshlrev_b32 v20, 4, v{VL}
    v_min_u32 v20, 304, v20
    ds_write_b128 v20, v[24:27] offset:{L_CNT}
    s_waitcnt lgkmcnt(0)
    F_noclr:
    s_barrier
    v_lshrrev_b32 v19, 2, v{VT}
    v_lshlrev_b32 v20, 2, v19
    ds_read_b32 v21, v20 offset:{L_STATE}
    s_waitcnt lgkmcnt(0)
    F_take:
    v_lshrrev_b32 v22, 16, v21
    v_min_u32 v23, 32, v22
    v_and_b32 v21, 0xffff, v21
    v_and_b32 v28, 3, v{VT}
    v_mov_b32 v29, 0
    v_cmp_eq_u32 vcc, 0, v28
    s_and_saveexec_b64 s[44:45], vcc
    ds_add_rtn_u32 v30, v29, v23 offset:{L_MISC+M_TICKET}
    s_waitcnt lgkmcnt(0)
    v_add_u32 v30, v30, v23
    v_cmp_ge_u32 vcc, {CAP}, v30
    s_nop 1
    v_cndmask_b32 v23, 0, v23, vcc
    v_sub_u32 v22, v22, v23
    v_add_u32 v30, v21, v23
    v_lshl_or_b32 v30, v22, 16, v30
    v_lshlrev_b32 v31, 2, v19
    ds_write_b32 v31, v30 offset:{L_STATE}
    v_cmp_lt_u32 vcc, 0, v22
    s_and_b64 exec, exec, vcc
    v_mov_b32 v30, 1
    ds_write_b32 v29, v30 offset:{L_MISC+M_MORE}
    s_mov_b64 exec, s[44:45]
    s_nop 4
    v_mov_b32_dpp v23, v23 quad_perm:[0,0,0,0] row_mask:0xf bank_mask:0xf
    s_movk_i32 s46, {CH}
    v_mad_u32_u24 v30, v19, s46, v21
    v_lshlrev_b32 v28, 1, v28
    v_add_u32 v30, v30, v28
    v_lshlrev_b32 v30, 3, v30
    v_sub_u32 v23, v23, v28""")
    for k in range(4):
        a(f"""v_cmp_lt_i32 vcc, {8*k}, v23
        s_cbranch_vccz F_ld_done
        s_mov_b64 exec, vcc
        buffer_load_dwordx4 v[{32+4*k}:{35+4*k}], v30, s[32:35], 0 offen offset:{64*k} sc1
        s_mov_b64 exec, -1""")
    a(f"""F_ld_done:
    v_mov_b32 v29, 1
    s_waitcnt vmcnt(0)""")
    for k in range(4):
        for i in range(2):
            a(f"v_cmp_lt_i32 vcc, {8*k+i}, v23")
            if i==0: a("s_cbranch_vccz F_rk_done")
            a(f"""v_lshrrev_b32 v16, 24, v{32+4*k+2*i}
            s_mov_b64 exec, vcc
            ds_add_rtn_u32 v{64+2*k+i}, v16, v29 offset:{L_CNT}
            s_mov_b64 exec, -1""")
    a(f"""F_rk_done:
    s_waitcnt lgkmcnt(0)""")
    st(5)
    a("s_barrier")
    npf=opt.get('pf',2)
    if npf:
        a(f"""s_cmp_eq_u32 s{S_FIRST}, 0
        s_cbranch_scc1 F_nopf
        s_lshr_b32 s44, s2, 3
        s_lshl_b32 s44, s44, 4
        s_add_u32 s44, s44, s{S_W}
        s_mul_i32 s44, s44, {npf*16*128}
        v_lshl_add_u32 v16, v{VL}, 7, s44
        v_cmp_gt_u32 vcc, {npf*16}, v{VL}
        s_mov_b64 exec, vcc
        buffer_load_dword v124, v16, s[72:75], 0 offen sc1
        s_mov_b64 exec, -1
        F_nopf:""")
    a(f"""v_lshlrev_b32 v16, 2, v{VL}
    ds_read_b32 v17, v16 offset:{L_CNT}
    v_mov_b32 v16, 0
    ds_read_b32 v18, v16 offset:{L_MISC+M_MORE}
    s_waitcnt lgkmcnt(0)
    v_mov_b32 v20, v17
    v_readfirstlane_b32 s{S_MORE}, v18""")
    scan_row(a,20)
    a("s_nop 1")
    for g in range(4): a(f"v_readlane_b32 s{80+g}, v20, {16*g+15}")
    a("v_sub_u32 v20, v20, v17")
    for g in range(4): a(f"s_add_u32 s{84+g}, s{80+g}, 31\ns_lshr_b32 s{84+g}, s{84+g}, 5")
    a(f"""s_mov_b32 s88, 0
    s_mov_b32 s89, s84
    s_add_u32 s90, s89, s85
    s_add_u32 s91, s90, s86""")
    for g in range(1,4):
        a(f"""s_lshl_b32 s44, s{88+g}, 5
        v_mov_b32 v16, s44
        s_nop 1
        v_add_u32_dpp v20, v16, v20 quad_perm:[0,1,2,3] row_mask:{1<<g:#x} bank_mask:0xf""")
    a(f"""s_mov_b32 s46, 0xffffff
    s_mov_b32 s47, {(N-1)*RS}""")
    for k in range(4):
        a(f"v_cmp_lt_i32 vcc, {8*k}, v23\ns_cbranch_vccz F_pos_done")
        for i in range(2):
            a(f"v_lshrrev_b32 v{16+i}, 24, v{32+4*k+2*i}\nds_bpermute_b32 v{16+i}, v{16+i}, v20")
        for i in range(2):
            a(f"v_and_b32 v{24+i}, s46, v{32+4*k+2*i}\nv_min_u32 v{24+i}, s47, v{24+i}\nv_add_u32 v{24+i}, 128, v{24+i}")
        a("s_waitcnt lgkmcnt(0)")
        for i in range(2):
            a(f"""v_add_u32 v{16+i}, v{16+i}, v{64+2*k+i}
            v_lshlrev_b32 v18, 5, v{16+i}
            v_and_b32 v18, 128, v18
            v_sub_u32 v18, v{24+i}, v18
            v_cmp_lt_i32 vcc, {8*k+i}, v23
            v_lshlrev_b32 v{16+i}, 2, v{16+i}
            v_add_u32 v{16+i}, {L_OFFS}, v{16+i}
            s_mov_b64 exec, vcc
            ds_write_b32 v{16+i}, v18
            ds_write_b32 v{16+i}, v{33+4*k+2*i} offset:{L_META-L_OFFS}
            s_mov_b64 exec, -1""")
    a(f"""F_pos_done:
    F_grp:
    s_max_u32 s{S_NSTEP}, s84, s85
    s_max_u32 s44, s86, s87
    s_max_u32 s{S_NSTEP}, s{S_NSTEP}, s44
    s_lshr_b32 s47, s{S_W}, 2
    s_mov_b32 s44, s80
    s_mov_b32 s46, s84
    s_mov_b32 s45, s88""")
    for g in range(1,4):
        a(f"""s_cmp_eq_u32 s47, {g}
        s_cselect_b32 s44, s{80+g}, s44
        s_cselect_b32 s46, s{84+g}, s46
        s_cselect_b32 s45, s{88+g}, s45""")
    a(f"""s_mov_b32 s{S_NT}, s46
    s_lshl_b32 s{S_PA}, s45, 7
    s_add_u32 s{S_PA}, s{S_PA}, {L_OFFS}
    s_mov_b32 s{S_P0}, s{S_PA}
    s_and_b32 s{S_J}, s{S_W}, 3
    s_lshl_b32 s{S_EWB}, s45, 10
    s_add_u32 s{S_EWB}, s{S_EWB}, {L_W}
    v_and_b32 v16, 31, v{VL}
    s_and_b32 s58, s44, 31
    s_cbranch_scc0 K2_nopad
    v_cmp_le_u32 vcc, s58, v16
    s_add_u32 s59, s45, s46
    s_sub_u32 s59, s59, 1
    s_lshl_b32 s59, s59, 7
    s_add_u32 s59, s59, {L_OFFS}
    s_mul_i32 s58, s2, {NB*RS}
    v_and_b32 v17, 4, v16
    v_lshlrev_b32 v17, 5, v17
    v_sub_u32 v17, 128, v17
    v_add_u32 v17, s58, v17
    v_lshl_add_u32 v18, v16, 2, s59
    v_mov_b32 v19, {PADROW}
    s_and_saveexec_b64 s[46:47], vcc
    ds_write_b32 v18, v17
    ds_write_b32 v18, v19 offset:{L_META-L_OFFS}
    s_mov_b64 exec, s[46:47]
    K2_nopad:
    s_waitcnt lgkmcnt(0)""")
    st(6)
    a("s_barrier")

def epilogue(a,opt,st):
    a(f"""s_cmp_lg_u32 s{S_MORE}, 0
    s_cbranch_scc1 K2_round
    s_mul_i32 s44, s2, {NB}
    s_lshr_b32 s45, s{S_W}, 2
    s_add_u32 s44, s44, s45
    s_lshl_b32 s44, s44, 8
    s_and_b32 s46, s{S_W}, 3
    s_lshl_b32 s46, s46, 6
    s_add_u32 s44, s44, s46
    s_sub_u32 s44, s44, {(L_META-L_OFFS)//2}
    v_lshlrev_b32 v16, 8, v{V_H16}
    v_lshrrev_b32 v17, 1, v{V_ML}
    v_add3_u32 v16, v16, v17, s44
    s_mov_b32 s47, {f2u(-LOG2E):#x}
    s_nop 4""")
    for r in range(13): a(f"v_mul_f32 v{V_Z+r}, s47, v{V_ACC+r}")
    for r in range(13): a(f"v_exp_f32 v{V_Z+r}, v{V_Z+r}")
    for r in range(13): a(f"v_add_f32 v{V_Z+r}, 1.0, v{V_Z+r}")
    for r in range(13): a(f"v_rcp_f32 v{V_Z+r}, v{V_Z+r}")
    for r in range(13): a(f"v_mul_f32 v{V_Z+r}, v{V_Z+r}, v{V_ACC+r}")
    for r in range(13): a(f"v_cvt_pk_bf16_f32 v{V_Z+r}, v{V_Z+r}, v{V_Z+r}")
    for r in range(13):
        if r==12:
            a(f"""s_cmp_ge_u32 s45, 2
            s_cbranch_scc1 K2_done
            s_mov_b32 exec_hi, 0""")
        if r and (r&3)==0: a(f"v_add_u32 v16, 8192, v16")
        a(f"buffer_store_short v{V_Z+r}, v16, s[52:55], 0 offen offset:{(r&3)*1024}")

def gen(a,opt):
    st=Stamper(a,opt.get('stamp',0),94)
    a(kstart(KNAME))
    a(f"s_cmp_ge_u32 s2, {NWG}\ns_cbranch_scc1 K2_exit")
    st()
    prologue(a,opt,st); main_loop(a,opt,st); epilogue(a,opt,st)
    a("K2_done:"); st.flush(0,S_W,56,opt.get('amp')); a("K2_exit:\ns_endpgm")
    a(kdesc(KNAME,NV))
```

```python
import sys
from f7 import *
opt={k:int(v) for k,v in (kv.split('=') for kv in sys.argv[1:])}
a=Asm()
for l in open('gather_scatter__edge_featured_mpnn_egc__graph.s.ref').read().split('\n'):
    if l.startswith('; Override'): break
    a(l)
if opt.get('list',0): a(f"; @launch kernel={KNAME} grid=({NWG},1,1) block=(1024,1,1) lds={F_LDS}")
else: a(f"; @launch grid=({NWG},1,1) block=(1024,1,1) lds={F_LDS}")
a('.amdgcn_target "amdgcn-amd-amdhsa--gfx950"')
gen(a,opt)
print(a.text())
```

```python
N=25000; E=400000; NB=98; NWG=256
CH=1600; NCH=250
import os
RS=int(os.environ.get('RS',512))
WS_QH   = 1<<20
WS_ENT  = 20<<20
WS_CELL = 24<<20
WS_FLAG = 25<<20
WS_DBG  = 32<<20
M49=87652394; M25=171798692
LOG2E=1.4426950408889634
import struct
def f2u(x): return struct.unpack('<I',struct.pack('<f',x))[0]

class Asm:
    def __init__(s): s.L=[]
    def __call__(s, t):
        for l in t.split('\n'):
            l=l.strip()
            if l: s.L.append(l if l.endswith(':') or l.startswith('.') or l.startswith(';') else '  '+l)
    def text(s): return '\n'.join(s.L)

def vr(a,n=1): return f"v{a}" if n==1 else f"v[{a}:{a+n-1}]"
def sr(a,n=1): return f"s{a}" if n==1 else f"s[{a}:{a+n-1}]"

def kstart(name):
    return f""".text
.globl {name}
.p2align 8
.type {name},@function
{name}:"""
def kdesc(name, v, s=102):
    return f""".section .rodata,"a"
.p2align 6
.amdhsa_kernel {name}
  .amdhsa_next_free_vgpr {v}
  .amdhsa_next_free_sgpr {s}
  .amdhsa_accum_offset {(v+3)//4*4}
  .amdhsa_group_segment_fixed_size 0
  .amdhsa_kernarg_size 80
  .amdhsa_user_sgpr_count 2
  .amdhsa_user_sgpr_kernarg_segment_ptr 1
  .amdhsa_system_sgpr_workgroup_id_x 1
  .amdhsa_float_denorm_mode_32 3
.end_amdhsa_kernel"""
def kk(p):
    s=p>>4; h=(p>>2)&1; i=((p>>3)&1)*4+(p&3)
    return 16*s+8*h+i
def srd(a, s, lo, size, add=0, w3=0x20000):
    if add:
        a(f"s_add_u32 s{s}, s{lo}, {add}\ns_addc_u32 s{s+1}, s{lo+1}, 0")
    elif s!=lo:
        a(f"s_mov_b32 s{s}, s{lo}\ns_mov_b32 s{s+1}, s{lo+1}")
    a(f"s_mov_b32 s{s+2}, {size}\ns_mov_b32 s{s+3}, {w3:#x}")

MFMA="v_mfma_f32_32x32x16_bf16"
L_W=int(os.environ.get('L_W',0)); L_XS=L_W+65536
def stage_xw(a, sW, sB, srdX, srdM0, srdM1, vl, t):
    t0,t1,t2,t3=t
    a(f"""; ---- weights: rows 4m+(lane>>4), source chunk (lane&15)^(4*(lane>>4))
    v_lshrrev_b32 v{t0}, 4, v{vl}
    v_and_b32 v{t1}, 15, v{vl}
    v_lshlrev_b32 v{t2}, 2, v{t0}
    v_xor_b32 v{t2}, v{t2}, v{t1}
    v_lshlrev_b32 v{t2}, 4, v{t2}
    v_lshl_add_u32 v{t2}, v{t0}, 8, v{t2}
    s_lshl_b32 s44, s{sW}, 11
    v_add_u32 v{t2}, s44, v{t2}
    s_mov_b32 m0, s44
    s_and_b32 s45, s{sW}, 3
    s_lshl_b32 s45, s45, 3
    buffer_load_dwordx4 v{t2}, {sr(srdM0,4)}, 0 offen lds
    buffer_load_dwordx4 v{t2}, {sr(srdM0,4)}, 0 offen offset:1024 lds
    s_add_u32 s46, s44, 32768
    s_mov_b32 m0, s46
    v_add_u32 v{t0}, s45, v{t0}
    s_lshr_b32 s45, s{sW}, 2
    buffer_load_dwordx4 v{t2}, {sr(srdM1,4)}, 0 offen lds
    buffer_load_dwordx4 v{t2}, {sr(srdM1,4)}, 0 offen offset:1024 lds
    s_mul_i32 s47, s{sB}, {NB}
    s_add_u32 s47, s47, s45
    s_add_u32 s46, s44, {L_XS}
    s_sub_u32 s45, {NB}, s45""")
    for q in range(2):
        a(f"""v_and_b32 v{t2}, 15, v{t0}
        v_xor_b32 v{t2}, v{t2}, v{t1}
        v_lshlrev_b32 v{t3}, 2, v{t0}
        v_cmp_gt_u32 vcc, s45, v{t3}
        v_add_u32 v{t3}, s47, v{t3}
        v_lshlrev_b32 v{t3}, 8, v{t3}
        v_lshl_add_u32 v{t2}, v{t2}, 4, v{t3}
        s_mov_b32 m0, s46
        v_mov_b32 v{t3}, 0x7fff0000
        v_cndmask_b32 v{t2}, v{t3}, v{t2}, vcc
        s_add_u32 s46, s46, 1024
        buffer_load_dwordx4 v{t2}, {sr(srdX,4)}, 0 offen lds""")
        if q==0: a(f"v_add_u32 v{t0}, 4, v{t0}")

def stage_w(a, sW, srdM0, srdM1, vl, t):
    t0,t1,t2=t
    a(f"""v_lshrrev_b32 v{t0}, 4, v{vl}
    v_and_b32 v{t1}, 15, v{vl}
    v_lshlrev_b32 v{t2}, 2, v{t0}
    v_xor_b32 v{t2}, v{t2}, v{t1}
    v_lshlrev_b32 v{t2}, 4, v{t2}
    v_lshl_add_u32 v{t2}, v{t0}, 8, v{t2}
    s_lshl_b32 s44, s{sW}, 11
    v_add_u32 v{t2}, s44, v{t2}
    s_add_u32 s44, s44, {L_W}
    s_mov_b32 m0, s44
    s_add_u32 s44, s44, 32768
    buffer_load_dwordx4 v{t2}, {sr(srdM0,4)}, 0 offen lds
    buffer_load_dwordx4 v{t2}, {sr(srdM0,4)}, 0 offen offset:1024 lds
    s_mov_b32 m0, s44
    s_nop 0
    buffer_load_dwordx4 v{t2}, {sr(srdM1,4)}, 0 offen lds
    buffer_load_dwordx4 v{t2}, {sr(srdM1,4)}, 0 offen offset:1024 lds""")
def stage_x(a, sW, sB, srdX, vl, t):
    t0,t1,t2,t3=t
    a(f"""v_lshrrev_b32 v{t0}, 4, v{vl}
    v_and_b32 v{t1}, 15, v{vl}
    s_and_b32 s45, s{sW}, 3
    s_lshl_b32 s45, s45, 3
    v_add_u32 v{t0}, s45, v{t0}
    s_lshr_b32 s45, s{sW}, 2
    s_mul_i32 s47, s{sB}, {NB}
    s_add_u32 s47, s47, s45
    s_lshl_b32 s46, s{sW}, 11
    s_add_u32 s46, s46, {L_XS}
    s_sub_u32 s45, {NB}, s45""")
    for q in range(2):
        a(f"""v_and_b32 v{t2}, 15, v{t0}
        v_xor_b32 v{t2}, v{t2}, v{t1}
        v_lshlrev_b32 v{t3}, 2, v{t0}
        v_cmp_gt_u32 vcc, s45, v{t3}
        v_add_u32 v{t3}, s47, v{t3}
        v_lshlrev_b32 v{t3}, 8, v{t3}
        v_lshl_add_u32 v{t2}, v{t2}, 4, v{t3}
        s_mov_b32 m0, s46
        v_mov_b32 v{t3}, 0x7fff0000
        v_cndmask_b32 v{t2}, v{t3}, v{t2}, vcc
        s_add_u32 s46, s46, 1024
        buffer_load_dwordx4 v{t2}, {sr(srdX,4)}, 0 offen lds""")
        if q==0: a(f"v_add_u32 v{t0}, 4, v{t0}")
def gemm16(a, sW, vl, D0, D1, vA, vB, t):
    ta,tb,tc=t
    a(f"""; A address
    v_and_b32 v{ta}, 31, v{vl}
    v_lshrrev_b32 v{tb}, 5, v{vl}
    v_and_b32 v{tc}, 15, v{ta}
    v_xor_b32 v{tc}, v{tc}, v{tb}
    v_lshlrev_b32 v{tc}, 4, v{tc}
    v_lshl_add_u32 v{ta}, v{ta}, 8, v{tc}
    s_lshr_b32 s44, s{sW}, 2
    s_lshl_b32 s44, s44, 13
    s_add_u32 s44, s44, {L_XS}
    v_add_u32 v{ta}, s44, v{ta}
    ; B address: (8h+r)*256 + ((4j+2*g16+(c>>1))^(4r))*16 + (c&1)*8
    v_bfe_u32 v{tc}, v{vl}, 2, 2
    v_lshl_add_u32 v{tb}, v{tb}, 3, v{tc}
    v_lshlrev_b32 v{tb}, 8, v{tb}
    v_lshlrev_b32 v{tc}, 2, v{tc}
    s_and_b32 s44, s{sW}, 3
    s_lshl_b32 s44, s44, 2
    v_xor_b32 v{tc}, s44, v{tc}
    v_lshl_add_u32 v{tb}, v{tc}, 4, v{tb}
    v_bfe_u32 v{tc}, v{vl}, 4, 1
    v_lshl_add_u32 v{tb}, v{tc}, 5, v{tb}
    v_and_b32 v{tc}, 3, v{vl}
    v_lshl_add_u32 v{tb}, v{tc}, 3, v{tb}""")
    def rd(ks):
        p=ks&1
        if ks==0: a(f"ds_read_b128 {vr(vA,4)}, v{ta}")
        else:
            a(f"v_xor_b32 v{tc}, {32*ks}, v{ta}")
            a(f"ds_read_b128 {vr(vA+4*p,4)}, v{tc}")
        for m in range(2):
            for q in range(2):
                a(f"ds_read_b64_tr_b16 {vr(vB+8*p+4*m+2*q,2)}, v{tb} offset:{m*32768+ks*4096+q*1024}")
    rd(0)
    for ks in range(8):
        p=ks&1
        if ks<7:
            rd(ks+1); a("s_waitcnt lgkmcnt(5)")
        else: a("s_waitcnt lgkmcnt(0)")
        a(f"{MFMA} {vr(D0,16)}, {vr(vA+4*p,4)}, {vr(vB+8*p,4)}, {'0' if ks==0 else vr(D0,16)}")
        a(f"{MFMA} {vr(D1,16)}, {vr(vA+4*p,4)}, {vr(vB+8*p+4,4)}, {'0' if ks==0 else vr(D1,16)}")

class Stamper:
    def __init__(s,a,on,base): s.a=a; s.on=on; s.n=0; s.base=base; s.slot={}
    def __call__(s, bit=None):
        if not s.on: return
        if bit is not None and not (s.on>>bit)&1: return
        if s.n==0:
            for k in range(1,8): s.a(f"s_mov_b32 s{s.base+k}, 0")
        if bit is None or bit not in s.slot:
            k=s.n; s.n+=1
            if bit is not None: s.slot[bit]=k
        else: k=s.slot[bit]
        s.a(f"s_memrealtime s[92:93]\ns_waitcnt lgkmcnt(0)\ns_mov_b32 s{s.base+k}, s92")
    def flush(s, kid, sW, wsreg, amp=None):
        if not s.on: return
        a=s.a
        if amp is not None:
            a("s_mov_b64 exec, -1\ns_waitcnt vmcnt(0)")
            s()
            k = s.n-1 if amp<0 else (0 if amp==0 else s.slot[amp])
            a(f"""s_sub_u32 s44, s{s.base+k}, s{s.base}
            s_min_u32 s44, s44, 10000
            s_mul_i32 s44, s44, 10
            s_add_u32 s44, s44, 10000
            s_mov_b32 s45, 0
            AMP_spin:
            s_memrealtime s[92:93]
            s_waitcnt lgkmcnt(0)
            s_sub_u32 s46, s92, s{s.base}
            s_add_u32 s45, s45, 1
            s_cmp_gt_u32 s45, 400000
            s_cbranch_scc1 AMP_done
            s_sleep 4
            s_cmp_lt_u32 s46, s44
            s_cbranch_scc1 AMP_spin
            AMP_done:""")
            return
        a(f"""s_mov_b64 exec, -1
        s_waitcnt vmcnt(0)""")
        s()
        a(f"""s_load_dwordx2 s[4:5], s[0:1], 72
        s_waitcnt lgkmcnt(0)
        s_mov_b32 s6, {256<<20}
        s_mov_b32 s7, 0x20000
        s_lshl_b32 s44, s2, 4
        s_add_u32 s44, s44, s{sW}
        s_lshl_b32 s44, s44, 6
        s_add_u32 s44, s44, {WS_DBG+kid*(1<<20)}
        v_mov_b32 v20, s44""")
        for i in range(s.n): a(f"v_mov_b32 v21, s{s.base+i}\nbuffer_store_dword v21, v20, s[4:7], 0 offen offset:{4*i}")

def stage_w8(a, sw8, srdM0, srdM1, vl, t):
    t0,t1,t2=t
    a(f"""v_lshrrev_b32 v{t0}, 4, v{vl}
    v_and_b32 v{t1}, 15, v{vl}
    v_lshlrev_b32 v{t2}, 2, v{t0}
    v_xor_b32 v{t2}, v{t2}, v{t1}
    v_lshlrev_b32 v{t2}, 4, v{t2}
    v_lshl_add_u32 v{t2}, v{t0}, 8, v{t2}
    s_lshl_b32 s44, s{sw8}, 12
    v_add_u32 v{t2}, s44, v{t2}
    s_add_u32 s44, s44, {L_W}
    s_mov_b32 m0, s44
    s_add_u32 s44, s44, 32768""")
    for k in range(4): a(f"buffer_load_dwordx4 v{t2}, {sr(srdM0,4)}, 0 offen offset:{1024*k} lds")
    a("s_mov_b32 m0, s44\ns_nop 0")
    for k in range(4): a(f"buffer_load_dwordx4 v{t2}, {sr(srdM1,4)}, 0 offen offset:{1024*k} lds")
def stage_x8(a, sw8, sB, srdX, vl, t):
    t0,t1,t2,t3=t
    a(f"""v_lshrrev_b32 v{t0}, 4, v{vl}
    v_and_b32 v{t1}, 15, v{vl}
    s_and_b32 s45, s{sw8}, 1
    s_lshl_b32 s45, s45, 4
    v_add_u32 v{t0}, s45, v{t0}
    s_lshr_b32 s45, s{sw8}, 1
    s_mul_i32 s47, s{sB}, {NB}
    s_add_u32 s47, s47, s45
    s_lshl_b32 s46, s{sw8}, 12
    s_add_u32 s46, s46, {L_XS}
    s_sub_u32 s45, {NB}, s45""")
    for q in range(4):
        a(f"""v_and_b32 v{t2}, 15, v{t0}
        v_xor_b32 v{t2}, v{t2}, v{t1}
        v_lshlrev_b32 v{t3}, 2, v{t0}
        v_cmp_gt_u32 vcc, s45, v{t3}
        v_add_u32 v{t3}, s47, v{t3}
        v_lshlrev_b32 v{t3}, 8, v{t3}
        v_lshl_add_u32 v{t2}, v{t2}, 4, v{t3}
        s_mov_b32 m0, s46
        v_mov_b32 v{t3}, 0x7fff0000
        v_cndmask_b32 v{t2}, v{t3}, v{t2}, vcc
        s_add_u32 s46, s46, 1024
        buffer_load_dwordx4 v{t2}, {sr(srdX,4)}, 0 offen lds""")
        if q<3: a(f"v_add_u32 v{t0}, 4, v{t0}")
def gemm_addr(a, sg, sj, vl, ta, tb, tc):
    a(f"""v_and_b32 v{ta}, 31, v{vl}
    v_lshrrev_b32 v{tb}, 5, v{vl}
    v_and_b32 v{tc}, 15, v{ta}
    v_xor_b32 v{tc}, v{tc}, v{tb}
    v_lshlrev_b32 v{tc}, 4, v{tc}
    v_lshl_add_u32 v{ta}, v{ta}, 8, v{tc}
    s_lshl_b32 s44, s{sg}, 13
    s_add_u32 s44, s44, {L_XS}
    v_add_u32 v{ta}, s44, v{ta}
    v_bfe_u32 v{tc}, v{vl}, 2, 2
    v_lshl_add_u32 v{tb}, v{tb}, 3, v{tc}
    v_lshlrev_b32 v{tb}, 8, v{tb}
    v_lshlrev_b32 v{tc}, 2, v{tc}
    s_lshl_b32 s44, s{sj}, 2
    v_xor_b32 v{tc}, s44, v{tc}
    v_lshl_add_u32 v{tb}, v{tc}, 4, v{tb}
    v_bfe_u32 v{tc}, v{vl}, 4, 1
    v_lshl_add_u32 v{tb}, v{tc}, 5, v{tb}
    v_and_b32 v{tc}, 3, v{vl}
    v_lshl_add_u32 v{tb}, v{tc}, 3, v{tb}""")
    if L_W: a(f"v_add_u32 v{tb}, {L_W}, v{tb}")
def gemm32(a, sg, sj, vl, D, vA, vB, t):
    ta,tb,tc,td=t
    gemm_addr(a,sg,sj,vl,ta,tb,tc)
    a(f"v_xor_b32 v{td}, 64, v{tb}")
    def rd(ks):
        p=ks&1
        if ks==0: a(f"ds_read_b128 {vr(vA,4)}, v{ta}")
        else:
            a(f"v_xor_b32 v{tc}, {32*ks}, v{ta}")
            a(f"ds_read_b128 {vr(vA+4*p,4)}, v{tc}")
        for b in range(2):
            if b and ks: a("s_waitcnt lgkmcnt(11)")
            for m in range(2):
                for q in range(2):
                    a(f"ds_read_b64_tr_b16 {vr(vB+16*p+8*b+4*m+2*q,2)}, v{td if b else tb} offset:{m*32768+ks*4096+q*1024}")
    rd(0)
    for ks in range(8):
        p=ks&1
        if ks<7:
            rd(ks+1); a("s_waitcnt lgkmcnt(9)")
        else: a("s_waitcnt lgkmcnt(0)")
        for u in range(4):
            a(f"{MFMA} {vr(D+16*u,16)}, {vr(vA+4*p,4)}, {vr(vB+16*p+4*u,4)}, {'0' if ks==0 else vr(D+16*u,16)}")

def gemm_core(a, ta, tb, tc, D0, D1, vA, vB, hook=None):
    def rd(ks):
        p=ks&1
        if ks==0: a(f"ds_read_b128 {vr(vA,4)}, v{ta}")
        else:
            a(f"v_xor_b32 v{tc}, {32*ks}, v{ta}")
            a(f"ds_read_b128 {vr(vA+4*p,4)}, v{tc}")
        for m in range(2):
            for q in range(2):
                a(f"ds_read_b64_tr_b16 {vr(vB+8*p+4*m+2*q,2)}, v{tb} offset:{m*32768+ks*4096+q*1024}")
    rd(0)
    for ks in range(8):
        p=ks&1
        if ks<7:
            rd(ks+1); a("s_waitcnt lgkmcnt(5)")
        else: a("s_waitcnt lgkmcnt(0)")
        a(f"{MFMA} {vr(D0,16)}, {vr(vA+4*p,4)}, {vr(vB+8*p,4)}, {'0' if ks==0 else vr(D0,16)}")
        a(f"{MFMA} {vr(D1,16)}, {vr(vA+4*p,4)}, {vr(vB+8*p+4,4)}, {'0' if ks==0 else vr(D1,16)}")
        if hook: hook(ks)
```

```python
import os
os.environ['L_W']='4096'
from common import *
KNAME='gather_scatter__edge_featured_mpnn_egc__graph_kernel'
QSCALE=-LOG2E*(1-0.0027)
CAP=1856
L_TBL=0; L_CNT=2560; L_MISC=L_CNT+256; L_STATE=L_MISC+64
assert L_STATE+1024<=L_W
STW=2080; PADROW=25
L_ST=L_XS+32768
L_OFFS=L_ST+16*STW+512
NSLOT=CAP+160
L_META=L_OFFS+NSLOT*4
F_LDS=L_META+NSLOT*4
assert F_LDS<=163840 and (CAP+128)//32<=64
B_CNT=L_ST; B_BASE=B_CNT+1024; B_SORT=B_BASE+7*1024
assert B_SORT+CH*8<=L_OFFS
SPIN=20000
M_TICKET=0; M_MORE=4
V_ACC=0; V_G=16; V_Z=48; V_IDX=64; V_P=80; V_C=88; V_E=92; V_I4=96; V_S=100; V_MSG=108; V_META=116
V_H16=118; V_SW=119; V_SR=120; V_ONE=121; V_ML=122; V_EL=123; V_T0=126; V_T1=127
NV=128
S_QH=8; S_EA=12; S_80=17; S_M31=18; S_W=20; S_W8=21; S_MORE=23; S_FIRST=60; S_NONCE=61
S_STEP=62; S_NSTEP=63; S_NT=64; S_PA=65; S_ERB=66; S_EWB=67; S_J=68; S_P0=69
V_CR=110; VL=V_MSG; VT=V_MSG+1

def lane_tid(a):
    a(f"""v_mbcnt_lo_u32_b32 v{VL}, -1, 0
    v_mbcnt_hi_u32_b32 v{VL}, -1, v{VL}
    v_lshl_add_u32 v{VT}, s{S_W}, 6, v{VL}""")
def lds_arrive(a, off, vt, sdst=None):
    a(f"v_mov_b32 v{vt}, 0\nv_mov_b32 v{vt+1}, 1\ns_mov_b64 exec, 1")
    if sdst is None: a(f"ds_add_u32 v{vt}, v{vt+1} offset:{L_MISC+off}\ns_mov_b64 exec, -1")
    else: a(f"ds_add_rtn_u32 v{vt+1}, v{vt}, v{vt+1} offset:{L_MISC+off}\ns_mov_b64 exec, -1\ns_waitcnt lgkmcnt(0)\nv_readfirstlane_b32 s{sdst}, v{vt+1}")
def lds_wait(a, off, target, vt, lab, nap=0):
    a(f"""v_mov_b32 v{vt}, 0
    {lab}:
    {'s_sleep 1' if nap else ''}
    ds_read_b32 v{vt+1}, v{vt} offset:{L_MISC+off}
    s_waitcnt lgkmcnt(0)
    v_readfirstlane_b32 s44, v{vt+1}
    s_cmp_lt_u32 s44, {target}
    s_cbranch_scc1 {lab}""")
def scan_row(a, v):
    for sh in (1,2,4,8): a(f"s_nop 1\nv_add_u32_dpp v{v}, v{v}, v{v} row_shr:{sh} row_mask:0xf bank_mask:0xf bound_ctrl:0")

def c_loads(a):
    srd(a,84,48,4096,add=65536)
    a(f"""v_and_b32 v0, 31, v{VL}
    s_and_b32 s44, s{S_W}, 3
    s_lshl_b32 s44, s44, 6
    v_lshlrev_b32 v1, 7, v{V_H16}
    v_lshl_add_u32 v1, v0, 1, v1
    v_add_u32 v1, s44, v1""")
    for i in range(8): a(f"buffer_load_ushort v{V_CR+i}, v1, s[84:87], 0 offen offset:{256*i}")
PROF=[0]
def tick(a,k):
    if not PROF[0]: return
    a(f"s_memtime s[92:93]\ns_waitcnt lgkmcnt(0)\ns_sub_u32 s91, s92, s90\ns_add_u32 s{95+k}, s{95+k}, s91\ns_mov_b32 s90, s92")
def e_slot(a, tt, dst):
    a(f"s_lshl_b32 s45, s{tt}, 10\ns_add_u32 s{dst}, s{S_EWB}, s45")
def fetch_e(a, ahead, lab):
    a(f"""s_cmp_lg_u32 s{S_J}, 0
    s_cbranch_scc1 {lab}
    s_add_u32 s46, s{S_STEP}, {ahead}
    s_cmp_ge_u32 s46, s{S_NT}
    s_cbranch_scc1 {lab}
    s_lshl_b32 s44, s46, 7
    s_add_u32 s44, s44, s{S_P0}
    v_add_u32 v{V_T1}, s44, v{V_ML}
    ds_read_b32 v{V_T0}, v{V_T1}""")
    e_slot(a,46,44)
    a(f"""s_mov_b32 m0, s44
    s_waitcnt lgkmcnt(0)
    v_and_or_b32 v{V_T1}, v{V_T0}, s{S_M31}, v{V_H16}""")
    if EM[0] is not None:
        a(f"s_cmp_lt_u32 s46, {EM[0]}\ns_cselect_b32 s44, -1, 0x1fffff\nv_and_b32 v{V_T1}, s44, v{V_T1}")
    a(f"""buffer_load_dwordx4 v{V_T1}, {sr(S_EA,4)}, 0 offen lds
    {lab}:""")
def fetch_g(a, par, ahead, lab):
    G=V_G+16*par
    a(f"""s_add_u32 s46, s{S_STEP}, {ahead}
    s_cmp_ge_u32 s46, s{S_NT}
    s_cbranch_scc1 {lab}
    v_add_u32 v{V_T1}, s{S_PA}, v{V_H16}""")
    for q in range(4): a(f"ds_read_b128 {vr(V_IDX+4*q,4)}, v{V_T1} offset:{32*q}")
    a(f"""v_add_u32 v{V_T1}, s{S_PA}, v{V_ML}
    ds_read_b32 v{V_META+par}, v{V_T1}
    s_add_u32 s{S_PA}, s{S_PA}, 128""")
    for q in range(4):
        a(f"s_waitcnt lgkmcnt({4-q})")
        for i in range(4*q,4*q+4): a(f"buffer_load_dword v{G+i}, v{V_IDX+i}, {sr(S_QH,4)}, 0 offen{QF[0]}")
    a(f"{lab}:")
QF=[' sc1']; EM=[None]
def step_body(a, par, opt):
    prio=opt.get('prio',0); G=V_G+16*par; Z=V_Z; u=str(par)
    BP=opt.get('bp',4); ED=BP+2
    a("s_waitcnt lgkmcnt(0)")
    if BP==1: a("s_barrier")
    elif BP==2:
        if par==0: a("s_barrier")
        if opt.get('pp',1): a(f"s_setprio {1-par}")
    else:
        b='s_barrier' if par==0 else ''
        a(f"""s_and_b32 s44, s{S_STEP}, 2
        s_cbranch_scc1 H_p1{u}
        {b}
        s_setprio {3-par}
        s_branch H_p2{u}
        H_p1{u}:
        s_setprio {1-par}
        H_p2{u}:""")
    tick(a,0)
    a(f"""s_cmp_ge_u32 s{S_STEP}, s{S_NT}
    s_cbranch_scc1 H_idle{u}
    v_and_b32 v{V_T0}, 31, v{V_META+par}
    v_mad_u32_u24 v{V_T1}, v{V_T0}, s{S_80}, v{V_H16}
    v_mad_u32_u24 v{V_T0}, v{V_T0}, s{S_80}, v{V_SW}
    ds_read_b128 {vr(V_S,4)}, v{V_T1} offset:{L_TBL}
    ds_read_b128 {vr(V_S+4,4)}, v{V_T1} offset:{L_TBL+32}""")
    e_slot(a,S_STEP,44)
    a(f"""v_add_u32 v{V_T1}, s44, v{V_EL}
    ds_read_b128 {vr(V_E,4)}, v{V_T1}
    s_waitcnt vmcnt(17)
    s_add_u32 s44, s{S_STEP}, {ED-1}
    s_cmp_lt_u32 s44, s{S_NT}
    s_cselect_b32 s45, s{S_J}, 1
    s_cmp_eq_u32 s45, 0
    s_cbranch_scc1 H_go{u}
    s_waitcnt vmcnt(16)
    s_add_u32 s44, s{S_STEP}, 1
    s_cmp_lt_u32 s44, s{S_NT}
    s_cbranch_scc1 H_go{u}
    s_waitcnt vmcnt(0)
    H_go{u}:
    s_waitcnt lgkmcnt(0)""")
    tick(a,1)
    a(f"{MFMA} {vr(Z,16)}, {vr(V_E,4)}, {vr(V_C,4)}, {vr(G,16)}")
    X=opt.get('x',0)
    if not X&1: a(f"{MFMA} {vr(Z,16)}, {vr(V_S,4)}, {vr(V_P,4)}, {vr(Z,16)}")
    if not X&2: a(f"{MFMA} {vr(Z,16)}, {vr(V_S+4,4)}, {vr(V_P+4,4)}, {vr(Z,16)}")
    if X&3: a("s_nop 1")
    a(f"ds_write_b16_d16_hi v{V_T0}, v{V_ONE}")
    a(f"ds_read_b128 {vr(V_S,4)}, v{V_SR}")
    a(f"ds_read_b128 {vr(V_S+4,4)}, v{V_SR} offset:32")
    a(f"ds_write_b16 v{V_T0}, v{V_ONE}")
    a("s_nop 0")
    if X&4: a("s_nop 7")
    else:
        for i in range(16): a(f"v_lshlrev_b32 v{G+i}, 16, v{G+i}")
    if prio&1: a("s_setprio 1")
    for i in range(16): a(f"v_exp_f32 v{Z+i}, v{Z+i}")
    if prio&1: a("s_setprio 0")
    if not X&8:
        for i in range(16): a(f"v_add_f32 v{Z+i}, 1.0, v{Z+i}")
    if prio&1: a("s_setprio 1")
    if not X&16:
        for i in range(16): a(f"v_rcp_f32 v{Z+i}, v{Z+i}")
    if prio&1: a("s_setprio 0")
    for i in range(16): a(f"v_mul_f32 v{Z+i}, v{Z+i}, v{G+i}")
    for i in range(8): a(f"v_cvt_pk_bf16_f32 v{V_MSG+i}, v{Z+2*i}, v{Z+2*i+1}")
    a("s_waitcnt lgkmcnt(0)")
    a("s_nop 0")
    a(f"{MFMA} {vr(V_ACC,16)}, {vr(V_S,4)}, {vr(V_MSG,4)}, {vr(V_ACC,16)}")
    a(f"{MFMA} {vr(V_ACC,16)}, {vr(V_S+4,4)}, {vr(V_MSG+4,4)}, {vr(V_ACC,16)}")
    tick(a,2)
    fetch_e(a,ED,f"H_fe{u}")
    tick(a,3)
    fetch_g(a,par,2,f"H_fg{u}")
    tick(a,4)
    a(f"""H_idle{u}:
    s_add_u32 s{S_STEP}, s{S_STEP}, 1
    s_cmp_ge_u32 s{S_STEP}, s{S_NSTEP}""")

def main_loop(a,opt,st):
    EM[0]=opt.get('em')
    QF[0]=['',' sc1'][opt.get('qf',1)]
    if opt.get('cyc',0): a('s_memtime s[92:93]\ns_waitcnt lgkmcnt(0)\ns_mov_b32 s79, s92')
    a(f"s_mov_b32 s{S_STEP}, 0")
    if opt.get('prof',0):
        PROF[0]=1
        a("s_memtime s[92:93]\ns_waitcnt lgkmcnt(0)\ns_mov_b32 s90, s92\ns_mov_b32 s79, s92")
        for k in range(6): a(f"s_mov_b32 s{95+k}, 1")
    BP=opt.get('bp',4); ED=BP+2
    for k in range(ED-1): fetch_e(a,k,f"H_pe{k}")
    fetch_g(a,0,0,"H_pg0")
    if opt.get('rb',0): a("s_barrier")
    fetch_e(a,ED-1,"H_pel")
    fetch_g(a,1,1,"H_pg1")
    st(7)
    a(f"""s_mov_b32 s{S_FIRST}, 0
    s_waitcnt vmcnt(33)
    s_cmp_ge_u32 s{S_NT}, {ED}
    s_cbranch_scc1 H_loop
    s_waitcnt vmcnt(0)
    .p2align 3
    H_loop:""")
    step_body(a,0,opt)
    a("s_cbranch_scc1 H_done")
    step_body(a,1,opt)
    a("s_cbranch_scc0 H_loop\nH_done:")
    if opt.get('prof',0): a("s_sub_u32 s100, s90, s79")
    if opt.get('cyc',0): a('s_memtime s[92:93]\ns_waitcnt lgkmcnt(0)\ns_sub_u32 s95, s92, s79')
    if opt.get('nst',0): a(f's_add_u32 s96, s91, s87\ns_lshl_b32 s96, s96, 8\ns_add_u32 s95, s96, s{S_NSTEP}')
    st(8)
def pu(a,regs):
    ta,tb,tc,D,A,B=regs
    a(f"s_lshr_b32 s46, s{S_W}, 2\ns_and_b32 s47, s{S_W}, 3")
    gemm_addr(a,46,47,VL,ta,tb,tc)
    gemm_core(a,ta,tb,tc,D,V_ACC,A,B)
    a(f"s_mov_b32 s44, {f2u(-LOG2E):#x}")
    for i in range(8): a(f"v_lshlrev_b32 v{V_CR+i}, 16, v{V_CR+i}\nv_mul_f32 v{V_CR+i}, s44, v{V_CR+i}")
    for i in range(4): a(f"v_cvt_pk_bf16_f32 v{V_C+i}, v{V_CR+2*i}, v{V_CR+2*i+1}")
    for r in range(16): a(f"v_mul_f32 v{D+r}, s44, v{D+r}")
    for r in range(8): a(f"v_cvt_pk_bf16_f32 v{V_P+r}, v{D+2*r}, v{D+2*r+1}")

def prologue(a, opt, st):
    xl=opt.get('xlate',1)
    a(f"""s_load_dwordx4 s[4:7], s[0:1], 0
    s_load_dwordx4 s[64:67], s[0:1], 16
    s_load_dwordx4 s[28:31], s[0:1], 32
    s_load_dwordx4 s[48:51], s[0:1], 48
    s_load_dwordx4 s[80:83], s[0:1], 64
    s_memrealtime s[58:59]
    v_lshrrev_b32 v2, 6, v0
    v_and_b32 v{VL}, 63, v0
    v_readfirstlane_b32 s{S_W}, v2
    v_mov_b32 v{VT}, v0
    s_mul_i32 s45, s2, {CH*4}
    v_lshlrev_b32 v4, 4, v0
    v_add_u32 v5, s45, v4
    v_cmp_gt_u32 vcc, {CH//4}, v0
    s_cmp_lt_u32 s2, {NCH}
    s_cselect_b64 s[78:79], vcc, 0
    s_waitcnt lgkmcnt(0)
    s_mov_b32 s68, s66
    s_mov_b32 s69, s67""")
    srd(a,64,64,E*4); srd(a,68,68,E*4)
    a(f"""s_mov_b64 exec, s[78:79]
    s_cbranch_execz F_noload
    buffer_load_dwordx4 v[8:11], v5, s[68:71], 0 offen
    buffer_load_dwordx4 v[12:15], v5, s[64:67], 0 offen
    F_noload:
    s_mov_b64 exec, -1
    s_mov_b32 s12, s6
    s_mov_b32 s13, s7
    s_mov_b32 s56, s82
    s_mov_b32 s57, s83
    s_mov_b32 s76, s28
    s_mov_b32 s77, s29""")
    srd(a,80,80,256)
    a(f"""s_or_b32 s58, s58, 1
    v_mov_b32 v6, 0
    v_mov_b32 v7, s58
    s_add_u32 s45, s2, s{S_W}
    s_cmp_lg_u32 s45, 0
    s_cbranch_scc1 F_nononce
    s_mov_b64 exec, 1
    buffer_store_dword v7, v6, s[80:83], 0 offen sc1
    s_mov_b64 exec, -1
    F_nononce:""")
    srd(a,4,4,N*256); srd(a,24,48,32768,add=32768); srd(a,28,30,32768)
    stage_x(a,S_W,2,4,VL,(16,17,18,19))
    stage_w(a,S_W,24,28,VL,(16,17,18))
    a("v_mov_b32 v2, v18")
    srd(a,12,12,E*32); srd(a,32,56,NCH*CH*8,add=WS_ENT); srd(a,36,56,NWG*2048,add=WS_CELL); srd(a,52,50,N*256)
    srd(a,72,56,N*RS,add=WS_QH)
    a(f"""s_and_b32 s46, s{S_W}, 3
    s_lshl_b32 s44, s46, 7
    s_add_u32 s44, s44, {WS_QH-128}
    s_add_u32 s8, s56, s44
    s_addc_u32 s9, s57, 0
    s_or_b32 s9, s9, 0x40000
    s_mov_b32 s10, {N*RS+128}
    s_mov_b32 s11, 0x800000
    v_lshrrev_b32 v16, 5, v{VL}
    v_lshlrev_b32 v{V_H16}, 4, v16
    v_and_b32 v17, 31, v{VL}
    """)
    a(f"""s_mul_i32 s19, s{S_W}, {STW}
    s_add_u32 s19, s19, {L_ST}
    s_movk_i32 s{S_80}, 80
    s_mov_b32 s{S_M31}, 0xffffffe0
    v_mad_u32_u24 v{V_SR}, v17, s{S_80}, v{V_H16}
    v_add_u32 v{V_SR}, s19, v{V_SR}
    v_and_b32 v19, 19, v17
    v_and_b32 v20, 4, v17
    v_lshl_add_u32 v19, v20, 1, v19
    v_and_b32 v20, 8, v17
    v_lshrrev_b32 v20, 1, v20
    v_add_u32 v19, v19, v20
    v_lshlrev_b32 v19, 1, v19
    v_add_u32 v{V_SW}, s19, v19
    v_mov_b32 v{V_ONE}, 0x3f800000
    v_lshlrev_b32 v{V_ML}, 2, v17
    v_add_u32 v{V_ML}, {L_META-L_OFFS}, v{V_ML}
    v_lshlrev_b32 v{V_EL}, 4, v{VL}
    v_mov_b32 v24, 0
    v_mov_b32 v25, 0
    v_mov_b32 v26, 0
    v_mov_b32 v27, 0
    s_cmp_lg_u32 s{S_W}, 7
    s_cbranch_scc1 F_noinit
    v_lshlrev_b32 v20, 4, v{VL}
    v_add_u32 v21, {B_CNT}, v20
    ds_write_b128 v21, v[24:27]
    ds_write_b128 v20, v[24:27]
    ds_write_b128 v20, v[24:27] offset:1024
    ds_write_b128 v20, v[24:27] offset:2048
    v_mad_u32_u24 v20, v17, s{S_80}, v19
    ds_write_b16_d16_hi v20, v{V_ONE} offset:{L_TBL}
    s_waitcnt lgkmcnt(0)
    F_noinit:
    s_mov_b32 s{S_FIRST}, 1
    s_barrier""")
    a(f"""s_mov_b64 exec, s[78:79]
    s_cbranch_execz F_norank
    s_mov_b32 s44, {M49}
    s_movk_i32 s45, {NB}
    s_movk_i32 s46, {RS}
    s_mul_i32 s47, s2, {CH}
    v_lshl_add_u32 v3, v0, 2, s47
    v_lshlrev_b32 v3, 5, v3
    v_mov_b32 v7, 1
    s_waitcnt vmcnt(6)""")
    for i in range(4):
        a(f"""v_lshrrev_b32 v16, 1, v{8+i}
        v_mul_hi_u32 v16, v16, s44
        v_mul_u32_u24 v17, s45, v16
        v_sub_u32 v17, v{8+i}, v17
        v_and_b32 v18, 7, v16
        v_bfe_u32 v16, v16, 3, 5
        v_lshl_add_u32 v16, v18, 5, v16
        v_lshlrev_b32 v{8+i}, 2, v16
        v_add_u32 v16, {B_CNT}, v{8+i}
        ds_add_rtn_u32 v{20+i}, v16, v7
        v_lshrrev_b32 v16, 2, v17
        v_add3_u32 v{41+2*i}, v3, v16, {32*i if i<3 else 64}
        v_and_b32 v17, 3, v17
        v_bfe_u32 v16, v{12+i}, 11, 4
        v_lshl_add_u32 v16, v17, 4, v16
        v_mul_u32_u24 v17, s46, v{12+i}
        v_lshl_or_b32 v{40+2*i}, v16, 26, v17""")
        if i==3: a(f"v_add_u32 v{41+2*i}, 32, v{41+2*i}")
    a(f"""F_norank:
    s_mov_b64 exec, -1
    v_mov_b32 v6, 0
    s_waitcnt vmcnt(0) lgkmcnt(0)""")
    st(1)
    a("s_barrier\nbuffer_load_dword v7, v6, s[80:83], 0 offen sc1")
    srd(a,24,48,32768); srd(a,28,76,32768)
    for k in range(4): a(f"buffer_load_dwordx4 {vr(88+4*k,4)}, v2, s[{24+4*(k>>1)}:{27+4*(k>>1)}], 0 offen offset:{1024*(k&1)}")
    c_loads(a)
    a(f"""    s_cmp_ge_u32 s{S_W}, 7
    s_cbranch_scc1 F_noscan
    v_lshlrev_b32 v16, 4, v{VL}
    v_add_u32 v17, {B_CNT}, v16
    ds_read_b128 v[24:27], v17
    s_lshl_b32 s44, s{S_W}, 10
    s_add_u32 s44, s44, {B_BASE}
    s_waitcnt lgkmcnt(0)
    v_add_u32 v29, v24, v25
    v_add_u32 v30, v29, v26
    v_add_u32 v31, v30, v27
    v_mov_b32 v32, v31""")
    scan_row(a,32)
    a(f"""s_nop 1
    v_add_u32_dpp v32, v32, v32 row_bcast:15 row_mask:0xa bank_mask:0xf
    s_nop 1
    v_add_u32_dpp v32, v32, v32 row_bcast:31 row_mask:0xc bank_mask:0xf
    s_nop 1
    v_sub_u32 v32, v32, v31
    v_add_u32 v33, v32, v24
    v_add_u32 v34, v32, v29
    v_add_u32 v35, v32, v30
    v_add_u32 v17, s44, v16
    ds_write_b128 v17, v[32:35]
    v_lshl_or_b32 v80, v24, 16, v32
    v_lshl_or_b32 v82, v25, 16, v33
    v_lshl_or_b32 v84, v26, 16, v34
    v_lshl_or_b32 v86, v27, 16, v35
    s_mov_b64 exec, s[78:79]""")
    for i in range(4):
        a(f"v_add_u32 v16, s44, v{8+i}\nds_read_b32 v{36+i}, v16")
    a("s_waitcnt lgkmcnt(0)")
    for i in range(4):
        a(f"v_add_u32 v16, v{36+i}, v{20+i}\nv_lshlrev_b32 v16, 3, v16\nv_add_u32 v16, {B_SORT}, v16\nds_write_b64 v16, v[{40+2*i}:{41+2*i}]")
    a(f"""s_mov_b64 exec, -1
    F_noscan:
    s_lshr_b32 s46, s{S_W}, 2
    s_and_b32 s47, s{S_W}, 3""")
    gemm_addr(a,46,47,VL,8,9,10)
    Q=48; H=64
    gemm_core(a,8,9,10,Q,H,24,32)
    st(2)
    a(f"""s_movk_i32 s44, {SPIN}
    F_nonce_poll:
    s_waitcnt vmcnt(0)
    v_readfirstlane_b32 s{S_NONCE}, v7
    s_sub_u32 s44, s44, 1
    s_cbranch_scc1 F_nonce_ok
    s_cmp_lg_u32 s{S_NONCE}, 0
    s_cbranch_scc1 F_nonce_ok
    buffer_load_dword v7, v6, s[80:83], 0 offen sc1
    s_branch F_nonce_poll
    F_nonce_ok:
    s_mul_i32 s44, s2, {NB}
    s_add_u32 s44, s44, s46
    s_mul_i32 s44, s44, {RS}
    s_lshl_b32 s45, s47, 7
    s_add_u32 s44, s44, s45
    v_mul_u32_u24 v11, {RS}, v{V_H16}
    v_and_b32 v12, 31, v{VL}
    v_lshl_add_u32 v11, v12, 2, v11
    v_add_u32 v11, s44, v11
    s_mov_b32 s45, {f2u(QSCALE):#x}
    s_nop 1""")
    for r in range(13):
        a(f"v_mul_f32 v{Q+r}, s45, v{Q+r}")
        a(f"v_cvt_pk_bf16_f32 v{Q+r}, v{H+r}, v{Q+r}")
        if r and (r&3)==0: a(f"v_add_u32 v11, {5*4*RS}, v11")
        elif r: a(f"v_add_u32 v11, {4*RS}, v11")
        if r==12: a(f"s_cmp_ge_u32 s46, 2\ns_cbranch_scc1 F_q\ns_mov_b32 exec_hi, 0")
        a(f"buffer_store_dword v{Q+r}, v11, s[72:75], 0 offen sc1")
    a(f"""F_q:
    s_mov_b64 exec, -1
    s_barrier
    s_lshl_b32 s44, s{S_W}, 11
    s_add_u32 s44, s44, {L_W}
    v_lshl_add_u32 v16, v{VL}, 4, s44
    ds_write_b128 v16, v[88:91]
    ds_write_b128 v16, v[92:95] offset:1024
    ds_write_b128 v16, v[96:99] offset:32768
    ds_write_b128 v16, v[100:103] offset:33792
    v_cmp_gt_u32 vcc, {CH//2}, v{VT}
    s_cmp_lt_u32 s2, {NCH}
    s_cselect_b64 s[46:47], vcc, 0
    s_mov_b64 exec, s[46:47]
    s_cbranch_execz F_noent
    v_add_u32 v16, {B_SORT}, v4
    ds_read_b128 v[8:11], v16
    s_mul_i32 s45, s2, {CH*8}
    v_add_u32 v5, s45, v4
    s_waitcnt lgkmcnt(0)
    buffer_store_dwordx4 v[8:11], v5, s[32:35], 0 offen sc1
    F_noent:
    s_mov_b64 exec, -1
    s_waitcnt vmcnt(0) lgkmcnt(0)""")
    st(3)
    a(f"""s_barrier
    s_cmp_lg_u32 s{S_W}, 0
    s_cbranch_scc1 F_nocell
    v_mov_b32 v81, s{S_NONCE}
    v_mov_b32 v83, s{S_NONCE}
    v_mov_b32 v85, s{S_NONCE}
    v_mov_b32 v87, s{S_NONCE}
    s_lshl_b32 s45, s2, 11
    v_lshl_add_u32 v16, v{VL}, 5, s45
    buffer_store_dwordx4 v[80:83], v16, s[36:39], 0 offen sc1
    buffer_store_dwordx4 v[84:87], v16, s[36:39], 0 offen offset:16 sc1
    F_nocell:
    v_mov_b32 v24, 0
    v_mov_b32 v25, 0
    v_mov_b32 v26, 0
    v_mov_b32 v27, 0
    v_add_u32 v16, {L_ST}, v4
    ds_write_b128 v16, v[24:27]
    ds_write_b128 v16, v[24:27] offset:16384
    v_and_b32 v16, 0x3f0, v4
    v_add_u32 v16, {L_ST+32768}, v16
    ds_write_b128 v16, v[24:27]""")
    if opt.get('pufirst',0): pu(a,(16,17,18,64,24,32))
    a(f"""s_and_b32 s44, s2, 7
    s_lshl_b32 s44, s44, 5
    s_lshr_b32 s45, s2, 3
    s_add_u32 s44, s44, s45
    s_lshl_b32 s44, s44, 3
    v_lshrrev_b32 v19, 2, v{VT}
    v_lshl_add_u32 v18, v19, 11, s44
    """)
    if not opt.get('pufirst',0):
        a("buffer_load_dwordx2 v[20:21], v18, s[36:39], 0 offen sc1")
        pu(a,(16,17,22,64,24,32))
        a(f"s_movk_i32 s44, {SPIN}\ns_branch F_cell_chk")
    a(f"""s_movk_i32 s44, {SPIN}
    F_cell_poll:
    buffer_load_dwordx2 v[20:21], v18, s[36:39], 0 offen sc1
    F_cell_chk:
    s_waitcnt vmcnt(0)
    v_cmp_eq_u32 vcc, s{S_NONCE}, v21
    s_cmp_eq_u64 vcc, -1
    s_cbranch_scc1 F_cell_ok
    s_sub_u32 s44, s44, 1
    s_cbranch_scc1 F_cell_ok
    s_sleep {opt.get('csleep',1)}
    s_branch F_cell_poll
    F_cell_ok:
    v_cndmask_b32 v21, 0, v20, vcc""")
    st(4)
    a(f"""s_branch F_take
    K2_round:""")
    lane_tid(a)
    a(f"""s_barrier
    s_cmp_lg_u32 s{S_W}, 7
    s_cbranch_scc1 F_noclr
    v_mov_b32 v24, 0
    v_mov_b32 v25, 0
    v_mov_b32 v26, 0
    v_mov_b32 v27, 0
    v_lshlrev_b32 v20, 4, v{VL}
    v_min_u32 v20, 304, v20
    ds_write_b128 v20, v[24:27] offset:{L_CNT}
    s_waitcnt lgkmcnt(0)
    F_noclr:
    s_barrier
    v_lshrrev_b32 v19, 2, v{VT}
    v_lshlrev_b32 v20, 2, v19
    ds_read_b32 v21, v20 offset:{L_STATE}
    s_waitcnt lgkmcnt(0)
    F_take:
    v_lshrrev_b32 v22, 16, v21
    v_min_u32 v23, 32, v22
    v_and_b32 v21, 0xffff, v21
    v_and_b32 v28, 3, v{VT}
    v_mov_b32 v29, 0
    v_cmp_eq_u32 vcc, 0, v28
    s_and_saveexec_b64 s[44:45], vcc
    ds_add_rtn_u32 v30, v29, v23 offset:{L_MISC+M_TICKET}
    s_waitcnt lgkmcnt(0)
    v_add_u32 v30, v30, v23
    v_cmp_ge_u32 vcc, {CAP}, v30
    s_nop 1
    v_cndmask_b32 v23, 0, v23, vcc
    v_sub_u32 v22, v22, v23
    v_add_u32 v30, v21, v23
    v_lshl_or_b32 v30, v22, 16, v30
    v_lshlrev_b32 v31, 2, v19
    ds_write_b32 v31, v30 offset:{L_STATE}
    v_cmp_lt_u32 vcc, 0, v22
    s_and_b64 exec, exec, vcc
    v_mov_b32 v30, 1
    ds_write_b32 v29, v30 offset:{L_MISC+M_MORE}
    s_mov_b64 exec, s[44:45]
    s_nop 4
    v_mov_b32_dpp v23, v23 quad_perm:[0,0,0,0] row_mask:0xf bank_mask:0xf
    s_movk_i32 s46, {CH}
    v_mad_u32_u24 v30, v19, s46, v21
    v_lshlrev_b32 v28, 1, v28
    v_add_u32 v30, v30, v28
    v_lshlrev_b32 v30, 3, v30
    v_sub_u32 v23, v23, v28""")
    for k in range(4):
        a(f"""v_cmp_lt_i32 vcc, {8*k}, v23
        s_cbranch_vccz F_ld_done
        s_mov_b64 exec, vcc
        buffer_load_dwordx4 v[{32+4*k}:{35+4*k}], v30, s[32:35], 0 offen offset:{64*k} sc1
        s_mov_b64 exec, -1""")
    a(f"""F_ld_done:
    v_mov_b32 v29, 1
    s_waitcnt vmcnt(0)""")
    for k in range(4):
        for i in range(2):
            a(f"v_cmp_lt_i32 vcc, {8*k+i}, v23")
            if i==0: a("s_cbranch_vccz F_rk_done")
            a(f"""v_lshrrev_b32 v16, 24, v{32+4*k+2*i}
            s_mov_b64 exec, vcc
            ds_add_rtn_u32 v{64+2*k+i}, v16, v29 offset:{L_CNT}
            s_mov_b64 exec, -1""")
    a(f"""F_rk_done:
    s_waitcnt lgkmcnt(0)""")
    st(5)
    a("s_barrier")
    npf=opt.get('pf',1)
    if npf:
        a(f"""s_cmp_eq_u32 s{S_FIRST}, 0
        s_cbranch_scc1 F_nopf
        s_lshr_b32 s44, s2, 3
        s_lshl_b32 s44, s44, 4
        s_add_u32 s44, s44, s{S_W}
        s_mul_i32 s44, s44, {npf*16*128}
        v_lshl_add_u32 v16, v{VL}, 7, s44
        v_cmp_gt_u32 vcc, {npf*16}, v{VL}
        s_mov_b64 exec, vcc
        buffer_load_dword v124, v16, s[72:75], 0 offen sc1
        s_mov_b64 exec, -1
        F_nopf:""")
    a(f"""v_lshlrev_b32 v16, 2, v{VL}
    ds_read_b32 v17, v16 offset:{L_CNT}
    v_mov_b32 v16, 0
    ds_read_b32 v18, v16 offset:{L_MISC+M_MORE}
    s_waitcnt lgkmcnt(0)
    v_mov_b32 v20, v17
    v_readfirstlane_b32 s{S_MORE}, v18""")
    scan_row(a,20)
    a("s_nop 1")
    for g in range(4): a(f"v_readlane_b32 s{80+g}, v20, {16*g+15}")
    a("v_sub_u32 v20, v20, v17")
    for g in range(4): a(f"s_add_u32 s{84+g}, s{80+g}, 31\ns_lshr_b32 s{84+g}, s{84+g}, 5")
    a(f"""s_mov_b32 s88, 0
    s_mov_b32 s89, s84
    s_add_u32 s90, s89, s85
    s_add_u32 s91, s90, s86""")
    for g in range(1,4):
        a(f"""s_lshl_b32 s44, s{88+g}, 5
        v_mov_b32 v16, s44
        s_nop 1
        v_add_u32_dpp v20, v16, v20 quad_perm:[0,1,2,3] row_mask:{1<<g:#x} bank_mask:0xf""")
    a(f"""s_mov_b32 s46, 0xffffff
    s_mov_b32 s47, {(N-1)*RS}""")
    for k in range(4):
        a(f"v_cmp_lt_i32 vcc, {8*k}, v23\ns_cbranch_vccz F_pos_done")
        for i in range(2):
            a(f"v_lshrrev_b32 v{16+i}, 24, v{32+4*k+2*i}\nds_bpermute_b32 v{16+i}, v{16+i}, v20")
        for i in range(2):
            a(f"v_and_b32 v{24+i}, s46, v{32+4*k+2*i}\nv_min_u32 v{24+i}, s47, v{24+i}\nv_add_u32 v{24+i}, 128, v{24+i}")
        a("s_waitcnt lgkmcnt(0)")
        for i in range(2):
            a(f"""v_add_u32 v{16+i}, v{16+i}, v{64+2*k+i}
            v_lshlrev_b32 v18, 5, v{16+i}
            v_and_b32 v18, 128, v18
            v_sub_u32 v18, v{24+i}, v18
            v_cmp_lt_i32 vcc, {8*k+i}, v23
            v_lshlrev_b32 v{16+i}, 2, v{16+i}
            v_add_u32 v{16+i}, {L_OFFS}, v{16+i}
            s_mov_b64 exec, vcc
            ds_write_b32 v{16+i}, v18
            ds_write_b32 v{16+i}, v{33+4*k+2*i} offset:{L_META-L_OFFS}
            s_mov_b64 exec, -1""")
    a(f"""F_pos_done:
    F_grp:
    s_max_u32 s{S_NSTEP}, s84, s85
    s_max_u32 s44, s86, s87
    s_max_u32 s{S_NSTEP}, s{S_NSTEP}, s44
    s_lshr_b32 s47, s{S_W}, 2
    s_mov_b32 s44, s80
    s_mov_b32 s46, s84
    s_mov_b32 s45, s88""")
    for g in range(1,4):
        a(f"""s_cmp_eq_u32 s47, {g}
        s_cselect_b32 s44, s{80+g}, s44
        s_cselect_b32 s46, s{84+g}, s46
        s_cselect_b32 s45, s{88+g}, s45""")
    a(f"""s_mov_b32 s{S_NT}, s46
    s_lshl_b32 s{S_PA}, s45, 7
    s_add_u32 s{S_PA}, s{S_PA}, {L_OFFS}
    s_mov_b32 s{S_P0}, s{S_PA}
    s_and_b32 s{S_J}, s{S_W}, 3
    s_lshl_b32 s{S_EWB}, s45, 10
    s_add_u32 s{S_EWB}, s{S_EWB}, {L_W}
    v_and_b32 v16, 31, v{VL}
    s_and_b32 s58, s44, 31
    s_cbranch_scc0 K2_nopad
    v_cmp_le_u32 vcc, s58, v16
    s_add_u32 s59, s45, s46
    s_sub_u32 s59, s59, 1
    s_lshl_b32 s59, s59, 7
    s_add_u32 s59, s59, {L_OFFS}
    s_mul_i32 s58, s2, {NB*RS}
    v_and_b32 v17, 4, v16
    v_lshlrev_b32 v17, 5, v17
    v_sub_u32 v17, 128, v17
    v_add_u32 v17, s58, v17
    v_lshl_add_u32 v18, v16, 2, s59
    v_mov_b32 v19, {PADROW}
    s_and_saveexec_b64 s[46:47], vcc
    ds_write_b32 v18, v17
    ds_write_b32 v18, v19 offset:{L_META-L_OFFS}
    s_mov_b64 exec, s[46:47]
    K2_nopad:
    s_waitcnt lgkmcnt(0)""")
    st(6)
    a("s_barrier")

def epilogue(a,opt,st):
    a(f"""s_cmp_lg_u32 s{S_MORE}, 0
    s_cbranch_scc1 K2_round
    s_mul_i32 s44, s2, {NB}
    s_lshr_b32 s45, s{S_W}, 2
    s_add_u32 s44, s44, s45
    s_lshl_b32 s44, s44, 8
    s_and_b32 s46, s{S_W}, 3
    s_lshl_b32 s46, s46, 6
    s_add_u32 s44, s44, s46
    s_sub_u32 s44, s44, {(L_META-L_OFFS)//2}
    v_lshlrev_b32 v16, 8, v{V_H16}
    v_lshrrev_b32 v17, 1, v{V_ML}
    v_add3_u32 v16, v16, v17, s44
    s_mov_b32 s47, {f2u(-LOG2E):#x}
    s_nop 4""")
    for r in range(13): a(f"v_mul_f32 v{V_Z+r}, s47, v{V_ACC+r}")
    for r in range(13): a(f"v_exp_f32 v{V_Z+r}, v{V_Z+r}")
    for r in range(13): a(f"v_add_f32 v{V_Z+r}, 1.0, v{V_Z+r}")
    for r in range(13): a(f"v_rcp_f32 v{V_Z+r}, v{V_Z+r}")
    for r in range(13): a(f"v_mul_f32 v{V_Z+r}, v{V_Z+r}, v{V_ACC+r}")
    for r in range(13): a(f"v_cvt_pk_bf16_f32 v{V_Z+r}, v{V_Z+r}, v{V_Z+r}")
    for r in range(13):
        if r==12:
            a(f"""s_cmp_ge_u32 s45, 2
            s_cbranch_scc1 K2_done
            s_mov_b32 exec_hi, 0""")
        if r and (r&3)==0: a(f"v_add_u32 v16, 8192, v16")
        a(f"buffer_store_short v{V_Z+r}, v16, s[52:55], 0 offen offset:{(r&3)*1024}{['',' sc1',' nt',' sc0 sc1'][opt.get('of',0)]}")

def gen(a,opt):
    st=Stamper(a,opt.get('stamp',0),94)
    a(kstart(KNAME))
    a(f"s_cmp_ge_u32 s2, {NWG}\ns_cbranch_scc1 K2_exit")
    st()
    prologue(a,opt,st); main_loop(a,opt,st); epilogue(a,opt,st)
    a("K2_done:"); st.flush(0,S_W,56,opt.get('amp')); a("K2_exit:\ns_endpgm")
    a(kdesc(KNAME,NV))
```

```python
import os
os.environ['L_W']='4096'
from common import *
KNAME='gather_scatter__edge_featured_mpnn_egc__graph_kernel'
QSCALE=-LOG2E*(1-0.0027)
CAP=1856
L_TBL=0; L_CNT=2560; L_MISC=L_CNT+256; L_STATE=L_MISC+64
assert L_STATE+1024<=L_W
STW=2080; PADROW=25
L_ST=L_XS+32768
L_OFFS=L_ST+16*STW+512
NSLOT=CAP+160
L_META=L_OFFS+NSLOT*4
F_LDS=L_META+NSLOT*4
assert F_LDS<=163840 and (CAP+128)//32<=64
B_CNT=L_ST; B_BASE=B_CNT+1024; B_SORT=B_BASE+7*1024
assert B_SORT+CH*8<=L_OFFS
SPIN=20000
M_TICKET=0; M_MORE=4
V_ACC=0; V_G=16; V_Z=48; V_IDX=64; V_P=80; V_C=88; V_E=92; V_I4=96; V_S=100; V_MSG=108; V_META=116
V_H16=118; V_SW=119; V_SR=120; V_ONE=121; V_ML=122; V_EL=123; V_T0=126; V_T1=127
NV=128
S_QH=8; S_EA=12; S_80=17; S_M31=18; S_W=20; S_W8=21; S_MORE=23; S_FIRST=60; S_NONCE=61
S_STEP=62; S_NSTEP=63; S_NT=64; S_PA=65; S_ERB=66; S_EWB=67; S_J=68; S_P0=69
V_CR=110; VL=V_MSG; VT=V_MSG+1

def lane_tid(a):
    a(f"""v_mbcnt_lo_u32_b32 v{VL}, -1, 0
    v_mbcnt_hi_u32_b32 v{VL}, -1, v{VL}
    v_lshl_add_u32 v{VT}, s{S_W}, 6, v{VL}""")
def lds_arrive(a, off, vt, sdst=None):
    a(f"v_mov_b32 v{vt}, 0\nv_mov_b32 v{vt+1}, 1\ns_mov_b64 exec, 1")
    if sdst is None: a(f"ds_add_u32 v{vt}, v{vt+1} offset:{L_MISC+off}\ns_mov_b64 exec, -1")
    else: a(f"ds_add_rtn_u32 v{vt+1}, v{vt}, v{vt+1} offset:{L_MISC+off}\ns_mov_b64 exec, -1\ns_waitcnt lgkmcnt(0)\nv_readfirstlane_b32 s{sdst}, v{vt+1}")
def lds_wait(a, off, target, vt, lab, nap=0):
    a(f"""v_mov_b32 v{vt}, 0
    {lab}:
    {'s_sleep 1' if nap else ''}
    ds_read_b32 v{vt+1}, v{vt} offset:{L_MISC+off}
    s_waitcnt lgkmcnt(0)
    v_readfirstlane_b32 s44, v{vt+1}
    s_cmp_lt_u32 s44, {target}
    s_cbranch_scc1 {lab}""")
def scan_row(a, v):
    for sh in (1,2,4,8): a(f"s_nop 1\nv_add_u32_dpp v{v}, v{v}, v{v} row_shr:{sh} row_mask:0xf bank_mask:0xf bound_ctrl:0")

def c_loads(a):
    srd(a,84,48,4096,add=65536)
    a(f"""v_and_b32 v0, 31, v{VL}
    s_and_b32 s44, s{S_W}, 3
    s_lshl_b32 s44, s44, 6
    v_lshlrev_b32 v1, 7, v{V_H16}
    v_lshl_add_u32 v1, v0, 1, v1
    v_add_u32 v1, s44, v1""")
    for i in range(8): a(f"buffer_load_ushort v{V_CR+i}, v1, s[84:87], 0 offen offset:{256*i}")
PROF=[0]
def tick(a,k):
    if not PROF[0]: return
    a(f"s_memtime s[92:93]\ns_waitcnt lgkmcnt(0)\ns_sub_u32 s91, s92, s90\ns_add_u32 s{95+k}, s{95+k}, s91\ns_mov_b32 s90, s92")
def e_slot(a, tt, dst):
    a(f"s_lshl_b32 s45, s{tt}, 10\ns_add_u32 s{dst}, s{S_EWB}, s45")
def fetch_e(a, ahead, lab):
    a(f"""s_cmp_lg_u32 s{S_J}, 0
    s_cbranch_scc1 {lab}
    s_add_u32 s46, s{S_STEP}, {ahead}
    s_cmp_ge_u32 s46, s{S_NT}
    s_cbranch_scc1 {lab}
    s_lshl_b32 s44, s46, 7
    s_add_u32 s44, s44, s{S_P0}
    v_add_u32 v{V_T1}, s44, v{V_ML}
    ds_read_b32 v{V_T0}, v{V_T1}""")
    e_slot(a,46,44)
    a(f"""s_mov_b32 m0, s44
    s_waitcnt lgkmcnt(0)
    v_and_or_b32 v{V_T1}, v{V_T0}, s{S_M31}, v{V_H16}""")
    if EM[0] is not None:
        a(f"s_cmp_lt_u32 s46, {EM[0]}\ns_cselect_b32 s44, -1, 0x1fffff\nv_and_b32 v{V_T1}, s44, v{V_T1}")
    a(f"""buffer_load_dwordx4 v{V_T1}, {sr(S_EA,4)}, 0 offen lds
    {lab}:""")
def fetch_g(a, par, ahead, lab):
    G=V_G+16*par
    a(f"""s_add_u32 s46, s{S_STEP}, {ahead}
    s_cmp_ge_u32 s46, s{S_NT}
    s_cbranch_scc1 {lab}
    v_add_u32 v{V_T1}, s{S_PA}, v{V_H16}""")
    for q in range(4): a(f"ds_read_b128 {vr(V_IDX+4*q,4)}, v{V_T1} offset:{32*q}")
    a(f"""v_add_u32 v{V_T1}, s{S_PA}, v{V_ML}
    ds_read_b32 v{V_META+par}, v{V_T1}
    s_add_u32 s{S_PA}, s{S_PA}, 128""")
    for q in range(4):
        a(f"s_waitcnt lgkmcnt({4-q})")
        for i in range(4*q,4*q+4): a(f"buffer_load_dword v{G+i}, v{V_IDX+i}, {sr(S_QH,4)}, 0 offen{QF[0]}")
    a(f"{lab}:")
QF=[' sc1']; EM=[None]
def step_body(a, par, opt):
    prio=opt.get('prio',0); G=V_G+16*par; Z=V_Z; u=str(par)
    BP=opt.get('bp',4); ED=BP+2
    a("s_waitcnt lgkmcnt(0)")
    if BP==1: a("s_barrier")
    elif BP==2:
        if par==0: a("s_barrier")
        if opt.get('pp',1): a(f"s_setprio {2*(1-par) if prio==3 else 1-par}")
    else:
        b='s_barrier' if par==0 else ''
        a(f"""s_and_b32 s44, s{S_STEP}, 2
        s_cbranch_scc1 H_p1{u}
        {b}
        s_setprio {3-par}
        s_branch H_p2{u}
        H_p1{u}:
        s_setprio {1-par}
        H_p2{u}:""")
    tick(a,0)
    a(f"""s_cmp_ge_u32 s{S_STEP}, s{S_NT}
    s_cbranch_scc1 H_idle{u}
    v_and_b32 v{V_T0}, 31, v{V_META+par}
    v_mad_u32_u24 v{V_T1}, v{V_T0}, s{S_80}, v{V_H16}
    v_mad_u32_u24 v{V_T0}, v{V_T0}, s{S_80}, v{V_SW}
    ds_read_b128 {vr(V_S,4)}, v{V_T1} offset:{L_TBL}
    ds_read_b128 {vr(V_S+4,4)}, v{V_T1} offset:{L_TBL+32}""")
    e_slot(a,S_STEP,44)
    a(f"""v_add_u32 v{V_T1}, s44, v{V_EL}
    ds_read_b128 {vr(V_E,4)}, v{V_T1}
    s_waitcnt vmcnt(17)
    s_add_u32 s44, s{S_STEP}, {ED-1}
    s_cmp_lt_u32 s44, s{S_NT}
    s_cselect_b32 s45, s{S_J}, 1
    s_cmp_eq_u32 s45, 0
    s_cbranch_scc1 H_go{u}
    s_waitcnt vmcnt(16)
    s_add_u32 s44, s{S_STEP}, 1
    s_cmp_lt_u32 s44, s{S_NT}
    s_cbranch_scc1 H_go{u}
    s_waitcnt vmcnt(0)
    H_go{u}:
    s_waitcnt lgkmcnt(0)""")
    tick(a,1)
    a(f"{MFMA} {vr(Z,16)}, {vr(V_E,4)}, {vr(V_C,4)}, {vr(G,16)}")
    X=opt.get('x',0)
    if not X&1: a(f"{MFMA} {vr(Z,16)}, {vr(V_S,4)}, {vr(V_P,4)}, {vr(Z,16)}")
    if not X&2: a(f"{MFMA} {vr(Z,16)}, {vr(V_S+4,4)}, {vr(V_P+4,4)}, {vr(Z,16)}")
    if X&3: a("s_nop 1")
    a(f"ds_write_b16_d16_hi v{V_T0}, v{V_ONE}")
    a(f"ds_read_b128 {vr(V_S,4)}, v{V_SR}")
    a(f"ds_read_b128 {vr(V_S+4,4)}, v{V_SR} offset:32")
    a(f"ds_write_b16 v{V_T0}, v{V_ONE}")
    a("s_nop 0")
    if X&4: a("s_nop 7")
    else:
        for i in range(16): a(f"v_lshlrev_b32 v{G+i}, 16, v{G+i}")
    pk=opt.get('pk',0)
    hi={0:None,1:1,2:3-par,3:2*(1-par)+1}[prio]; lo={0:None,1:0,2:1-par,3:2*(1-par)}[prio]
    if prio: a(f"s_setprio {hi}")
    for i in range(16): a(f"v_exp_f32 v{Z+i}, v{Z+i}")
    if prio: a(f"s_setprio {lo}")
    if pk&1:
        for i in range(8): a(f"v_pk_add_f32 v[{Z+2*i}:{Z+2*i+1}], v[{Z+2*i}:{Z+2*i+1}], 1.0 op_sel_hi:[1,0]")
    elif not X&8:
        for i in range(16): a(f"v_add_f32 v{Z+i}, 1.0, v{Z+i}")
    if prio: a(f"s_setprio {hi}")
    if not X&16:
        for i in range(16): a(f"v_rcp_f32 v{Z+i}, v{Z+i}")
    if prio: a(f"s_setprio {lo}")
    if pk&2:
        for i in range(8): a(f"v_pk_mul_f32 v[{Z+2*i}:{Z+2*i+1}], v[{Z+2*i}:{Z+2*i+1}], v[{G+2*i}:{G+2*i+1}]")
    else:
        for i in range(16): a(f"v_mul_f32 v{Z+i}, v{Z+i}, v{G+i}")
    for i in range(8): a(f"v_cvt_pk_bf16_f32 v{V_MSG+i}, v{Z+2*i}, v{Z+2*i+1}")
    a("s_waitcnt lgkmcnt(0)")
    a("s_nop 0")
    a(f"{MFMA} {vr(V_ACC,16)}, {vr(V_S,4)}, {vr(V_MSG,4)}, {vr(V_ACC,16)}")
    a(f"{MFMA} {vr(V_ACC,16)}, {vr(V_S+4,4)}, {vr(V_MSG+4,4)}, {vr(V_ACC,16)}")
    tick(a,2)
    fetch_e(a,ED,f"H_fe{u}")
    tick(a,3)
    fetch_g(a,par,2,f"H_fg{u}")
    tick(a,4)
    a(f"""H_idle{u}:
    s_add_u32 s{S_STEP}, s{S_STEP}, 1
    s_cmp_ge_u32 s{S_STEP}, s{S_NSTEP}""")

def main_loop(a,opt,st):
    EM[0]=opt.get('em')
    QF[0]=['',' sc1'][opt.get('qf',1)]
    if opt.get('cyc',0): a('s_memtime s[92:93]\ns_waitcnt lgkmcnt(0)\ns_mov_b32 s79, s92')
    a(f"s_mov_b32 s{S_STEP}, 0")
    if opt.get('prof',0):
        PROF[0]=1
        a("s_memtime s[92:93]\ns_waitcnt lgkmcnt(0)\ns_mov_b32 s90, s92\ns_mov_b32 s79, s92")
        for k in range(6): a(f"s_mov_b32 s{95+k}, 1")
    BP=opt.get('bp',4); ED=BP+2
    for k in range(ED-1): fetch_e(a,k,f"H_pe{k}")
    fetch_g(a,0,0,"H_pg0")
    if opt.get('rb',1): a("s_barrier")
    fetch_e(a,ED-1,"H_pel")
    fetch_g(a,1,1,"H_pg1")
    st(7)
    a(f"""s_mov_b32 s{S_FIRST}, 0
    s_waitcnt vmcnt(33)
    s_cmp_ge_u32 s{S_NT}, {ED}
    s_cbranch_scc1 H_loop
    s_waitcnt vmcnt(0)
    .p2align 3
    H_loop:""")
    step_body(a,0,opt)
    a("s_cbranch_scc1 H_done")
    step_body(a,1,opt)
    a("s_cbranch_scc0 H_loop\nH_done:")
    if opt.get('prof',0): a("s_sub_u32 s100, s90, s79")
    if opt.get('cyc',0): a('s_memtime s[92:93]\ns_waitcnt lgkmcnt(0)\ns_sub_u32 s95, s92, s79')
    if opt.get('nst',0): a(f's_add_u32 s96, s91, s87\ns_lshl_b32 s96, s96, 8\ns_add_u32 s95, s96, s{S_NSTEP}')
    st(8)
def pu(a,regs):
    ta,tb,tc,D,A,B=regs
    a(f"s_lshr_b32 s46, s{S_W}, 2\ns_and_b32 s47, s{S_W}, 3")
    gemm_addr(a,46,47,VL,ta,tb,tc)
    gemm_core(a,ta,tb,tc,D,V_ACC,A,B)
    a(f"s_mov_b32 s44, {f2u(-LOG2E):#x}")
    for i in range(8): a(f"v_lshlrev_b32 v{V_CR+i}, 16, v{V_CR+i}\nv_mul_f32 v{V_CR+i}, s44, v{V_CR+i}")
    for i in range(4): a(f"v_cvt_pk_bf16_f32 v{V_C+i}, v{V_CR+2*i}, v{V_CR+2*i+1}")
    for r in range(16): a(f"v_mul_f32 v{D+r}, s44, v{D+r}")
    for r in range(8): a(f"v_cvt_pk_bf16_f32 v{V_P+r}, v{D+2*r}, v{D+2*r+1}")

def prologue(a, opt, st):
    xl=opt.get('xlate',1)
    a(f"""s_load_dwordx4 s[4:7], s[0:1], 0
    s_load_dwordx4 s[64:67], s[0:1], 16
    s_load_dwordx4 s[28:31], s[0:1], 32
    s_load_dwordx4 s[48:51], s[0:1], 48
    s_load_dwordx4 s[80:83], s[0:1], 64
    s_memrealtime s[58:59]
    v_lshrrev_b32 v2, 6, v0
    v_and_b32 v{VL}, 63, v0
    v_readfirstlane_b32 s{S_W}, v2
    v_mov_b32 v{VT}, v0
    s_mul_i32 s45, s2, {CH*4}
    v_lshlrev_b32 v4, 4, v0
    v_add_u32 v5, s45, v4
    v_cmp_gt_u32 vcc, {CH//4}, v0
    s_cmp_lt_u32 s2, {NCH}
    s_cselect_b64 s[78:79], vcc, 0
    s_waitcnt lgkmcnt(0)
    s_mov_b32 s68, s66
    s_mov_b32 s69, s67""")
    srd(a,64,64,E*4); srd(a,68,68,E*4)
    a(f"""s_mov_b64 exec, s[78:79]
    s_cbranch_execz F_noload
    buffer_load_dwordx4 v[8:11], v5, s[68:71], 0 offen
    buffer_load_dwordx4 v[12:15], v5, s[64:67], 0 offen
    F_noload:
    s_mov_b64 exec, -1
    s_mov_b32 s12, s6
    s_mov_b32 s13, s7
    s_mov_b32 s56, s82
    s_mov_b32 s57, s83
    s_mov_b32 s76, s28
    s_mov_b32 s77, s29""")
    srd(a,80,80,256)
    a(f"""s_or_b32 s58, s58, 1
    v_mov_b32 v6, 0
    v_mov_b32 v7, s58
    s_add_u32 s45, s2, s{S_W}
    s_cmp_lg_u32 s45, 0
    s_cbranch_scc1 F_nononce
    s_mov_b64 exec, 1
    buffer_store_dword v7, v6, s[80:83], 0 offen sc1
    s_mov_b64 exec, -1
    F_nononce:""")
    srd(a,4,4,N*256); srd(a,24,48,32768,add=32768); srd(a,28,30,32768)
    stage_x(a,S_W,2,4,VL,(16,17,18,19))
    stage_w(a,S_W,24,28,VL,(16,17,18))
    a("v_mov_b32 v2, v18")
    srd(a,12,12,E*32); srd(a,32,56,NCH*CH*8,add=WS_ENT); srd(a,36,56,NWG*2048,add=WS_CELL); srd(a,52,50,N*256)
    srd(a,72,56,N*RS,add=WS_QH)
    a(f"""s_and_b32 s46, s{S_W}, 3
    s_lshl_b32 s44, s46, 7
    s_add_u32 s44, s44, {WS_QH-128}
    s_add_u32 s8, s56, s44
    s_addc_u32 s9, s57, 0
    s_or_b32 s9, s9, 0x40000
    s_mov_b32 s10, {N*RS+128}
    s_mov_b32 s11, 0x800000
    v_lshrrev_b32 v16, 5, v{VL}
    v_lshlrev_b32 v{V_H16}, 4, v16
    v_and_b32 v17, 31, v{VL}
    """)
    a(f"""s_mul_i32 s19, s{S_W}, {STW}
    s_add_u32 s19, s19, {L_ST}
    s_movk_i32 s{S_80}, 80
    s_mov_b32 s{S_M31}, 0xffffffe0
    v_mad_u32_u24 v{V_SR}, v17, s{S_80}, v{V_H16}
    v_add_u32 v{V_SR}, s19, v{V_SR}
    v_and_b32 v19, 19, v17
    v_and_b32 v20, 4, v17
    v_lshl_add_u32 v19, v20, 1, v19
    v_and_b32 v20, 8, v17
    v_lshrrev_b32 v20, 1, v20
    v_add_u32 v19, v19, v20
    v_lshlrev_b32 v19, 1, v19
    v_add_u32 v{V_SW}, s19, v19
    v_mov_b32 v{V_ONE}, 0x3f800000
    v_lshlrev_b32 v{V_ML}, 2, v17
    v_add_u32 v{V_ML}, {L_META-L_OFFS}, v{V_ML}
    v_lshlrev_b32 v{V_EL}, 4, v{VL}
    v_mov_b32 v24, 0
    v_mov_b32 v25, 0
    v_mov_b32 v26, 0
    v_mov_b32 v27, 0
    s_cmp_lg_u32 s{S_W}, 7
    s_cbranch_scc1 F_noinit
    v_lshlrev_b32 v20, 4, v{VL}
    v_add_u32 v21, {B_CNT}, v20
    ds_write_b128 v21, v[24:27]
    ds_write_b128 v20, v[24:27]
    ds_write_b128 v20, v[24:27] offset:1024
    ds_write_b128 v20, v[24:27] offset:2048
    v_mad_u32_u24 v20, v17, s{S_80}, v19
    ds_write_b16_d16_hi v20, v{V_ONE} offset:{L_TBL}
    s_waitcnt lgkmcnt(0)
    F_noinit:
    s_mov_b32 s{S_FIRST}, 1
    s_barrier""")
    a(f"""s_mov_b64 exec, s[78:79]
    s_cbranch_execz F_norank
    s_mov_b32 s44, {M49}
    s_movk_i32 s45, {NB}
    s_movk_i32 s46, {RS}
    s_mul_i32 s47, s2, {CH}
    v_lshl_add_u32 v3, v0, 2, s47
    v_lshlrev_b32 v3, 5, v3
    v_mov_b32 v7, 1
    s_waitcnt vmcnt(6)""")
    for i in range(4):
        a(f"""v_lshrrev_b32 v16, 1, v{8+i}
        v_mul_hi_u32 v16, v16, s44
        v_mul_u32_u24 v17, s45, v16
        v_sub_u32 v17, v{8+i}, v17
        v_and_b32 v18, 7, v16
        v_bfe_u32 v16, v16, 3, 5
        v_lshl_add_u32 v16, v18, 5, v16
        v_lshlrev_b32 v{8+i}, 2, v16
        v_add_u32 v16, {B_CNT}, v{8+i}
        ds_add_rtn_u32 v{20+i}, v16, v7
        v_lshrrev_b32 v16, 2, v17
        v_add3_u32 v{41+2*i}, v3, v16, {32*i if i<3 else 64}
        v_and_b32 v17, 3, v17
        v_bfe_u32 v16, v{12+i}, 11, 4
        v_lshl_add_u32 v16, v17, 4, v16
        v_mul_u32_u24 v17, s46, v{12+i}
        v_lshl_or_b32 v{40+2*i}, v16, 26, v17""")
        if i==3: a(f"v_add_u32 v{41+2*i}, 32, v{41+2*i}")
    a(f"""F_norank:
    s_mov_b64 exec, -1
    v_mov_b32 v6, 0
    s_waitcnt vmcnt(0) lgkmcnt(0)""")
    st(1)
    a("s_barrier\nbuffer_load_dword v7, v6, s[80:83], 0 offen sc1")
    srd(a,24,48,32768); srd(a,28,76,32768)
    for k in range(4): a(f"buffer_load_dwordx4 {vr(88+4*k,4)}, v2, s[{24+4*(k>>1)}:{27+4*(k>>1)}], 0 offen offset:{1024*(k&1)}")
    c_loads(a)
    a(f"""    s_cmp_ge_u32 s{S_W}, 7
    s_cbranch_scc1 F_noscan
    v_lshlrev_b32 v16, 4, v{VL}
    v_add_u32 v17, {B_CNT}, v16
    ds_read_b128 v[24:27], v17
    s_lshl_b32 s44, s{S_W}, 10
    s_add_u32 s44, s44, {B_BASE}
    s_waitcnt lgkmcnt(0)
    v_add_u32 v29, v24, v25
    v_add_u32 v30, v29, v26
    v_add_u32 v31, v30, v27
    v_mov_b32 v32, v31""")
    scan_row(a,32)
    a(f"""s_nop 1
    v_add_u32_dpp v32, v32, v32 row_bcast:15 row_mask:0xa bank_mask:0xf
    s_nop 1
    v_add_u32_dpp v32, v32, v32 row_bcast:31 row_mask:0xc bank_mask:0xf
    s_nop 1
    v_sub_u32 v32, v32, v31
    v_add_u32 v33, v32, v24
    v_add_u32 v34, v32, v29
    v_add_u32 v35, v32, v30
    v_add_u32 v17, s44, v16
    ds_write_b128 v17, v[32:35]
    v_lshl_or_b32 v80, v24, 16, v32
    v_lshl_or_b32 v82, v25, 16, v33
    v_lshl_or_b32 v84, v26, 16, v34
    v_lshl_or_b32 v86, v27, 16, v35
    s_mov_b64 exec, s[78:79]""")
    for i in range(4):
        a(f"v_add_u32 v16, s44, v{8+i}\nds_read_b32 v{36+i}, v16")
    a("s_waitcnt lgkmcnt(0)")
    for i in range(4):
        a(f"v_add_u32 v16, v{36+i}, v{20+i}\nv_lshlrev_b32 v16, 3, v16\nv_add_u32 v16, {B_SORT}, v16\nds_write_b64 v16, v[{40+2*i}:{41+2*i}]")
    a(f"""s_mov_b64 exec, -1
    F_noscan:
    s_lshr_b32 s46, s{S_W}, 2
    s_and_b32 s47, s{S_W}, 3""")
    gemm_addr(a,46,47,VL,8,9,10)
    Q=48; H=64
    gemm_core(a,8,9,10,Q,H,24,32)
    st(2)
    a(f"""s_movk_i32 s44, {SPIN}
    F_nonce_poll:
    s_waitcnt vmcnt(0)
    v_readfirstlane_b32 s{S_NONCE}, v7
    s_sub_u32 s44, s44, 1
    s_cbranch_scc1 F_nonce_ok
    s_cmp_lg_u32 s{S_NONCE}, 0
    s_cbranch_scc1 F_nonce_ok
    buffer_load_dword v7, v6, s[80:83], 0 offen sc1
    s_branch F_nonce_poll
    F_nonce_ok:
    s_mul_i32 s44, s2, {NB}
    s_add_u32 s44, s44, s46
    s_mul_i32 s44, s44, {RS}
    s_lshl_b32 s45, s47, 7
    s_add_u32 s44, s44, s45
    v_mul_u32_u24 v11, {RS}, v{V_H16}
    v_and_b32 v12, 31, v{VL}
    v_lshl_add_u32 v11, v12, 2, v11
    v_add_u32 v11, s44, v11
    s_mov_b32 s45, {f2u(QSCALE):#x}
    s_nop 1""")
    for r in range(13):
        a(f"v_mul_f32 v{Q+r}, s45, v{Q+r}")
        a(f"v_cvt_pk_bf16_f32 v{Q+r}, v{H+r}, v{Q+r}")
        if r and (r&3)==0: a(f"v_add_u32 v11, {5*4*RS}, v11")
        elif r: a(f"v_add_u32 v11, {4*RS}, v11")
        if r==12: a(f"s_cmp_ge_u32 s46, 2\ns_cbranch_scc1 F_q\ns_mov_b32 exec_hi, 0")
        a(f"buffer_store_dword v{Q+r}, v11, s[72:75], 0 offen sc1")
    a(f"""F_q:
    s_mov_b64 exec, -1
    s_barrier
    s_lshl_b32 s44, s{S_W}, 11
    s_add_u32 s44, s44, {L_W}
    v_lshl_add_u32 v16, v{VL}, 4, s44
    ds_write_b128 v16, v[88:91]
    ds_write_b128 v16, v[92:95] offset:1024
    ds_write_b128 v16, v[96:99] offset:32768
    ds_write_b128 v16, v[100:103] offset:33792
    v_cmp_gt_u32 vcc, {CH//2}, v{VT}
    s_cmp_lt_u32 s2, {NCH}
    s_cselect_b64 s[46:47], vcc, 0
    s_mov_b64 exec, s[46:47]
    s_cbranch_execz F_noent
    v_add_u32 v16, {B_SORT}, v4
    ds_read_b128 v[8:11], v16
    s_mul_i32 s45, s2, {CH*8}
    v_add_u32 v5, s45, v4
    s_waitcnt lgkmcnt(0)
    buffer_store_dwordx4 v[8:11], v5, s[32:35], 0 offen sc1
    F_noent:
    s_mov_b64 exec, -1
    s_waitcnt vmcnt(0) lgkmcnt(0)""")
    st(3)
    a(f"""s_barrier
    s_cmp_lg_u32 s{S_W}, 0
    s_cbranch_scc1 F_nocell
    v_mov_b32 v81, s{S_NONCE}
    v_mov_b32 v83, s{S_NONCE}
    v_mov_b32 v85, s{S_NONCE}
    v_mov_b32 v87, s{S_NONCE}
    s_lshl_b32 s45, s2, 11
    v_lshl_add_u32 v16, v{VL}, 5, s45
    buffer_store_dwordx4 v[80:83], v16, s[36:39], 0 offen sc1
    buffer_store_dwordx4 v[84:87], v16, s[36:39], 0 offen offset:16 sc1
    F_nocell:
    v_mov_b32 v24, 0
    v_mov_b32 v25, 0
    v_mov_b32 v26, 0
    v_mov_b32 v27, 0
    v_add_u32 v16, {L_ST}, v4
    ds_write_b128 v16, v[24:27]
    ds_write_b128 v16, v[24:27] offset:16384
    v_and_b32 v16, 0x3f0, v4
    v_add_u32 v16, {L_ST+32768}, v16
    ds_write_b128 v16, v[24:27]""")
    if opt.get('pufirst',0): pu(a,(16,17,18,64,24,32))
    a(f"""s_and_b32 s44, s2, 7
    s_lshl_b32 s44, s44, 5
    s_lshr_b32 s45, s2, 3
    s_add_u32 s44, s44, s45
    s_lshl_b32 s44, s44, 3
    v_lshrrev_b32 v19, 2, v{VT}
    v_lshl_add_u32 v18, v19, 11, s44
    """)
    if not opt.get('pufirst',0):
        a("buffer_load_dwordx2 v[20:21], v18, s[36:39], 0 offen sc1")
        pu(a,(16,17,22,64,24,32))
        a(f"s_movk_i32 s44, {SPIN}\ns_branch F_cell_chk")
    a(f"""s_movk_i32 s44, {SPIN}
    F_cell_poll:
    buffer_load_dwordx2 v[20:21], v18, s[36:39], 0 offen sc1
    F_cell_chk:
    s_waitcnt vmcnt(0)
    v_cmp_eq_u32 vcc, s{S_NONCE}, v21
    s_cmp_eq_u64 vcc, -1
    s_cbranch_scc1 F_cell_ok
    s_sub_u32 s44, s44, 1
    s_cbranch_scc1 F_cell_ok
    s_sleep {opt.get('csleep',1)}
    s_branch F_cell_poll
    F_cell_ok:
    v_cndmask_b32 v21, 0, v20, vcc""")
    st(4)
    a(f"""s_branch F_take
    K2_round:""")
    lane_tid(a)
    a(f"""s_barrier
    s_cmp_lg_u32 s{S_W}, 7
    s_cbranch_scc1 F_noclr
    v_mov_b32 v24, 0
    v_mov_b32 v25, 0
    v_mov_b32 v26, 0
    v_mov_b32 v27, 0
    v_lshlrev_b32 v20, 4, v{VL}
    v_min_u32 v20, 304, v20
    ds_write_b128 v20, v[24:27] offset:{L_CNT}
    s_waitcnt lgkmcnt(0)
    F_noclr:
    s_barrier
    v_lshrrev_b32 v19, 2, v{VT}
    v_lshlrev_b32 v20, 2, v19
    ds_read_b32 v21, v20 offset:{L_STATE}
    s_waitcnt lgkmcnt(0)
    F_take:
    v_lshrrev_b32 v22, 16, v21
    v_min_u32 v23, 32, v22
    v_and_b32 v21, 0xffff, v21
    v_and_b32 v28, 3, v{VT}
    v_mov_b32 v29, 0
    v_cmp_eq_u32 vcc, 0, v28
    s_and_saveexec_b64 s[44:45], vcc
    ds_add_rtn_u32 v30, v29, v23 offset:{L_MISC+M_TICKET}
    s_waitcnt lgkmcnt(0)
    v_add_u32 v30, v30, v23
    v_cmp_ge_u32 vcc, {CAP}, v30
    s_nop 1
    v_cndmask_b32 v23, 0, v23, vcc
    v_sub_u32 v22, v22, v23
    v_add_u32 v30, v21, v23
    v_lshl_or_b32 v30, v22, 16, v30
    v_lshlrev_b32 v31, 2, v19
    ds_write_b32 v31, v30 offset:{L_STATE}
    v_cmp_lt_u32 vcc, 0, v22
    s_and_b64 exec, exec, vcc
    v_mov_b32 v30, 1
    ds_write_b32 v29, v30 offset:{L_MISC+M_MORE}
    s_mov_b64 exec, s[44:45]
    s_nop 4
    v_mov_b32_dpp v23, v23 quad_perm:[0,0,0,0] row_mask:0xf bank_mask:0xf
    s_movk_i32 s46, {CH}
    v_mad_u32_u24 v30, v19, s46, v21
    v_lshlrev_b32 v28, 1, v28
    v_add_u32 v30, v30, v28
    v_lshlrev_b32 v30, 3, v30
    v_sub_u32 v23, v23, v28""")
    for k in range(4):
        a(f"""v_cmp_lt_i32 vcc, {8*k}, v23
        s_cbranch_vccz F_ld_done
        s_mov_b64 exec, vcc
        buffer_load_dwordx4 v[{32+4*k}:{35+4*k}], v30, s[32:35], 0 offen offset:{64*k} sc1
        s_mov_b64 exec, -1""")
    a(f"""F_ld_done:
    v_mov_b32 v29, 1
    s_waitcnt vmcnt(0)""")
    for k in range(4):
        for i in range(2):
            a(f"v_cmp_lt_i32 vcc, {8*k+i}, v23")
            if i==0: a("s_cbranch_vccz F_rk_done")
            a(f"""v_lshrrev_b32 v16, 24, v{32+4*k+2*i}
            s_mov_b64 exec, vcc
            ds_add_rtn_u32 v{64+2*k+i}, v16, v29 offset:{L_CNT}
            s_mov_b64 exec, -1""")
    a(f"""F_rk_done:
    s_waitcnt lgkmcnt(0)""")
    st(5)
    a("s_barrier")
    npf=opt.get('pf',1)
    if npf:
        a(f"""s_cmp_eq_u32 s{S_FIRST}, 0
        s_cbranch_scc1 F_nopf
        s_lshr_b32 s44, s2, 3
        s_lshl_b32 s44, s44, 4
        s_add_u32 s44, s44, s{S_W}
        s_mul_i32 s44, s44, {npf*16*128}
        v_lshl_add_u32 v16, v{VL}, 7, s44
        v_cmp_gt_u32 vcc, {npf*16}, v{VL}
        s_mov_b64 exec, vcc
        buffer_load_dword v124, v16, s[72:75], 0 offen sc1
        s_mov_b64 exec, -1
        F_nopf:""")
    a(f"""v_lshlrev_b32 v16, 2, v{VL}
    ds_read_b32 v17, v16 offset:{L_CNT}
    v_mov_b32 v16, 0
    ds_read_b32 v18, v16 offset:{L_MISC+M_MORE}
    s_waitcnt lgkmcnt(0)
    v_mov_b32 v20, v17
    v_readfirstlane_b32 s{S_MORE}, v18""")
    scan_row(a,20)
    a("s_nop 1")
    for g in range(4): a(f"v_readlane_b32 s{80+g}, v20, {16*g+15}")
    a("v_sub_u32 v20, v20, v17")
    for g in range(4): a(f"s_add_u32 s{84+g}, s{80+g}, 31\ns_lshr_b32 s{84+g}, s{84+g}, 5")
    a(f"""s_mov_b32 s88, 0
    s_mov_b32 s89, s84
    s_add_u32 s90, s89, s85
    s_add_u32 s91, s90, s86""")
    for g in range(1,4):
        a(f"""s_lshl_b32 s44, s{88+g}, 5
        v_mov_b32 v16, s44
        s_nop 1
        v_add_u32_dpp v20, v16, v20 quad_perm:[0,1,2,3] row_mask:{1<<g:#x} bank_mask:0xf""")
    a(f"""s_mov_b32 s46, 0xffffff
    s_mov_b32 s47, {(N-1)*RS}""")
    for k in range(4):
        a(f"v_cmp_lt_i32 vcc, {8*k}, v23\ns_cbranch_vccz F_pos_done")
        for i in range(2):
            a(f"v_lshrrev_b32 v{16+i}, 24, v{32+4*k+2*i}\nds_bpermute_b32 v{16+i}, v{16+i}, v20")
        for i in range(2):
            a(f"v_and_b32 v{24+i}, s46, v{32+4*k+2*i}\nv_min_u32 v{24+i}, s47, v{24+i}\nv_add_u32 v{24+i}, 128, v{24+i}")
        a("s_waitcnt lgkmcnt(0)")
        for i in range(2):
            a(f"""v_add_u32 v{16+i}, v{16+i}, v{64+2*k+i}
            v_lshlrev_b32 v18, 5, v{16+i}
            v_and_b32 v18, 128, v18
            v_sub_u32 v18, v{24+i}, v18
            v_cmp_lt_i32 vcc, {8*k+i}, v23
            v_lshlrev_b32 v{16+i}, 2, v{16+i}
            v_add_u32 v{16+i}, {L_OFFS}, v{16+i}
            s_mov_b64 exec, vcc
            ds_write_b32 v{16+i}, v18
            ds_write_b32 v{16+i}, v{33+4*k+2*i} offset:{L_META-L_OFFS}
            s_mov_b64 exec, -1""")
    a(f"""F_pos_done:
    F_grp:
    s_max_u32 s{S_NSTEP}, s84, s85
    s_max_u32 s44, s86, s87
    s_max_u32 s{S_NSTEP}, s{S_NSTEP}, s44
    s_lshr_b32 s47, s{S_W}, 2
    s_mov_b32 s44, s80
    s_mov_b32 s46, s84
    s_mov_b32 s45, s88""")
    for g in range(1,4):
        a(f"""s_cmp_eq_u32 s47, {g}
        s_cselect_b32 s44, s{80+g}, s44
        s_cselect_b32 s46, s{84+g}, s46
        s_cselect_b32 s45, s{88+g}, s45""")
    a(f"""s_mov_b32 s{S_NT}, s46
    s_lshl_b32 s{S_PA}, s45, 7
    s_add_u32 s{S_PA}, s{S_PA}, {L_OFFS}
    s_mov_b32 s{S_P0}, s{S_PA}
    s_and_b32 s{S_J}, s{S_W}, 3
    s_lshl_b32 s{S_EWB}, s45, 10
    s_add_u32 s{S_EWB}, s{S_EWB}, {L_W}
    v_and_b32 v16, 31, v{VL}
    s_and_b32 s58, s44, 31
    s_cbranch_scc0 K2_nopad
    v_cmp_le_u32 vcc, s58, v16
    s_add_u32 s59, s45, s46
    s_sub_u32 s59, s59, 1
    s_lshl_b32 s59, s59, 7
    s_add_u32 s59, s59, {L_OFFS}
    s_mul_i32 s58, s2, {NB*RS}
    v_and_b32 v17, 4, v16
    v_lshlrev_b32 v17, 5, v17
    v_sub_u32 v17, 128, v17
    v_add_u32 v17, s58, v17
    v_lshl_add_u32 v18, v16, 2, s59
    v_mov_b32 v19, {PADROW}
    s_and_saveexec_b64 s[46:47], vcc
    ds_write_b32 v18, v17
    ds_write_b32 v18, v19 offset:{L_META-L_OFFS}
    s_mov_b64 exec, s[46:47]
    K2_nopad:
    s_waitcnt lgkmcnt(0)""")
    st(6)
    a("s_barrier")

def epilogue(a,opt,st):
    a(f"""s_cmp_lg_u32 s{S_MORE}, 0
    s_cbranch_scc1 K2_round
    s_mul_i32 s44, s2, {NB}
    s_lshr_b32 s45, s{S_W}, 2
    s_add_u32 s44, s44, s45
    s_lshl_b32 s44, s44, 8
    s_and_b32 s46, s{S_W}, 3
    s_lshl_b32 s46, s46, 6
    s_add_u32 s44, s44, s46
    s_sub_u32 s44, s44, {(L_META-L_OFFS)//2}
    v_lshlrev_b32 v16, 8, v{V_H16}
    v_lshrrev_b32 v17, 1, v{V_ML}
    v_add3_u32 v16, v16, v17, s44
    s_mov_b32 s47, {f2u(-LOG2E):#x}
    s_nop 4""")
    for r in range(13): a(f"v_mul_f32 v{V_Z+r}, s47, v{V_ACC+r}")
    for r in range(13): a(f"v_exp_f32 v{V_Z+r}, v{V_Z+r}")
    for r in range(13): a(f"v_add_f32 v{V_Z+r}, 1.0, v{V_Z+r}")
    for r in range(13): a(f"v_rcp_f32 v{V_Z+r}, v{V_Z+r}")
    for r in range(13): a(f"v_mul_f32 v{V_Z+r}, v{V_Z+r}, v{V_ACC+r}")
    for r in range(13): a(f"v_cvt_pk_bf16_f32 v{V_Z+r}, v{V_Z+r}, v{V_Z+r}")
    OF=['',' sc1',' nt',' sc0 sc1'][opt.get('of',1)]
    if opt.get('wide',1):
        a(f"""s_lshl_b32 s44, s45, 8
        s_add_u32 s44, s44, s46
        s_add_u32 s44, s44, {L_XS-(L_META-L_OFFS)//2}
        v_lshlrev_b32 v16, 8, v{V_H16}
        v_add3_u32 v16, v16, v17, s44""")
        for r in range(13): a(f"ds_write_b16 v16, v{V_Z+r} offset:{(r>>2)*8192+(r&3)*1024}")
        lane_tid(a)
        a(f"""v_lshlrev_b32 v16, 4, v{VT}
        v_add_u32 v17, {L_XS}, v16
        s_mul_i32 s44, s2, {NB*256}
        v_add_u32 v16, s44, v16
        v_add_u32 v18, 16384, v16
        v_cmp_gt_u32 vcc, {NB*16-1024}, v{VT}
        s_waitcnt lgkmcnt(0)
        s_barrier
        ds_read_b128 v[20:23], v17
        ds_read_b128 v[24:27], v17 offset:16384
        s_waitcnt lgkmcnt(1)
        buffer_store_dwordx4 v[20:23], v16, s[52:55], 0 offen{OF}
        s_and_saveexec_b64 s[46:47], vcc
        s_cbranch_execz K2_done
        s_waitcnt lgkmcnt(0)
        buffer_store_dwordx4 v[24:27], v18, s[52:55], 0 offen{OF}""")
        return
    for r in range(13):
        if r==12:
            a(f"""s_cmp_ge_u32 s45, 2
            s_cbranch_scc1 K2_done
            s_mov_b32 exec_hi, 0""")
        if r and (r&3)==0: a(f"v_add_u32 v16, 8192, v16")
        a(f"buffer_store_short v{V_Z+r}, v16, s[52:55], 0 offen offset:{(r&3)*1024}{['',' sc1',' nt',' sc0 sc1'][opt.get('of',1)]}")


def gen(a,opt):
    st=Stamper(a,opt.get('stamp',0),94)
    a(kstart(KNAME))
    a(f"s_cmp_ge_u32 s2, {NWG}\ns_cbranch_scc1 K2_exit")
    st()
    prologue(a,opt,st); main_loop(a,opt,st); epilogue(a,opt,st)
    a("K2_done:"); st.flush(0,S_W,56,opt.get('amp')); a("K2_exit:\ns_endpgm")
    a(kdesc(KNAME,NV))
```

```python
import os
os.environ['L_W']='4096'
from common import *
KNAME='gather_scatter__edge_featured_mpnn_egc__graph_kernel'
QSCALE=-LOG2E*(1-0.0027)
CAP=1856
L_TBL=0; L_CNT=2560; L_MISC=L_CNT+256; L_STATE=L_MISC+64
assert L_STATE+1024<=L_W
STW=2080; PADROW=25
L_ST=L_XS+32768
L_OFFS=L_ST+16*STW+512
NSLOT=CAP+160
L_META=L_OFFS+NSLOT*4
L_CS=L_META+NSLOT*4
F_LDS=L_CS+4096
assert F_LDS<=163840 and (CAP+128)//32<=64
B_CNT=L_ST; B_BASE=B_CNT+1024; B_SORT=B_BASE+7*1024
assert B_SORT+CH*8<=L_OFFS
SPIN=20000
M_TICKET=0; M_MORE=4
V_ACC=0; V_G=16; V_Z=48; V_IDX=64; V_P=80; V_C=88; V_E=92; V_I4=96; V_S=100; V_MSG=108; V_META=116
V_H16=118; V_SW=119; V_SR=120; V_ONE=121; V_ML=122; V_EL=123; V_T0=126; V_T1=127
NV=128
S_QH=8; S_EA=12; S_80=17; S_M31=18; S_W=20; S_W8=21; S_MORE=23; S_FIRST=60; S_NONCE=61
S_STEP=62; S_NSTEP=63; S_NT=64; S_PA=65; S_ERB=66; S_EWB=67; S_J=68; S_P0=69
V_CR=110; VL=V_MSG; VT=V_MSG+1

def lane_tid(a):
    a(f"""v_mbcnt_lo_u32_b32 v{VL}, -1, 0
    v_mbcnt_hi_u32_b32 v{VL}, -1, v{VL}
    v_lshl_add_u32 v{VT}, s{S_W}, 6, v{VL}""")
def lds_arrive(a, off, vt, sdst=None):
    a(f"v_mov_b32 v{vt}, 0\nv_mov_b32 v{vt+1}, 1\ns_mov_b64 exec, 1")
    if sdst is None: a(f"ds_add_u32 v{vt}, v{vt+1} offset:{L_MISC+off}\ns_mov_b64 exec, -1")
    else: a(f"ds_add_rtn_u32 v{vt+1}, v{vt}, v{vt+1} offset:{L_MISC+off}\ns_mov_b64 exec, -1\ns_waitcnt lgkmcnt(0)\nv_readfirstlane_b32 s{sdst}, v{vt+1}")
def lds_wait(a, off, target, vt, lab, nap=0):
    a(f"""v_mov_b32 v{vt}, 0
    {lab}:
    {'s_sleep 1' if nap else ''}
    ds_read_b32 v{vt+1}, v{vt} offset:{L_MISC+off}
    s_waitcnt lgkmcnt(0)
    v_readfirstlane_b32 s44, v{vt+1}
    s_cmp_lt_u32 s44, {target}
    s_cbranch_scc1 {lab}""")
def scan_row(a, v):
    for sh in (1,2,4,8): a(f"s_nop 1\nv_add_u32_dpp v{v}, v{v}, v{v} row_shr:{sh} row_mask:0xf bank_mask:0xf bound_ctrl:0")

def c_loads(a):
    srd(a,84,48,4096,add=65536)
    a(f"""v_and_b32 v0, 31, v{VL}
    s_and_b32 s44, s{S_W}, 3
    s_lshl_b32 s44, s44, 6
    v_lshlrev_b32 v1, 7, v{V_H16}
    v_lshl_add_u32 v1, v0, 1, v1
    v_add_u32 v1, s44, v1""")
    for i in range(8): a(f"buffer_load_ushort v{V_CR+i}, v1, s[84:87], 0 offen offset:{256*i}")
PROF=[0]
def tick(a,k):
    if not PROF[0]: return
    a(f"s_memtime s[92:93]\ns_waitcnt lgkmcnt(0)\ns_sub_u32 s91, s92, s90\ns_add_u32 s{95+k}, s{95+k}, s91\ns_mov_b32 s90, s92")
def e_slot(a, tt, dst):
    a(f"s_lshl_b32 s45, s{tt}, 10\ns_add_u32 s{dst}, s{S_EWB}, s45")
def fetch_e(a, ahead, lab):
    a(f"""s_cmp_lg_u32 s{S_J}, 0
    s_cbranch_scc1 {lab}
    s_add_u32 s46, s{S_STEP}, {ahead}
    s_cmp_ge_u32 s46, s{S_NT}
    s_cbranch_scc1 {lab}
    s_lshl_b32 s44, s46, 7
    s_add_u32 s44, s44, s{S_P0}
    v_add_u32 v{V_T1}, s44, v{V_ML}
    ds_read_b32 v{V_T0}, v{V_T1}""")
    e_slot(a,46,44)
    a(f"""s_mov_b32 m0, s44
    s_waitcnt lgkmcnt(0)
    v_and_or_b32 v{V_T1}, v{V_T0}, s{S_M31}, v{V_H16}""")
    if EM[0] is not None:
        a(f"s_cmp_lt_u32 s46, {EM[0]}\ns_cselect_b32 s44, -1, 0x1fffff\nv_and_b32 v{V_T1}, s44, v{V_T1}")
    a(f"""buffer_load_dwordx4 v{V_T1}, {sr(S_EA,4)}, 0 offen lds
    {lab}:""")
def fetch_g(a, par, ahead, lab):
    G=V_G+16*par
    a(f"""s_add_u32 s46, s{S_STEP}, {ahead}
    s_cmp_ge_u32 s46, s{S_NT}
    s_cbranch_scc1 {lab}
    v_add_u32 v{V_T1}, s{S_PA}, v{V_H16}""")
    for q in range(4): a(f"ds_read_b128 {vr(V_IDX+4*q,4)}, v{V_T1} offset:{32*q}")
    a(f"""v_add_u32 v{V_T1}, s{S_PA}, v{V_ML}
    ds_read_b32 v{V_META+par}, v{V_T1}
    s_add_u32 s{S_PA}, s{S_PA}, 128""")
    for q in range(4):
        a(f"s_waitcnt lgkmcnt({4-q})")
        for i in range(4*q,4*q+4): a(f"buffer_load_dword v{G+i}, v{V_IDX+i}, {sr(S_QH,4)}, 0 offen{QF[0]}")
    a(f"{lab}:")
QF=[' sc1']; EM=[None]; CLDS=[1]
def step_body(a, par, opt):
    prio=opt.get('prio',0); G=V_G+16*par; Z=V_Z; u=str(par)
    BP=opt.get('bp',4); ED=BP+2
    a("s_waitcnt lgkmcnt(0)")
    if BP==1: a("s_barrier")
    elif BP==2:
        if par==0: a("s_barrier")
        if opt.get('pp',1): a(f"s_setprio {2*(1-par) if prio==3 else 1-par}")
    elif BP==8:
        if par==0:
            a(f"""s_and_b32 s44, s{S_STEP}, 6
            s_cbranch_scc1 H_q1
            s_barrier
            s_setprio 3
            s_branch H_q9
            H_q1:
            s_cmp_eq_u32 s44, 2
            s_cbranch_scc0 H_q2
            s_setprio 2
            s_branch H_q9
            H_q2:
            s_cmp_eq_u32 s44, 4
            s_cbranch_scc0 H_q3
            s_setprio 1
            s_branch H_q9
            H_q3:
            s_setprio 0
            H_q9:""")
    else:
        b='s_barrier' if par==0 else ''
        a(f"""s_and_b32 s44, s{S_STEP}, 2
        s_cbranch_scc1 H_p1{u}
        {b}
        s_setprio {3-par}
        s_branch H_p2{u}
        H_p1{u}:
        s_setprio {1-par}
        H_p2{u}:""")
    tick(a,0)
    a(f"""s_cmp_ge_u32 s{S_STEP}, s{S_NT}
    s_cbranch_scc1 H_idle{u}
    v_and_b32 v{V_T0}, 31, v{V_META+par}
    v_mad_u32_u24 v{V_T1}, v{V_T0}, s{S_80}, v{V_H16}
    v_mad_u32_u24 v{V_T0}, v{V_T0}, s{S_80}, v{V_SW}
    ds_read_b128 {vr(V_S,4)}, v{V_T1} offset:{L_TBL}
    ds_read_b128 {vr(V_S+4,4)}, v{V_T1} offset:{L_TBL+32}""")
    e_slot(a,S_STEP,44)
    a(f"""v_add_u32 v{V_T1}, s44, v{V_EL}
    ds_read_b128 {vr(V_E,4)}, v{V_T1}
    s_waitcnt vmcnt(17)
    s_add_u32 s44, s{S_STEP}, {ED-1}
    s_cmp_lt_u32 s44, s{S_NT}
    s_cselect_b32 s45, s{S_J}, 1
    s_cmp_eq_u32 s45, 0
    s_cbranch_scc1 H_go{u}
    s_waitcnt vmcnt(16)
    s_add_u32 s44, s{S_STEP}, 1
    s_cmp_lt_u32 s44, s{S_NT}
    s_cbranch_scc1 H_go{u}
    s_waitcnt vmcnt(0)
    H_go{u}:
    s_waitcnt lgkmcnt(0)""")
    tick(a,1)
    a(f"{MFMA} {vr(Z,16)}, {vr(V_E,4)}, {vr(V_C,4)}, {vr(G,16)}")
    X=opt.get('x',0)
    if not X&1: a(f"{MFMA} {vr(Z,16)}, {vr(V_S,4)}, {vr(V_P,4)}, {vr(Z,16)}")
    if not X&2: a(f"{MFMA} {vr(Z,16)}, {vr(V_S+4,4)}, {vr(V_P+4,4)}, {vr(Z,16)}")
    if X&3: a("s_nop 1")
    a(f"ds_write_b16_d16_hi v{V_T0}, v{V_ONE}")
    a(f"ds_read_b128 {vr(V_S,4)}, v{V_SR}")
    a(f"ds_read_b128 {vr(V_S+4,4)}, v{V_SR} offset:32")
    a(f"ds_write_b16 v{V_T0}, v{V_ONE}")
    a("s_nop 0")
    if X&4: a("s_nop 7")
    else:
        for i in range(16): a(f"v_lshlrev_b32 v{G+i}, 16, v{G+i}")
    pk=opt.get('pk',0)
    hi={0:None,1:1,2:3-par,3:2*(1-par)+1}[prio]; lo={0:None,1:0,2:1-par,3:2*(1-par)}[prio]
    if prio: a(f"s_setprio {hi}")
    for i in range(16): a(f"v_exp_f32 v{Z+i}, v{Z+i}")
    if prio: a(f"s_setprio {lo}")
    if pk&1:
        for i in range(8): a(f"v_pk_add_f32 v[{Z+2*i}:{Z+2*i+1}], v[{Z+2*i}:{Z+2*i+1}], 1.0 op_sel_hi:[1,0]")
    elif not X&8:
        for i in range(16): a(f"v_add_f32 v{Z+i}, 1.0, v{Z+i}")
    if prio: a(f"s_setprio {hi}")
    if not X&16:
        for i in range(16): a(f"v_rcp_f32 v{Z+i}, v{Z+i}")
    if prio: a(f"s_setprio {lo}")
    if pk&2:
        for i in range(8): a(f"v_pk_mul_f32 v[{Z+2*i}:{Z+2*i+1}], v[{Z+2*i}:{Z+2*i+1}], v[{G+2*i}:{G+2*i+1}]")
    else:
        for i in range(16): a(f"v_mul_f32 v{Z+i}, v{Z+i}, v{G+i}")
    for i in range(8): a(f"v_cvt_pk_bf16_f32 v{V_MSG+i}, v{Z+2*i}, v{Z+2*i+1}")
    a("s_waitcnt lgkmcnt(0)")
    a("s_nop 0")
    a(f"{MFMA} {vr(V_ACC,16)}, {vr(V_S,4)}, {vr(V_MSG,4)}, {vr(V_ACC,16)}")
    a(f"{MFMA} {vr(V_ACC,16)}, {vr(V_S+4,4)}, {vr(V_MSG+4,4)}, {vr(V_ACC,16)}")
    tick(a,2)
    fetch_e(a,ED,f"H_fe{u}")
    tick(a,3)
    fetch_g(a,par,2,f"H_fg{u}")
    tick(a,4)
    a(f"""H_idle{u}:
    s_add_u32 s{S_STEP}, s{S_STEP}, 1
    s_cmp_ge_u32 s{S_STEP}, s{S_NSTEP}""")

def main_loop(a,opt,st):
    EM[0]=opt.get('em')
    QF[0]=['',' sc1'][opt.get('qf',1)]
    if opt.get('cyc',0): a('s_memtime s[92:93]\ns_waitcnt lgkmcnt(0)\ns_mov_b32 s79, s92')
    a(f"s_mov_b32 s{S_STEP}, 0")
    if opt.get('prof',0):
        PROF[0]=1
        a("s_memtime s[92:93]\ns_waitcnt lgkmcnt(0)\ns_mov_b32 s90, s92\ns_mov_b32 s79, s92")
        for k in range(6): a(f"s_mov_b32 s{95+k}, 1")
    BP=opt.get('bp',4); ED=BP+2
    for k in range(ED-1): fetch_e(a,k,f"H_pe{k}")
    fetch_g(a,0,0,"H_pg0")
    if opt.get('rb',1): a("s_barrier")
    fetch_e(a,ED-1,"H_pel")
    fetch_g(a,1,1,"H_pg1")
    st(7)
    a(f"""s_mov_b32 s{S_FIRST}, 0
    s_waitcnt vmcnt(33)
    s_cmp_ge_u32 s{S_NT}, {ED}
    s_cbranch_scc1 H_loop
    s_waitcnt vmcnt(0)
    .p2align 3
    H_loop:""")
    step_body(a,0,opt)
    a("s_cbranch_scc1 H_done")
    step_body(a,1,opt)
    a("s_cbranch_scc0 H_loop\nH_done:")
    if opt.get('prof',0): a("s_sub_u32 s100, s90, s79")
    if opt.get('cyc',0): a('s_memtime s[92:93]\ns_waitcnt lgkmcnt(0)\ns_sub_u32 s95, s92, s79')
    if opt.get('nst',0): a(f's_add_u32 s96, s91, s87\ns_lshl_b32 s96, s96, 8\ns_add_u32 s95, s96, s{S_NSTEP}')
    st(8)
def e_touch(a, lo, hi, fl):
    a(f"""s_mul_i32 s44, s2, {CH*32}
    s_mul_i32 s45, s{S_W}, 3200
    s_add_u32 s44, s44, s45
    v_lshl_add_u32 v16, v{VL}, 7, s44
    s_mov_b64 exec, {((1<<hi)-1)^((1<<lo)-1):#x}
    buffer_load_dword v125, v16, s[12:15], 0 offen{fl}
    s_mov_b64 exec, -1""")
def pu(a,regs,hook=None):
    ta,tb,tc,D,A,B=regs
    a(f"s_lshr_b32 s46, s{S_W}, 2\ns_and_b32 s47, s{S_W}, 3")
    gemm_addr(a,46,47,VL,ta,tb,tc)
    if CLDS[0]:
        a(f"v_add_u32 v{tc}, {L_CS-L_W}, v{tb}")
        for q in range(2): a(f"ds_read_b64_tr_b16 {vr(V_C+2*q,2)}, v{tc} offset:{1024*q}")
    gemm_core(a,ta,tb,tc,D,V_ACC,A,B,hook)
    a(f"s_mov_b32 s44, {f2u(-LOG2E):#x}")
    if CLDS[0]:
        for i in range(4): a(f"v_lshlrev_b32 v{V_CR+2*i}, 16, v{V_C+i}\nv_and_b32 v{V_CR+2*i+1}, 0xffff0000, v{V_C+i}")
        for i in range(8): a(f"v_mul_f32 v{V_CR+i}, s44, v{V_CR+i}")
    else:
        for i in range(8): a(f"v_lshlrev_b32 v{V_CR+i}, 16, v{V_CR+i}\nv_mul_f32 v{V_CR+i}, s44, v{V_CR+i}")
    for i in range(4): a(f"v_cvt_pk_bf16_f32 v{V_C+i}, v{V_CR+2*i}, v{V_CR+2*i+1}")
    for r in range(16): a(f"v_mul_f32 v{D+r}, s44, v{D+r}")
    for r in range(8): a(f"v_cvt_pk_bf16_f32 v{V_P+r}, v{D+2*r}, v{D+2*r+1}")

def prologue(a, opt, st):
    def BK(i):
        if opt.get('b16',0): return f"v_mul_u32_u24 v16, 42949, v{12+i}\nv_bfe_u32 v16, v16, 26, 4"
        return f"v_bfe_u32 v16, v{12+i}, 11, 4"
    CLDS[0]=opt.get('clds',1)
    xl=opt.get('xlate',1)
    a(f"""s_load_dwordx4 s[4:7], s[0:1], 0
    s_load_dwordx4 s[64:67], s[0:1], 16
    s_load_dwordx4 s[28:31], s[0:1], 32
    s_load_dwordx4 s[48:51], s[0:1], 48
    s_load_dwordx4 s[80:83], s[0:1], 64
    s_memrealtime s[58:59]""")
    if opt.get('cw',0):
        a(f"""s_getpc_b64 s[88:89]
        F_pc:
        s_mov_b32 s90, K2_exit-F_pc
        s_mov_b32 s91, 0x20000
        v_lshlrev_b32 v3, 7, v0
        v_subrev_u32 v3, {(1024-opt['cw'])*128}, v3
        buffer_load_dword v125, v3, s[88:91], 0 offen""")
    a(f"""v_lshrrev_b32 v2, 6, v0
    v_and_b32 v{VL}, 63, v0
    v_readfirstlane_b32 s{S_W}, v2
    v_mov_b32 v{VT}, v0
    s_mul_i32 s45, s2, {CH*4}
    v_lshlrev_b32 v4, 4, v0
    v_add_u32 v5, s45, v4
    v_cmp_gt_u32 vcc, {CH//4}, v0
    s_cmp_lt_u32 s2, {NCH}
    s_cselect_b64 s[78:79], vcc, 0
    s_waitcnt lgkmcnt(0)
    s_mov_b32 s68, s66
    s_mov_b32 s69, s67""")
    srd(a,64,64,E*4); srd(a,68,68,E*4)
    a(f"""s_mov_b64 exec, s[78:79]
    s_cbranch_execz F_noload
    buffer_load_dwordx4 v[8:11], v5, s[68:71], 0 offen
    buffer_load_dwordx4 v[12:15], v5, s[64:67], 0 offen
    F_noload:
    s_mov_b64 exec, -1
    s_mov_b32 s12, s6
    s_mov_b32 s13, s7
    s_mov_b32 s56, s82
    s_mov_b32 s57, s83
    s_mov_b32 s76, s28
    s_mov_b32 s77, s29""")
    srd(a,80,80,256)
    a(f"""s_or_b32 s58, s58, 1
    v_mov_b32 v6, 0
    v_mov_b32 v7, s58
    s_add_u32 s45, s2, s{S_W}
    s_cmp_lg_u32 s45, 0
    s_cbranch_scc1 F_nononce
    s_mov_b64 exec, 1
    buffer_store_dword v7, v6, s[80:83], 0 offen sc1
    s_mov_b64 exec, -1
    F_nononce:""")
    srd(a,4,4,N*256); srd(a,24,48,32768,add=32768); srd(a,28,30,32768)
    stage_x(a,S_W,2,4,VL,(16,17,18,19))
    stage_w(a,S_W,24,28,VL,(16,17,18))
    a("v_mov_b32 v2, v18")
    if opt.get('clds',1):
        srd(a,84,48,4096,add=65536)
        a(f"""s_cmp_lt_u32 s{S_W}, 12
        s_cbranch_scc1 F_nocs
        s_and_b32 s44, s{S_W}, 3
        s_lshl_b32 s44, s44, 10
        v_and_b32 v18, 0x3ff, v18
        v_add_u32 v18, s44, v18
        s_add_u32 s44, s44, {L_CS}
        s_mov_b32 m0, s44
        s_nop 0
        buffer_load_dwordx4 v18, s[84:87], 0 offen lds
        F_nocs:""")
    srd(a,12,12,E*32); srd(a,32,56,NCH*CH*8,add=WS_ENT); srd(a,36,56,NWG*2048,add=WS_CELL); srd(a,52,50,N*256)
    srd(a,72,56,N*RS,add=WS_QH)
    a(f"""s_and_b32 s46, s{S_W}, 3
    s_lshl_b32 s44, s46, 7
    s_add_u32 s44, s44, {WS_QH-128}
    s_add_u32 s8, s56, s44
    s_addc_u32 s9, s57, 0
    s_or_b32 s9, s9, 0x40000
    s_mov_b32 s10, {N*RS+128}
    s_mov_b32 s11, 0x800000
    v_lshrrev_b32 v16, 5, v{VL}
    v_lshlrev_b32 v{V_H16}, 4, v16
    v_and_b32 v17, 31, v{VL}
    """)
    a(f"""s_mul_i32 s19, s{S_W}, {STW}
    s_add_u32 s19, s19, {L_ST}
    s_movk_i32 s{S_80}, 80
    s_mov_b32 s{S_M31}, 0xffffffe0
    v_mad_u32_u24 v{V_SR}, v17, s{S_80}, v{V_H16}
    v_add_u32 v{V_SR}, s19, v{V_SR}
    v_and_b32 v19, 19, v17
    v_and_b32 v20, 4, v17
    v_lshl_add_u32 v19, v20, 1, v19
    v_and_b32 v20, 8, v17
    v_lshrrev_b32 v20, 1, v20
    v_add_u32 v19, v19, v20
    v_lshlrev_b32 v19, 1, v19
    v_add_u32 v{V_SW}, s19, v19
    v_mov_b32 v{V_ONE}, 0x3f800000
    v_lshlrev_b32 v{V_ML}, 2, v17
    v_add_u32 v{V_ML}, {L_META-L_OFFS}, v{V_ML}
    v_lshlrev_b32 v{V_EL}, 4, v{VL}
    v_mov_b32 v24, 0
    v_mov_b32 v25, 0
    v_mov_b32 v26, 0
    v_mov_b32 v27, 0
    s_cmp_lg_u32 s{S_W}, 7
    s_cbranch_scc1 F_noinit
    v_lshlrev_b32 v20, 4, v{VL}
    v_add_u32 v21, {B_CNT}, v20
    ds_write_b128 v21, v[24:27]
    ds_write_b128 v20, v[24:27]
    ds_write_b128 v20, v[24:27] offset:1024
    ds_write_b128 v20, v[24:27] offset:2048
    v_mad_u32_u24 v20, v17, s{S_80}, v19
    ds_write_b16_d16_hi v20, v{V_ONE} offset:{L_TBL}
    s_waitcnt lgkmcnt(0)
    F_noinit:
    s_mov_b32 s{S_FIRST}, 1
    s_barrier""")
    a(f"""s_mov_b64 exec, s[78:79]
    s_cbranch_execz F_norank
    s_mov_b32 s44, {M49}
    s_movk_i32 s45, {NB}
    s_movk_i32 s46, {RS}
    s_mul_i32 s47, s2, {CH}
    v_lshl_add_u32 v3, v0, 2, s47
    v_lshlrev_b32 v3, 5, v3
    v_mov_b32 v7, 1
    s_waitcnt vmcnt(6)""")
    for i in range(4):
        a(f"""v_lshrrev_b32 v16, 1, v{8+i}
        v_mul_hi_u32 v16, v16, s44
        v_mul_u32_u24 v17, s45, v16
        v_sub_u32 v17, v{8+i}, v17
        v_and_b32 v18, 7, v16
        v_bfe_u32 v16, v16, 3, 5
        v_lshl_add_u32 v16, v18, 5, v16
        v_lshlrev_b32 v{8+i}, 2, v16
        v_add_u32 v16, {B_CNT}, v{8+i}
        ds_add_rtn_u32 v{20+i}, v16, v7
        v_lshrrev_b32 v16, 2, v17
        v_add3_u32 v{41+2*i}, v3, v16, {32*i if i<3 else 64}
        v_and_b32 v17, 3, v17
        {BK(i)}
        v_lshl_add_u32 v16, v17, 4, v16
        v_mul_u32_u24 v17, s46, v{12+i}
        v_lshl_or_b32 v{40+2*i}, v16, 26, v17""")
        if i==3: a(f"v_add_u32 v{41+2*i}, 32, v{41+2*i}")
    a(f"""F_norank:
    s_mov_b64 exec, -1
    v_mov_b32 v6, 0
    s_waitcnt vmcnt(0) lgkmcnt(0)""")
    st(1)
    a("s_barrier\nbuffer_load_dword v7, v6, s[80:83], 0 offen sc1")
    srd(a,24,48,32768); srd(a,28,76,32768)
    def au():
        for k in range(4): a(f"buffer_load_dwordx4 {vr(88+4*k,4)}, v2, s[{24+4*(k>>1)}:{27+4*(k>>1)}], 0 offen offset:{1024*(k&1)}")
    if not opt.get('auin',0): au()
    if not opt.get('clds',1): c_loads(a)
    if opt.get('ew0',0): e_touch(a,0,opt['ew0'],['',' nt'][opt.get('ewf',0)])
    a(f"""    s_cmp_ge_u32 s{S_W}, 7
    s_cbranch_scc1 F_noscan
    v_lshlrev_b32 v16, 4, v{VL}
    v_add_u32 v17, {B_CNT}, v16
    ds_read_b128 v[24:27], v17
    s_lshl_b32 s44, s{S_W}, 10
    s_add_u32 s44, s44, {B_BASE}
    s_waitcnt lgkmcnt(0)
    v_add_u32 v29, v24, v25
    v_add_u32 v30, v29, v26
    v_add_u32 v31, v30, v27
    v_mov_b32 v32, v31""")
    scan_row(a,32)
    a(f"""s_nop 1
    v_add_u32_dpp v32, v32, v32 row_bcast:15 row_mask:0xa bank_mask:0xf
    s_nop 1
    v_add_u32_dpp v32, v32, v32 row_bcast:31 row_mask:0xc bank_mask:0xf
    s_nop 1
    v_sub_u32 v32, v32, v31
    v_add_u32 v33, v32, v24
    v_add_u32 v34, v32, v29
    v_add_u32 v35, v32, v30
    v_add_u32 v17, s44, v16
    ds_write_b128 v17, v[32:35]
    v_lshl_or_b32 v80, v24, 16, v32
    v_lshl_or_b32 v82, v25, 16, v33
    v_lshl_or_b32 v84, v26, 16, v34
    v_lshl_or_b32 v86, v27, 16, v35
    s_mov_b64 exec, s[78:79]""")
    for i in range(4):
        a(f"v_add_u32 v16, s44, v{8+i}\nds_read_b32 v{36+i}, v16")
    a("s_waitcnt lgkmcnt(0)")
    for i in range(4):
        a(f"v_add_u32 v16, v{36+i}, v{20+i}\nv_lshlrev_b32 v16, 3, v16\nv_add_u32 v16, {B_SORT}, v16\nds_write_b64 v16, v[{40+2*i}:{41+2*i}]")
    a(f"""s_mov_b64 exec, -1
    F_noscan:
    s_lshr_b32 s46, s{S_W}, 2
    s_and_b32 s47, s{S_W}, 3""")
    gemm_addr(a,46,47,VL,8,9,10)
    Q=48; H=64
    gemm_core(a,8,9,10,Q,H,24,32,hook=(lambda ks: au() if (ks==opt.get('auin',0)-1 and opt.get('auin',0)) else None))
    st(2)
    a(f"""s_movk_i32 s44, {SPIN}
    F_nonce_poll:
    s_waitcnt vmcnt(0)
    v_readfirstlane_b32 s{S_NONCE}, v7
    s_sub_u32 s44, s44, 1
    s_cbranch_scc1 F_nonce_ok
    s_cmp_lg_u32 s{S_NONCE}, 0
    s_cbranch_scc1 F_nonce_ok
    buffer_load_dword v7, v6, s[80:83], 0 offen sc1
    s_branch F_nonce_poll
    F_nonce_ok:
    s_mul_i32 s44, s2, {NB}
    s_add_u32 s44, s44, s46
    s_mul_i32 s44, s44, {RS}
    s_lshl_b32 s45, s47, 7
    s_add_u32 s44, s44, s45
    v_mul_u32_u24 v11, {RS}, v{V_H16}
    v_and_b32 v12, 31, v{VL}
    v_lshl_add_u32 v11, v12, 2, v11
    v_add_u32 v11, s44, v11
    s_mov_b32 s45, {f2u(QSCALE):#x}
    s_nop 1""")
    for r in range(13):
        a(f"v_mul_f32 v{Q+r}, s45, v{Q+r}")
        a(f"v_cvt_pk_bf16_f32 v{Q+r}, v{H+r}, v{Q+r}")
        if r and (r&3)==0: a(f"v_add_u32 v11, {5*4*RS}, v11")
        elif r: a(f"v_add_u32 v11, {4*RS}, v11")
        if r==12: a(f"s_cmp_ge_u32 s46, 2\ns_cbranch_scc1 F_q\ns_mov_b32 exec_hi, 0")
        a(f"buffer_store_dword v{Q+r}, v11, s[72:75], 0 offen sc1")
    a(f"""F_q:
    s_mov_b64 exec, -1
    s_barrier
    s_lshl_b32 s44, s{S_W}, 11
    s_add_u32 s44, s44, {L_W}
    v_lshl_add_u32 v16, v{VL}, 4, s44
    ds_write_b128 v16, v[88:91]
    ds_write_b128 v16, v[92:95] offset:1024
    ds_write_b128 v16, v[96:99] offset:32768
    ds_write_b128 v16, v[100:103] offset:33792
    v_cmp_gt_u32 vcc, {CH//2}, v{VT}
    s_cmp_lt_u32 s2, {NCH}
    s_cselect_b64 s[46:47], vcc, 0
    s_mov_b64 exec, s[46:47]
    s_cbranch_execz F_noent
    v_add_u32 v16, {B_SORT}, v4
    ds_read_b128 v[8:11], v16
    s_mul_i32 s45, s2, {CH*8}
    v_add_u32 v5, s45, v4
    s_waitcnt lgkmcnt(0)
    buffer_store_dwordx4 v[8:11], v5, s[32:35], 0 offen sc1
    F_noent:
    s_mov_b64 exec, -1
    s_waitcnt vmcnt(0) lgkmcnt(0)""")
    st(3)
    a(f"""s_barrier
    s_cmp_lg_u32 s{S_W}, 0
    s_cbranch_scc1 F_nocell
    v_mov_b32 v81, s{S_NONCE}
    v_mov_b32 v83, s{S_NONCE}
    v_mov_b32 v85, s{S_NONCE}
    v_mov_b32 v87, s{S_NONCE}
    s_lshl_b32 s45, s2, 11
    v_lshl_add_u32 v16, v{VL}, 5, s45
    buffer_store_dwordx4 v[80:83], v16, s[36:39], 0 offen sc1
    buffer_store_dwordx4 v[84:87], v16, s[36:39], 0 offen offset:16 sc1
    F_nocell:
    v_mov_b32 v24, 0
    v_mov_b32 v25, 0
    v_mov_b32 v26, 0
    v_mov_b32 v27, 0
    v_add_u32 v16, {L_ST}, v4
    ds_write_b128 v16, v[24:27]
    ds_write_b128 v16, v[24:27] offset:16384
    v_and_b32 v16, 0x3f0, v4
    v_add_u32 v16, {L_ST+32768}, v16
    ds_write_b128 v16, v[24:27]""")
    ew=opt.get('ew',0); ewf=['',' nt'][opt.get('ewf',0)]
    if ew: e_touch(a,0,ew,ewf)
    if opt.get('pufirst',0): pu(a,(16,17,18,64,24,32))
    a(f"""s_and_b32 s44, s2, 7
    s_lshl_b32 s44, s44, 5
    s_lshr_b32 s45, s2, 3
    s_add_u32 s44, s44, s45
    s_lshl_b32 s44, s44, 3
    v_lshrrev_b32 v19, 2, v{VT}
    v_lshl_add_u32 v18, v19, 11, s44
    """)
    if not opt.get('pufirst',0):
        pat=opt.get('pat',5)
        poll=lambda: a("buffer_load_dwordx2 v[20:21], v18, s[36:39], 0 offen sc1")
        if pat<0: poll()
        pu(a,(16,17,22,64,24,32),hook=lambda ks: poll() if ks==pat else None)
        a(f"s_movk_i32 s44, {SPIN}\ns_branch F_cell_chk")
    a(f"""s_movk_i32 s44, {SPIN}
    F_cell_poll:
    buffer_load_dwordx2 v[20:21], v18, s[36:39], 0 offen sc1
    F_cell_chk:
    s_waitcnt vmcnt(0)
    v_cmp_eq_u32 vcc, s{S_NONCE}, v21
    s_cmp_eq_u64 vcc, -1
    s_cbranch_scc1 F_cell_ok
    s_sub_u32 s44, s44, 1
    s_cbranch_scc1 F_cell_ok
    s_sleep {opt.get('csleep',1)}
    s_branch F_cell_poll
    F_cell_ok:
    v_cndmask_b32 v21, 0, v20, vcc""")
    st(4)
    a(f"""s_branch F_take
    K2_round:""")
    lane_tid(a)
    a(f"""s_barrier
    s_cmp_lg_u32 s{S_W}, 7
    s_cbranch_scc1 F_noclr
    v_mov_b32 v24, 0
    v_mov_b32 v25, 0
    v_mov_b32 v26, 0
    v_mov_b32 v27, 0
    v_lshlrev_b32 v20, 4, v{VL}
    v_min_u32 v20, 304, v20
    ds_write_b128 v20, v[24:27] offset:{L_CNT}
    s_waitcnt lgkmcnt(0)
    F_noclr:
    s_barrier
    v_lshrrev_b32 v19, 2, v{VT}
    v_lshlrev_b32 v20, 2, v19
    ds_read_b32 v21, v20 offset:{L_STATE}
    s_waitcnt lgkmcnt(0)
    F_take:
    v_lshrrev_b32 v22, 16, v21
    v_min_u32 v23, 32, v22
    v_and_b32 v21, 0xffff, v21
    v_and_b32 v28, 3, v{VT}
    s_movk_i32 s46, {CH}
    v_mad_u32_u24 v30, v19, s46, v21
    v_lshlrev_b32 v27, 1, v28
    v_add_u32 v30, v30, v27
    v_lshlrev_b32 v30, 3, v30
    v_sub_u32 v26, v23, v27""")
    for k in range(4):
        a(f"""v_cmp_lt_i32 vcc, {8*k}, v26
        s_cbranch_vccz F_ld_done
        s_mov_b64 exec, vcc
        buffer_load_dwordx4 v[{32+4*k}:{35+4*k}], v30, s[32:35], 0 offen offset:{64*k} sc1
        s_mov_b64 exec, -1""")
    a(f"""F_ld_done:
    v_mov_b32 v29, 0
    v_cmp_eq_u32 vcc, 0, v28
    s_and_saveexec_b64 s[44:45], vcc
    ds_add_rtn_u32 v30, v29, v23 offset:{L_MISC+M_TICKET}
    s_waitcnt lgkmcnt(0)
    v_add_u32 v30, v30, v23
    v_cmp_ge_u32 vcc, {CAP}, v30
    s_nop 1
    v_cndmask_b32 v23, 0, v23, vcc
    v_sub_u32 v22, v22, v23
    v_add_u32 v30, v21, v23
    v_lshl_or_b32 v30, v22, 16, v30
    v_lshlrev_b32 v31, 2, v19
    ds_write_b32 v31, v30 offset:{L_STATE}
    v_cmp_lt_u32 vcc, 0, v22
    s_and_b64 exec, exec, vcc
    v_mov_b32 v30, 1
    ds_write_b32 v29, v30 offset:{L_MISC+M_MORE}
    s_mov_b64 exec, s[44:45]
    s_nop 4
    v_mov_b32_dpp v23, v23 quad_perm:[0,0,0,0] row_mask:0xf bank_mask:0xf
    v_sub_u32 v23, v23, v27
    v_mov_b32 v29, 1
    s_waitcnt vmcnt(0)""")
    for k in range(4):
        for i in range(2):
            a(f"v_cmp_lt_i32 vcc, {8*k+i}, v23")
            if i==0: a("s_cbranch_vccz F_rk_done")
            a(f"""v_lshrrev_b32 v16, 24, v{32+4*k+2*i}
            s_mov_b64 exec, vcc
            ds_add_rtn_u32 v{64+2*k+i}, v16, v29 offset:{L_CNT}
            s_mov_b64 exec, -1""")
    a(f"""F_rk_done:
    s_waitcnt lgkmcnt(0)""")
    st(5)
    a("s_barrier")
    npf=opt.get('pf',16)
    if npf:
        a(f"""s_cmp_eq_u32 s{S_FIRST}, 0
        s_cbranch_scc1 F_nopf
        s_lshr_b32 s44, s2, 3
        s_lshl_b32 s44, s44, 4
        s_add_u32 s44, s44, s{S_W}
        s_mul_i32 s44, s44, {npf*128}
        v_lshl_add_u32 v16, v{VL}, 7, s44
        v_cmp_gt_u32 vcc, {npf}, v{VL}
        s_mov_b64 exec, vcc
        buffer_load_dword v124, v16, s[72:75], 0 offen sc1
        s_mov_b64 exec, -1""")
        if opt.get('ew2',0): e_touch(a,opt.get('ew',0),opt['ew2'],['',' nt'][opt.get('ewf',0)])
        a(f"""
        F_nopf:""")
    a(f"""v_lshlrev_b32 v16, 2, v{VL}
    ds_read_b32 v17, v16 offset:{L_CNT}
    v_mov_b32 v16, 0
    ds_read_b32 v18, v16 offset:{L_MISC+M_MORE}
    s_waitcnt lgkmcnt(0)
    v_mov_b32 v20, v17
    v_readfirstlane_b32 s{S_MORE}, v18""")
    scan_row(a,20)
    a(f"""s_lshr_b32 s47, s{S_W}, 2
    s_lshl_b32 s45, s47, 4
    s_add_u32 s44, s45, 15
    v_add_u32 v21, 31, v20
    v_lshrrev_b32 v21, 5, v21
    v_mov_b32 v18, 0
    v_mov_b32 v22, 0
    v_readlane_b32 s80, v20, s44
    v_mov_b32_dpp v18, v21 row_bcast:15 row_mask:0xa bank_mask:0xf
    v_readlane_b32 s{S_NT}, v21, s44
    v_add_u32 v16, v21, v18
    v_max_u32 v21, v21, v18
    v_sub_u32 v20, v20, v17
    v_mov_b32_dpp v22, v16 row_bcast:31 row_mask:0xc bank_mask:0xf
    v_readlane_b32 s81, v21, 31
    v_readlane_b32 s82, v21, 63
    v_add_u32 v18, v18, v22
    s_nop 0
    v_readlane_b32 s83, v18, s45
    v_lshl_add_u32 v20, v18, 5, v20
    s_max_u32 s{S_NSTEP}, s81, s82""")
    a(f"""s_mov_b32 s46, 0xffffff
    s_mov_b32 s47, {(N-1)*RS}""")
    for k in range(4):
        a(f"v_cmp_lt_i32 vcc, {8*k}, v23\ns_cbranch_vccz F_pos_done")
        for i in range(2):
            a(f"v_lshrrev_b32 v{16+i}, 24, v{32+4*k+2*i}\nds_bpermute_b32 v{16+i}, v{16+i}, v20")
        for i in range(2):
            a(f"v_and_b32 v{24+i}, s46, v{32+4*k+2*i}\nv_min_u32 v{24+i}, s47, v{24+i}\nv_add_u32 v{24+i}, 128, v{24+i}")
        a("s_waitcnt lgkmcnt(0)")
        for i in range(2):
            a(f"""v_add_u32 v{16+i}, v{16+i}, v{64+2*k+i}
            v_lshlrev_b32 v18, 5, v{16+i}
            v_and_b32 v18, 128, v18
            v_sub_u32 v18, v{24+i}, v18
            v_cmp_lt_i32 vcc, {8*k+i}, v23
            v_lshlrev_b32 v{16+i}, 2, v{16+i}
            v_add_u32 v{16+i}, {L_OFFS}, v{16+i}
            s_mov_b64 exec, vcc
            ds_write_b32 v{16+i}, v18
            ds_write_b32 v{16+i}, v{33+4*k+2*i} offset:{L_META-L_OFFS}
            s_mov_b64 exec, -1""")
    a(f"""F_pos_done:
    s_lshl_b32 s{S_PA}, s83, 7
    s_add_u32 s{S_PA}, s{S_PA}, {L_OFFS}
    s_mov_b32 s{S_P0}, s{S_PA}
    s_and_b32 s{S_J}, s{S_W}, 3
    s_lshl_b32 s{S_EWB}, s83, 10
    s_add_u32 s{S_EWB}, s{S_EWB}, {L_W}
    s_mov_b32 s44, s80
    s_mov_b32 s45, s83
    s_mov_b32 s46, s{S_NT}
    v_and_b32 v16, 31, v{VL}
    s_and_b32 s58, s44, 31
    s_cbranch_scc0 K2_nopad
    v_cmp_le_u32 vcc, s58, v16
    s_add_u32 s59, s45, s46
    s_sub_u32 s59, s59, 1
    s_lshl_b32 s59, s59, 7
    s_add_u32 s59, s59, {L_OFFS}
    s_mul_i32 s58, s2, {NB*RS}
    v_and_b32 v17, 4, v16
    v_lshlrev_b32 v17, 5, v17
    v_sub_u32 v17, 128, v17
    v_add_u32 v17, s58, v17
    v_lshl_add_u32 v18, v16, 2, s59
    v_mov_b32 v19, {PADROW}
    s_and_saveexec_b64 s[46:47], vcc
    ds_write_b32 v18, v17
    ds_write_b32 v18, v19 offset:{L_META-L_OFFS}
    s_mov_b64 exec, s[46:47]
    K2_nopad:
    s_waitcnt lgkmcnt(0)""")
    st(6)
    a("s_barrier")

def epilogue(a,opt,st):
    a(f"""s_cmp_lg_u32 s{S_MORE}, 0
    s_cbranch_scc1 K2_round
    s_mul_i32 s44, s2, {NB}
    s_lshr_b32 s45, s{S_W}, 2
    s_add_u32 s44, s44, s45
    s_lshl_b32 s44, s44, 8
    s_and_b32 s46, s{S_W}, 3
    s_lshl_b32 s46, s46, 6
    s_add_u32 s44, s44, s46
    s_sub_u32 s44, s44, {(L_META-L_OFFS)//2}
    v_lshlrev_b32 v16, 8, v{V_H16}
    v_lshrrev_b32 v17, 1, v{V_ML}
    v_add3_u32 v16, v16, v17, s44
    s_mov_b32 s47, {f2u(-LOG2E):#x}
    s_nop 4""")
    for r in range(13): a(f"v_mul_f32 v{V_Z+r}, s47, v{V_ACC+r}")
    for r in range(13): a(f"v_exp_f32 v{V_Z+r}, v{V_Z+r}")
    for r in range(13): a(f"v_add_f32 v{V_Z+r}, 1.0, v{V_Z+r}")
    for r in range(13): a(f"v_rcp_f32 v{V_Z+r}, v{V_Z+r}")
    for r in range(13): a(f"v_mul_f32 v{V_Z+r}, v{V_Z+r}, v{V_ACC+r}")
    for r in range(13): a(f"v_cvt_pk_bf16_f32 v{V_Z+r}, v{V_Z+r}, v{V_Z+r}")
    OF=['',' sc1',' nt',' sc0 sc1'][opt.get('of',1)]
    if opt.get('wide',1):
        a(f"""s_lshl_b32 s44, s45, 8
        s_add_u32 s44, s44, s46
        s_add_u32 s44, s44, {L_XS-(L_META-L_OFFS)//2}
        v_lshlrev_b32 v16, 8, v{V_H16}
        v_add3_u32 v16, v16, v17, s44""")
        for r in range(13): a(f"ds_write_b16 v16, v{V_Z+r} offset:{(r>>2)*8192+(r&3)*1024}")
        lane_tid(a)
        a(f"""v_lshlrev_b32 v16, 4, v{VT}
        v_add_u32 v17, {L_XS}, v16
        s_mul_i32 s44, s2, {NB*256}
        v_add_u32 v16, s44, v16
        v_add_u32 v18, 16384, v16
        v_cmp_gt_u32 vcc, {NB*16-1024}, v{VT}
        s_waitcnt lgkmcnt(0)
        s_barrier
        ds_read_b128 v[20:23], v17
        ds_read_b128 v[24:27], v17 offset:16384
        s_waitcnt lgkmcnt(1)
        buffer_store_dwordx4 v[20:23], v16, s[52:55], 0 offen{OF}
        s_and_saveexec_b64 s[46:47], vcc
        s_cbranch_execz K2_done
        s_waitcnt lgkmcnt(0)
        buffer_store_dwordx4 v[24:27], v18, s[52:55], 0 offen{OF}""")
        return
    for r in range(13):
        if r==12:
            a(f"""s_cmp_ge_u32 s45, 2
            s_cbranch_scc1 K2_done
            s_mov_b32 exec_hi, 0""")
        if r and (r&3)==0: a(f"v_add_u32 v16, 8192, v16")
        a(f"buffer_store_short v{V_Z+r}, v16, s[52:55], 0 offen offset:{(r&3)*1024}{['',' sc1',' nt',' sc0 sc1'][opt.get('of',1)]}")


def gen(a,opt):
    st=Stamper(a,opt.get('stamp',0),94)
    a(kstart(KNAME))
    a(f"s_cmp_ge_u32 s2, {NWG}\ns_cbranch_scc1 K2_exit")
    st()
    prologue(a,opt,st); main_loop(a,opt,st); epilogue(a,opt,st)
    a("K2_done:"); st.flush(0,S_W,56,opt.get('amp')); a("K2_exit:\ns_endpgm")
    a(kdesc(KNAME,NV))
```

```python
import sys
from f10 import *
opt={k:int(v) for k,v in (kv.split('=') for kv in sys.argv[1:])}
a=Asm()
for l in open('gather_scatter__edge_featured_mpnn_egc__graph.s.ref').read().split('\n'):
    if l.startswith('; Override'): break
    a(l)
if opt.get('list',0): a(f"; @launch kernel={KNAME} grid=({NWG},1,1) block=(1024,1,1) lds={F_LDS}")
else: a(f"; @launch grid=({NWG},1,1) block=(1024,1,1) lds={F_LDS}")
a('.amdgcn_target "amdgcn-amd-amdhsa--gfx950"')
gen(a,opt)
print(a.text())
```

```python
N=25000; E=400000; NB=98; NWG=256
CH=1600; NCH=250
import os
RS=int(os.environ.get('RS',512))
WS_QH   = 1<<20
WS_ENT  = 20<<20
WS_CELL = 24<<20
WS_FLAG = 25<<20
WS_DBG  = 32<<20
M49=87652394; M25=171798692
LOG2E=1.4426950408889634
import struct
def f2u(x): return struct.unpack('<I',struct.pack('<f',x))[0]

class Asm:
    def __init__(s): s.L=[]
    def __call__(s, t):
        for l in t.split('\n'):
            l=l.strip()
            if l: s.L.append(l if l.endswith(':') or l.startswith('.') or l.startswith(';') else '  '+l)
    def text(s): return '\n'.join(s.L)

def vr(a,n=1): return f"v{a}" if n==1 else f"v[{a}:{a+n-1}]"
def sr(a,n=1): return f"s{a}" if n==1 else f"s[{a}:{a+n-1}]"

def kstart(name):
    return f""".text
.globl {name}
.p2align 8
.type {name},@function
{name}:"""
def kdesc(name, v, s=102):
    return f""".section .rodata,"a"
.p2align 6
.amdhsa_kernel {name}
  .amdhsa_next_free_vgpr {v}
  .amdhsa_next_free_sgpr {s}
  .amdhsa_accum_offset {(v+3)//4*4}
  .amdhsa_group_segment_fixed_size 0
  .amdhsa_kernarg_size 80
  .amdhsa_user_sgpr_count 2
  .amdhsa_user_sgpr_kernarg_segment_ptr 1
  .amdhsa_system_sgpr_workgroup_id_x 1
  .amdhsa_float_denorm_mode_32 3
.end_amdhsa_kernel"""
def kk(p):
    s=p>>4; h=(p>>2)&1; i=((p>>3)&1)*4+(p&3)
    return 16*s+8*h+i
def srd(a, s, lo, size, add=0, w3=0x20000):
    if add:
        a(f"s_add_u32 s{s}, s{lo}, {add}\ns_addc_u32 s{s+1}, s{lo+1}, 0")
    elif s!=lo:
        a(f"s_mov_b32 s{s}, s{lo}\ns_mov_b32 s{s+1}, s{lo+1}")
    a(f"s_mov_b32 s{s+2}, {size}\ns_mov_b32 s{s+3}, {w3:#x}")

MFMA="v_mfma_f32_32x32x16_bf16"
L_W=int(os.environ.get('L_W',0)); L_XS=L_W+65536
def stage_xw(a, sW, sB, srdX, srdM0, srdM1, vl, t):
    t0,t1,t2,t3=t
    a(f"""; ---- weights: rows 4m+(lane>>4), source chunk (lane&15)^(4*(lane>>4))
    v_lshrrev_b32 v{t0}, 4, v{vl}
    v_and_b32 v{t1}, 15, v{vl}
    v_lshlrev_b32 v{t2}, 2, v{t0}
    v_xor_b32 v{t2}, v{t2}, v{t1}
    v_lshlrev_b32 v{t2}, 4, v{t2}
    v_lshl_add_u32 v{t2}, v{t0}, 8, v{t2}
    s_lshl_b32 s44, s{sW}, 11
    v_add_u32 v{t2}, s44, v{t2}
    s_mov_b32 m0, s44
    s_and_b32 s45, s{sW}, 3
    s_lshl_b32 s45, s45, 3
    buffer_load_dwordx4 v{t2}, {sr(srdM0,4)}, 0 offen lds
    buffer_load_dwordx4 v{t2}, {sr(srdM0,4)}, 0 offen offset:1024 lds
    s_add_u32 s46, s44, 32768
    s_mov_b32 m0, s46
    v_add_u32 v{t0}, s45, v{t0}
    s_lshr_b32 s45, s{sW}, 2
    buffer_load_dwordx4 v{t2}, {sr(srdM1,4)}, 0 offen lds
    buffer_load_dwordx4 v{t2}, {sr(srdM1,4)}, 0 offen offset:1024 lds
    s_mul_i32 s47, s{sB}, {NB}
    s_add_u32 s47, s47, s45
    s_add_u32 s46, s44, {L_XS}
    s_sub_u32 s45, {NB}, s45""")
    for q in range(2):
        a(f"""v_and_b32 v{t2}, 15, v{t0}
        v_xor_b32 v{t2}, v{t2}, v{t1}
        v_lshlrev_b32 v{t3}, 2, v{t0}
        v_cmp_gt_u32 vcc, s45, v{t3}
        v_add_u32 v{t3}, s47, v{t3}
        v_lshlrev_b32 v{t3}, 8, v{t3}
        v_lshl_add_u32 v{t2}, v{t2}, 4, v{t3}
        s_mov_b32 m0, s46
        v_mov_b32 v{t3}, 0x7fff0000
        v_cndmask_b32 v{t2}, v{t3}, v{t2}, vcc
        s_add_u32 s46, s46, 1024
        buffer_load_dwordx4 v{t2}, {sr(srdX,4)}, 0 offen lds""")
        if q==0: a(f"v_add_u32 v{t0}, 4, v{t0}")

def stage_w(a, sW, srdM0, srdM1, vl, t):
    t0,t1,t2=t
    a(f"""v_lshrrev_b32 v{t0}, 4, v{vl}
    v_and_b32 v{t1}, 15, v{vl}
    v_lshlrev_b32 v{t2}, 2, v{t0}
    v_xor_b32 v{t2}, v{t2}, v{t1}
    v_lshlrev_b32 v{t2}, 4, v{t2}
    v_lshl_add_u32 v{t2}, v{t0}, 8, v{t2}
    s_lshl_b32 s44, s{sW}, 11
    v_add_u32 v{t2}, s44, v{t2}
    s_add_u32 s44, s44, {L_W}
    s_mov_b32 m0, s44
    s_add_u32 s44, s44, 32768
    buffer_load_dwordx4 v{t2}, {sr(srdM0,4)}, 0 offen lds
    buffer_load_dwordx4 v{t2}, {sr(srdM0,4)}, 0 offen offset:1024 lds
    s_mov_b32 m0, s44
    s_nop 0
    buffer_load_dwordx4 v{t2}, {sr(srdM1,4)}, 0 offen lds
    buffer_load_dwordx4 v{t2}, {sr(srdM1,4)}, 0 offen offset:1024 lds""")
def stage_x(a, sW, sB, srdX, vl, t):
    t0,t1,t2,t3=t
    a(f"""v_lshrrev_b32 v{t0}, 4, v{vl}
    v_and_b32 v{t1}, 15, v{vl}
    s_and_b32 s45, s{sW}, 3
    s_lshl_b32 s45, s45, 3
    v_add_u32 v{t0}, s45, v{t0}
    s_lshr_b32 s45, s{sW}, 2
    s_mul_i32 s47, s{sB}, {NB}
    s_add_u32 s47, s47, s45
    s_lshl_b32 s46, s{sW}, 11
    s_add_u32 s46, s46, {L_XS}
    s_sub_u32 s45, {NB}, s45""")
    for q in range(2):
        a(f"""v_and_b32 v{t2}, 15, v{t0}
        v_xor_b32 v{t2}, v{t2}, v{t1}
        v_lshlrev_b32 v{t3}, 2, v{t0}
        v_cmp_gt_u32 vcc, s45, v{t3}
        v_add_u32 v{t3}, s47, v{t3}
        v_lshlrev_b32 v{t3}, 8, v{t3}
        v_lshl_add_u32 v{t2}, v{t2}, 4, v{t3}
        s_mov_b32 m0, s46
        v_mov_b32 v{t3}, 0x7fff0000
        v_cndmask_b32 v{t2}, v{t3}, v{t2}, vcc
        s_add_u32 s46, s46, 1024
        buffer_load_dwordx4 v{t2}, {sr(srdX,4)}, 0 offen lds""")
        if q==0: a(f"v_add_u32 v{t0}, 4, v{t0}")
def gemm16(a, sW, vl, D0, D1, vA, vB, t):
    ta,tb,tc=t
    a(f"""; A address
    v_and_b32 v{ta}, 31, v{vl}
    v_lshrrev_b32 v{tb}, 5, v{vl}
    v_and_b32 v{tc}, 15, v{ta}
    v_xor_b32 v{tc}, v{tc}, v{tb}
    v_lshlrev_b32 v{tc}, 4, v{tc}
    v_lshl_add_u32 v{ta}, v{ta}, 8, v{tc}
    s_lshr_b32 s44, s{sW}, 2
    s_lshl_b32 s44, s44, 13
    s_add_u32 s44, s44, {L_XS}
    v_add_u32 v{ta}, s44, v{ta}
    ; B address: (8h+r)*256 + ((4j+2*g16+(c>>1))^(4r))*16 + (c&1)*8
    v_bfe_u32 v{tc}, v{vl}, 2, 2
    v_lshl_add_u32 v{tb}, v{tb}, 3, v{tc}
    v_lshlrev_b32 v{tb}, 8, v{tb}
    v_lshlrev_b32 v{tc}, 2, v{tc}
    s_and_b32 s44, s{sW}, 3
    s_lshl_b32 s44, s44, 2
    v_xor_b32 v{tc}, s44, v{tc}
    v_lshl_add_u32 v{tb}, v{tc}, 4, v{tb}
    v_bfe_u32 v{tc}, v{vl}, 4, 1
    v_lshl_add_u32 v{tb}, v{tc}, 5, v{tb}
    v_and_b32 v{tc}, 3, v{vl}
    v_lshl_add_u32 v{tb}, v{tc}, 3, v{tb}""")
    def rd(ks):
        p=ks&1
        if ks==0: a(f"ds_read_b128 {vr(vA,4)}, v{ta}")
        else:
            a(f"v_xor_b32 v{tc}, {32*ks}, v{ta}")
            a(f"ds_read_b128 {vr(vA+4*p,4)}, v{tc}")
        for m in range(2):
            for q in range(2):
                a(f"ds_read_b64_tr_b16 {vr(vB+8*p+4*m+2*q,2)}, v{tb} offset:{m*32768+ks*4096+q*1024}")
    rd(0)
    for ks in range(8):
        p=ks&1
        if ks<7:
            rd(ks+1); a("s_waitcnt lgkmcnt(5)")
        else: a("s_waitcnt lgkmcnt(0)")
        a(f"{MFMA} {vr(D0,16)}, {vr(vA+4*p,4)}, {vr(vB+8*p,4)}, {'0' if ks==0 else vr(D0,16)}")
        a(f"{MFMA} {vr(D1,16)}, {vr(vA+4*p,4)}, {vr(vB+8*p+4,4)}, {'0' if ks==0 else vr(D1,16)}")

class Stamper:
    def __init__(s,a,on,base): s.a=a; s.on=on; s.n=0; s.base=base; s.slot={}
    def __call__(s, bit=None):
        if not s.on: return
        if bit is not None and not (s.on>>bit)&1: return
        if s.n==0:
            for k in range(1,8): s.a(f"s_mov_b32 s{s.base+k}, 0")
        if bit is None or bit not in s.slot:
            k=s.n; s.n+=1
            if bit is not None: s.slot[bit]=k
        else: k=s.slot[bit]
        s.a(f"s_memrealtime s[92:93]\ns_waitcnt lgkmcnt(0)\ns_mov_b32 s{s.base+k}, s92")
    def flush(s, kid, sW, wsreg, amp=None):
        if not s.on: return
        a=s.a
        if amp is not None:
            a("s_mov_b64 exec, -1\ns_waitcnt vmcnt(0)")
            s()
            k = s.n-1 if amp<0 else (0 if amp==0 else s.slot[amp])
            a(f"""s_sub_u32 s44, s{s.base+k}, s{s.base}
            s_min_u32 s44, s44, 10000
            s_mul_i32 s44, s44, 10
            s_add_u32 s44, s44, 10000
            s_mov_b32 s45, 0
            AMP_spin:
            s_memrealtime s[92:93]
            s_waitcnt lgkmcnt(0)
            s_sub_u32 s46, s92, s{s.base}
            s_add_u32 s45, s45, 1
            s_cmp_gt_u32 s45, 400000
            s_cbranch_scc1 AMP_done
            s_sleep 4
            s_cmp_lt_u32 s46, s44
            s_cbranch_scc1 AMP_spin
            AMP_done:""")
            return
        a(f"""s_mov_b64 exec, -1
        s_waitcnt vmcnt(0)""")
        s()
        a(f"""s_load_dwordx2 s[4:5], s[0:1], 72
        s_waitcnt lgkmcnt(0)
        s_mov_b32 s6, {256<<20}
        s_mov_b32 s7, 0x20000
        s_lshl_b32 s44, s2, 4
        s_add_u32 s44, s44, s{sW}
        s_lshl_b32 s44, s44, 6
        s_add_u32 s44, s44, {WS_DBG+kid*(1<<20)}
        v_mov_b32 v20, s44""")
        for i in range(s.n): a(f"v_mov_b32 v21, s{s.base+i}\nbuffer_store_dword v21, v20, s[4:7], 0 offen offset:{4*i}")

def stage_w8(a, sw8, srdM0, srdM1, vl, t):
    t0,t1,t2=t
    a(f"""v_lshrrev_b32 v{t0}, 4, v{vl}
    v_and_b32 v{t1}, 15, v{vl}
    v_lshlrev_b32 v{t2}, 2, v{t0}
    v_xor_b32 v{t2}, v{t2}, v{t1}
    v_lshlrev_b32 v{t2}, 4, v{t2}
    v_lshl_add_u32 v{t2}, v{t0}, 8, v{t2}
    s_lshl_b32 s44, s{sw8}, 12
    v_add_u32 v{t2}, s44, v{t2}
    s_add_u32 s44, s44, {L_W}
    s_mov_b32 m0, s44
    s_add_u32 s44, s44, 32768""")
    for k in range(4): a(f"buffer_load_dwordx4 v{t2}, {sr(srdM0,4)}, 0 offen offset:{1024*k} lds")
    a("s_mov_b32 m0, s44\ns_nop 0")
    for k in range(4): a(f"buffer_load_dwordx4 v{t2}, {sr(srdM1,4)}, 0 offen offset:{1024*k} lds")
def stage_x8(a, sw8, sB, srdX, vl, t):
    t0,t1,t2,t3=t
    a(f"""v_lshrrev_b32 v{t0}, 4, v{vl}
    v_and_b32 v{t1}, 15, v{vl}
    s_and_b32 s45, s{sw8}, 1
    s_lshl_b32 s45, s45, 4
    v_add_u32 v{t0}, s45, v{t0}
    s_lshr_b32 s45, s{sw8}, 1
    s_mul_i32 s47, s{sB}, {NB}
    s_add_u32 s47, s47, s45
    s_lshl_b32 s46, s{sw8}, 12
    s_add_u32 s46, s46, {L_XS}
    s_sub_u32 s45, {NB}, s45""")
    for q in range(4):
        a(f"""v_and_b32 v{t2}, 15, v{t0}
        v_xor_b32 v{t2}, v{t2}, v{t1}
        v_lshlrev_b32 v{t3}, 2, v{t0}
        v_cmp_gt_u32 vcc, s45, v{t3}
        v_add_u32 v{t3}, s47, v{t3}
        v_lshlrev_b32 v{t3}, 8, v{t3}
        v_lshl_add_u32 v{t2}, v{t2}, 4, v{t3}
        s_mov_b32 m0, s46
        v_mov_b32 v{t3}, 0x7fff0000
        v_cndmask_b32 v{t2}, v{t3}, v{t2}, vcc
        s_add_u32 s46, s46, 1024
        buffer_load_dwordx4 v{t2}, {sr(srdX,4)}, 0 offen lds""")
        if q<3: a(f"v_add_u32 v{t0}, 4, v{t0}")
def gemm_addr(a, sg, sj, vl, ta, tb, tc):
    a(f"""v_and_b32 v{ta}, 31, v{vl}
    v_lshrrev_b32 v{tb}, 5, v{vl}
    v_and_b32 v{tc}, 15, v{ta}
    v_xor_b32 v{tc}, v{tc}, v{tb}
    v_lshlrev_b32 v{tc}, 4, v{tc}
    v_lshl_add_u32 v{ta}, v{ta}, 8, v{tc}
    s_lshl_b32 s44, s{sg}, 13
    s_add_u32 s44, s44, {L_XS}
    v_add_u32 v{ta}, s44, v{ta}
    v_bfe_u32 v{tc}, v{vl}, 2, 2
    v_lshl_add_u32 v{tb}, v{tb}, 3, v{tc}
    v_lshlrev_b32 v{tb}, 8, v{tb}
    v_lshlrev_b32 v{tc}, 2, v{tc}
    s_lshl_b32 s44, s{sj}, 2
    v_xor_b32 v{tc}, s44, v{tc}
    v_lshl_add_u32 v{tb}, v{tc}, 4, v{tb}
    v_bfe_u32 v{tc}, v{vl}, 4, 1
    v_lshl_add_u32 v{tb}, v{tc}, 5, v{tb}
    v_and_b32 v{tc}, 3, v{vl}
    v_lshl_add_u32 v{tb}, v{tc}, 3, v{tb}""")
    if L_W: a(f"v_add_u32 v{tb}, {L_W}, v{tb}")
def gemm32(a, sg, sj, vl, D, vA, vB, t):
    ta,tb,tc,td=t
    gemm_addr(a,sg,sj,vl,ta,tb,tc)
    a(f"v_xor_b32 v{td}, 64, v{tb}")
    def rd(ks):
        p=ks&1
        if ks==0: a(f"ds_read_b128 {vr(vA,4)}, v{ta}")
        else:
            a(f"v_xor_b32 v{tc}, {32*ks}, v{ta}")
            a(f"ds_read_b128 {vr(vA+4*p,4)}, v{tc}")
        for b in range(2):
            if b and ks: a("s_waitcnt lgkmcnt(11)")
            for m in range(2):
                for q in range(2):
                    a(f"ds_read_b64_tr_b16 {vr(vB+16*p+8*b+4*m+2*q,2)}, v{td if b else tb} offset:{m*32768+ks*4096+q*1024}")
    rd(0)
    for ks in range(8):
        p=ks&1
        if ks<7:
            rd(ks+1); a("s_waitcnt lgkmcnt(9)")
        else: a("s_waitcnt lgkmcnt(0)")
        for u in range(4):
            a(f"{MFMA} {vr(D+16*u,16)}, {vr(vA+4*p,4)}, {vr(vB+16*p+4*u,4)}, {'0' if ks==0 else vr(D+16*u,16)}")

def gemm_core(a, ta, tb, tc, D0, D1, vA, vB, hook=None):
    def rd(ks):
        p=ks&1
        if ks==0: a(f"ds_read_b128 {vr(vA,4)}, v{ta}")
        else:
            a(f"v_xor_b32 v{tc}, {32*ks}, v{ta}")
            a(f"ds_read_b128 {vr(vA+4*p,4)}, v{tc}")
        for m in range(2):
            for q in range(2):
                a(f"ds_read_b64_tr_b16 {vr(vB+8*p+4*m+2*q,2)}, v{tb} offset:{m*32768+ks*4096+q*1024}")
    rd(0)
    for ks in range(8):
        p=ks&1
        if ks<7:
            rd(ks+1); a("s_waitcnt lgkmcnt(5)")
        else: a("s_waitcnt lgkmcnt(0)")
        a(f"{MFMA} {vr(D0,16)}, {vr(vA+4*p,4)}, {vr(vB+8*p,4)}, {'0' if ks==0 else vr(D0,16)}")
        a(f"{MFMA} {vr(D1,16)}, {vr(vA+4*p,4)}, {vr(vB+8*p+4,4)}, {'0' if ks==0 else vr(D1,16)}")
        if hook: hook(ks)

def gemm_one(a, ta, tb, tc, D, vA, vB, m, hook=None):
    def rd(ks):
        p=ks&1
        if ks==0: a(f"ds_read_b128 {vr(vA,4)}, v{ta}")
        else:
            a(f"v_xor_b32 v{tc}, {32*ks}, v{ta}")
            a(f"ds_read_b128 {vr(vA+4*p,4)}, v{tc}")
        for q in range(2):
            a(f"ds_read_b64_tr_b16 {vr(vB+4*p+2*q,2)}, v{tb} offset:{m*32768+ks*4096+q*1024}")
    rd(0)
    for ks in range(8):
        p=ks&1
        if ks<7:
            rd(ks+1); a("s_waitcnt lgkmcnt(3)")
        else: a("s_waitcnt lgkmcnt(0)")
        a(f"{MFMA} {vr(D,16)}, {vr(vA+4*p,4)}, {vr(vB+4*p,4)}, {'0' if ks==0 else vr(D,16)}")
        if hook: hook(ks)
```

```python
import os
os.environ['L_W']='4096'
from common import *
KNAME='gather_scatter__edge_featured_mpnn_egc__graph_kernel'
QSCALE=-LOG2E*(1-0.0027)
CAP=1856
L_TBL=0; L_CNT=2560; L_MISC=L_CNT+256; L_STATE=L_MISC+64
assert L_STATE+1024<=L_W
STW=2080; PADROW=25
L_ST=L_XS+32768
L_OFFS=L_ST+16*STW+512
NSLOT=CAP+160
L_META=L_OFFS+NSLOT*4
L_CS=L_META+NSLOT*4
F_LDS=L_CS+4096
assert F_LDS<=163840
B_CNT=L_ST; B_BASE=B_CNT+1024; B_SORT=B_BASE+7*1024
assert B_SORT+CH*8<=L_OFFS
SPIN=400000
M_TICKET=0; M_MORE=4; M_BIN=8
V_ACC=0; V_G=16; V_Z=48; V_IDX=64; V_P=80; V_C=88; V_E=92; V_I4=96; V_S=100; V_MSG=108; V_META=116
V_H16=118; V_SW=119; V_SR=120; V_ONE=121; V_ML=122; V_EL=123; V_T0=126; V_T1=127
NV=128
S_QH=8; S_EA=12; S_80=17; S_M31=18; S_W=20; S_W8=21; S_MORE=23; S_FIRST=60; S_NONCE=61
S_STEP=62; S_NSTEP=63; S_NT=64; S_PA=65; S_ERB=66; S_EWB=67; S_J=68; S_P0=69; S_NE=70; S_EF=71
V_CR=110; VL=V_MSG; VT=V_MSG+1

def lane_tid(a):
    a(f"""v_mbcnt_lo_u32_b32 v{VL}, -1, 0
    v_mbcnt_hi_u32_b32 v{VL}, -1, v{VL}
    v_lshl_add_u32 v{VT}, s{S_W}, 6, v{VL}""")
def lds_arrive(a, off, vt, sdst=None):
    a(f"v_mov_b32 v{vt}, 0\nv_mov_b32 v{vt+1}, 1\ns_mov_b64 exec, 1")
    if sdst is None: a(f"ds_add_u32 v{vt}, v{vt+1} offset:{L_MISC+off}\ns_mov_b64 exec, -1")
    else: a(f"ds_add_rtn_u32 v{vt+1}, v{vt}, v{vt+1} offset:{L_MISC+off}\ns_mov_b64 exec, -1\ns_waitcnt lgkmcnt(0)\nv_readfirstlane_b32 s{sdst}, v{vt+1}")
def lds_wait(a, off, target, vt, lab, nap=0):
    a(f"""v_mov_b32 v{vt}, 0
    {lab}:
    {'s_sleep 1' if nap else ''}
    ds_read_b32 v{vt+1}, v{vt} offset:{L_MISC+off}
    s_waitcnt lgkmcnt(0)
    v_readfirstlane_b32 s44, v{vt+1}
    s_cmp_lt_u32 s44, {target}
    s_cbranch_scc1 {lab}""")
def scan_row(a, v):
    for sh in (1,2,4,8): a(f"s_nop 1\nv_add_u32_dpp v{v}, v{v}, v{v} row_shr:{sh} row_mask:0xf bank_mask:0xf bound_ctrl:0")

def c_loads(a):
    srd(a,84,48,4096,add=65536)
    a(f"""v_and_b32 v0, 31, v{VL}
    s_and_b32 s44, s{S_W}, 3
    s_lshl_b32 s44, s44, 6
    v_lshlrev_b32 v1, 7, v{V_H16}
    v_lshl_add_u32 v1, v0, 1, v1
    v_add_u32 v1, s44, v1""")
    for i in range(8): a(f"buffer_load_ushort v{V_CR+i}, v1, s[84:87], 0 offen offset:{256*i}")
PROF=[0]
def tick(a,k):
    if not PROF[0]: return
    a(f"s_memtime s[92:93]\ns_waitcnt lgkmcnt(0)\ns_sub_u32 s91, s92, s90\ns_add_u32 s{95+k}, s{95+k}, s91\ns_mov_b32 s90, s92")
def e_slot(a, tt, dst):
    a(f"s_and_b32 s45, s{tt}, 15\ns_lshl_b32 s45, s45, 12\ns_add_u32 s{dst}, s{S_EWB}, s45")
def fetch_e(a, ahead, lab, own=False):
    if own: a(f"s_add_u32 s46, s{S_J}, {ahead}")
    else: a(f"s_cmp_lg_u32 s{S_J}, 0\ns_cbranch_scc1 {lab}\ns_add_u32 s46, s{S_STEP}, {ahead}")
    a(f"""
    s_cmp_ge_u32 s46, s{S_NT}
    s_cbranch_scc1 {lab}
    s_lshl_b32 s44, s46, 7
    s_add_u32 s44, s44, s{S_P0}
    v_add_u32 v{V_T1}, s44, v{V_ML}
    ds_read_b32 v{V_T0}, v{V_T1}""")
    e_slot(a,46,44)
    a(f"""s_mov_b32 m0, s44
    s_waitcnt lgkmcnt(0)
    v_and_or_b32 v{V_T1}, v{V_T0}, s{S_M31}, v{V_H16}""")
    if EM[0] is not None:
        a(f"s_cmp_lt_u32 s46, {EM[0]}\ns_cselect_b32 s44, -1, 0x1fffff\nv_and_b32 v{V_T1}, s44, v{V_T1}")
    a(f"""buffer_load_dwordx4 v{V_T1}, {sr(S_EA,4)}, 0 offen lds
    {lab}:""")
def fetch_e2(a, R, ED, lab):
    a(f"""s_mov_b32 s{S_EF}, 0
    s_add_u32 s46, s{S_STEP}, 11
    s_cmp_gt_u32 s{S_NE}, s46
    s_cbranch_scc1 {lab}
    s_cmp_ge_u32 s{S_NE}, s{S_NT}
    s_cbranch_scc1 {lab}
    s_lshl_b32 s44, s{S_NE}, 7
    s_add_u32 s44, s44, s{S_P0}
    v_add_u32 v{V_T1}, s44, v{V_ML}
    ds_read_b32 v{V_T0}, v{V_T1}""")
    e_slot(a,S_NE,44)
    a(f"""s_mov_b32 m0, s44
    s_add_u32 s{S_NE}, s{S_NE}, {R}
    s_mov_b32 s{S_EF}, 1
    s_waitcnt lgkmcnt(0)
    v_and_or_b32 v{V_T1}, v{V_T0}, s{S_M31}, v{V_H16}
    buffer_load_dwordx4 v{V_T1}, {sr(S_EA,4)}, 0 offen lds
    {lab}:""")
def fetch_g(a, par, ahead, lab):
    G=V_G+16*par
    a(f"""s_add_u32 s46, s{S_STEP}, {ahead}
    s_cmp_ge_u32 s46, s{S_NT}
    s_cbranch_scc1 {lab}
    v_add_u32 v{V_T1}, s{S_PA}, v{V_H16}""")
    for q in range(4): a(f"ds_read_b128 {vr(V_IDX+4*q,4)}, v{V_T1} offset:{32*q}")
    a(f"""v_add_u32 v{V_T1}, s{S_PA}, v{V_ML}
    ds_read_b32 v{V_META+par}, v{V_T1}
    s_add_u32 s{S_PA}, s{S_PA}, 128""")
    for q in range(4):
        a(f"s_waitcnt lgkmcnt({4-q})")
        for i in range(4*q,4*q+4): a(f"buffer_load_dword v{G+i}, v{V_IDX+i}, {sr(S_QH,4)}, 0 offen{QF[0]}")
    a(f"{lab}:")
QF=[' sc1']; EM=[None]; CLDS=[1]; FINL=[1]; ULATE=[1]
def early_reads(a, par, ED):
    a(f"v_add_u32 v{V_T1}, s{S_PA}, v{V_H16}")
    for q in range(4): a(f"ds_read_b128 {vr(V_IDX+4*q,4)}, v{V_T1} offset:{32*q}")
    a(f"""v_add_u32 v{V_T1}, s{S_PA}, v{V_ML}
    ds_read_b32 v{V_META+par}, v{V_T1}
    ds_read_b32 v124, v{V_T1} offset:{128*(ED-2)}""")
def late_issue(a, par, ED, u):
    G=V_G+16*par
    a(f"""s_add_u32 s46, s{S_STEP}, {ED}
    s_cmp_lt_u32 s46, s{S_NT}
    s_cselect_b32 s45, s{S_J}, 1
    s_cmp_lg_u32 s45, 0
    s_cbranch_scc1 H_fe{u}""")
    e_slot(a,46,44)
    a(f"""s_mov_b32 m0, s44
    s_nop 0
    buffer_load_dwordx4 v124, {sr(S_EA,4)}, 0 offen lds
    H_fe{u}:
    s_add_u32 s46, s{S_STEP}, 2
    s_cmp_ge_u32 s46, s{S_NT}
    s_cbranch_scc1 H_fg{u}
    s_add_u32 s{S_PA}, s{S_PA}, 128""")
    for i in range(16): a(f"buffer_load_dword v{G+i}, v{V_IDX+i}, {sr(S_QH,4)}, 0 offen{QF[0]}")
    a(f"H_fg{u}:")
def step_body(a, par, opt, k4=None):
    prio=opt.get('prio',0); G=V_G+16*par; Z=V_Z; u=str(par if k4 is None else k4)
    BP=opt.get('bp',4); ED=BP+2
    a("s_waitcnt lgkmcnt(0)")
    if k4 is not None:
        pm=opt.get('pm4',0)
        lo4={0:3-k4,1:2*(k4<2),2:int(k4<2),3:0}[pm]; hi4={0:None,1:lo4+1,2:lo4+2,3:1}[pm]
        if k4==0: a("s_barrier")
        a(f"s_setprio {lo4}")
    elif BP==1: a("s_barrier")
    elif BP==2:
        if par==0: a("s_barrier")
        if opt.get('pp',1): a(f"s_setprio {2*(1-par) if prio==3 else 1-par}")
    elif BP==8:
        if par==0:
            a(f"""s_and_b32 s44, s{S_STEP}, 6
            s_cbranch_scc1 H_q1
            s_barrier
            s_setprio 3
            s_branch H_q9
            H_q1:
            s_cmp_eq_u32 s44, 2
            s_cbranch_scc0 H_q2
            s_setprio 2
            s_branch H_q9
            H_q2:
            s_cmp_eq_u32 s44, 4
            s_cbranch_scc0 H_q3
            s_setprio 1
            s_branch H_q9
            H_q3:
            s_setprio 0
            H_q9:""")
    else:
        b='s_barrier' if par==0 else ''
        a(f"""s_and_b32 s44, s{S_STEP}, 2
        s_cbranch_scc1 H_p1{u}
        {b}
        s_setprio {3-par}
        s_branch H_p2{u}
        H_p1{u}:
        {f"s_cmp_lg_u32 s{S_STEP}, 2" if (par==0 and opt.get('ramp2',0)) else ''}
        {"s_cbranch_scc1 H_p3" if (par==0 and opt.get('ramp2',0)) else ''}
        {"s_barrier" if (par==0 and opt.get('ramp2',0)) else ''}
        {"H_p3:" if (par==0 and opt.get('ramp2',0)) else ''}
        s_setprio {1-par}
        H_p2{u}:""")
    tick(a,0)
    a(f"""s_cmp_ge_u32 s{S_STEP}, s{S_NT}
    s_cbranch_scc1 H_idle{u}
    v_and_b32 v{V_T0}, 31, v{V_META+par}
    v_mad_u32_u24 v{V_T1}, v{V_T0}, s{S_80}, v{V_H16}
    v_mad_u32_u24 v{V_T0}, v{V_T0}, s{S_80}, v{V_SW}
    ds_read_b128 {vr(V_S,4)}, v{V_T1} offset:{L_TBL}
    ds_read_b128 {vr(V_S+4,4)}, v{V_T1} offset:{L_TBL+32}""")
    e_slot(a,S_STEP,44)
    a(f"""v_add_u32 v{V_T1}, s44, v{V_EL}
    ds_read_b128 {vr(V_E,4)}, v{V_T1}
    ; younger operations: 16 table loads of the next tile, and one e request in the wave that makes them""")
    if par==0 and opt.get('ramp2',0):
        a(f"""s_waitcnt vmcnt({16+ED-opt['ramp2']})
        s_or_b32 s44, s{S_STEP}, s{S_J}
        s_cbranch_scc0 H_go0""")
    a(f"""s_waitcnt vmcnt(17)
""")
    if opt.get('er',0): a(f"s_cmp_lg_u32 s{S_EF}, 0\ns_cbranch_scc1 H_go{u}")
    else:
        a(f"""s_add_u32 s44, s{S_STEP}, {ED-1}
        s_cmp_lt_u32 s44, s{S_NT}
        s_cselect_b32 s45, s{S_J}, 1
        s_cmp_eq_u32 s45, 0
        s_cbranch_scc1 H_go{u}""")
    a(f"""s_waitcnt vmcnt(16)
    s_add_u32 s44, s{S_STEP}, 1
    s_cmp_lt_u32 s44, s{S_NT}
    s_cbranch_scc1 H_go{u}
    s_waitcnt vmcnt(0)
    H_go{u}:
    s_waitcnt lgkmcnt(0)""")
    tick(a,1)
    a(f"{MFMA} {vr(Z,16)}, {vr(V_E,4)}, {vr(V_C,4)}, {vr(G,16)}")
    X=opt.get('x',0)
    if not X&1: a(f"{MFMA} {vr(Z,16)}, {vr(V_S,4)}, {vr(V_P,4)}, {vr(Z,16)}")
    if not X&2: a(f"{MFMA} {vr(Z,16)}, {vr(V_S+4,4)}, {vr(V_P+4,4)}, {vr(Z,16)}")
    if X&3: a("s_nop 1")
    a(f"ds_write_b16_d16_hi v{V_T0}, v{V_ONE}")
    a(f"ds_read_b128 {vr(V_S,4)}, v{V_SR}")
    a(f"ds_read_b128 {vr(V_S+4,4)}, v{V_SR} offset:32")
    a(f"ds_write_b16 v{V_T0}, v{V_ONE}")
    er=opt.get('early',0)
    if er: early_reads(a,par,ED)
    else: a("s_nop 0")
    if X&4: a("s_nop 7")
    else:
        for i in range(16): a(f"v_lshlrev_b32 v{G+i}, 16, v{G+i}")
    pk=opt.get('pk',0)
    hi={0:None,1:1,2:3-par,3:2*(1-par)+1}[prio]; lo={0:None,1:0,2:1-par,3:2*(1-par)}[prio]
    if k4 is not None and hi4 is not None: prio=1; hi=hi4; lo=lo4
    if prio: a(f"s_setprio {hi}")
    for i in range(16): a(f"v_exp_f32 v{Z+i}, v{Z+i}")
    if prio: a(f"s_setprio {lo}")
    if pk&1:
        for i in range(8): a(f"v_pk_add_f32 v[{Z+2*i}:{Z+2*i+1}], v[{Z+2*i}:{Z+2*i+1}], 1.0 op_sel_hi:[1,0]")
    elif not X&8:
        for i in range(16): a(f"v_add_f32 v{Z+i}, 1.0, v{Z+i}")
    if prio: a(f"s_setprio {hi}")
    if not X&16:
        for i in range(16): a(f"v_rcp_f32 v{Z+i}, v{Z+i}")
    if prio: a(f"s_setprio {lo}")
    if pk&2:
        for i in range(8): a(f"v_pk_mul_f32 v[{Z+2*i}:{Z+2*i+1}], v[{Z+2*i}:{Z+2*i+1}], v[{G+2*i}:{G+2*i+1}]")
    else:
        for i in range(16): a(f"v_mul_f32 v{Z+i}, v{Z+i}, v{G+i}")
    if er==2:
        a("s_waitcnt lgkmcnt(0)")
        a(f"v_and_or_b32 v124, v124, s{S_M31}, v{V_H16}")
        late_issue(a,par,ED,u)
    for i in range(8): a(f"v_cvt_pk_bf16_f32 v{V_MSG+i}, v{Z+2*i}, v{Z+2*i+1}")
    a("s_waitcnt lgkmcnt(0)")
    if er==1: a(f"v_and_or_b32 v124, v124, s{S_M31}, v{V_H16}")
    else: a("s_nop 0")
    a(f"{MFMA} {vr(V_ACC,16)}, {vr(V_S,4)}, {vr(V_MSG,4)}, {vr(V_ACC,16)}")
    a(f"{MFMA} {vr(V_ACC,16)}, {vr(V_S+4,4)}, {vr(V_MSG+4,4)}, {vr(V_ACC,16)}")
    tick(a,2)
    if er==1: late_issue(a,par,ED,u)
    if opt.get('er',0): fetch_e2(a,opt['er'],ED,f"H_fe{u}")
    elif not er: fetch_e(a,ED,f"H_fe{u}")
    tick(a,3)
    if not er: fetch_g(a,par,2,f"H_fg{u}")
    tick(a,4)
    a(f"""H_idle{u}:
    s_add_u32 s{S_STEP}, s{S_STEP}, 1
    s_cmp_ge_u32 s{S_STEP}, s{S_NSTEP}""")

def main_loop(a,opt,st):
    EM[0]=opt.get('em')
    QF[0]=['',' sc1'][opt.get('qf',1)]
    if opt.get('cyc',0): a('s_memtime s[92:93]\ns_waitcnt lgkmcnt(0)\ns_mov_b32 s79, s92')
    a(f"s_mov_b32 s{S_STEP}, 0")
    if opt.get('prof',0):
        PROF[0]=1
        a("s_memtime s[92:93]\ns_waitcnt lgkmcnt(0)\ns_mov_b32 s90, s92\ns_mov_b32 s79, s92")
        for k in range(6): a(f"s_mov_b32 s{95+k}, 1")
    BP=opt.get('bp',4); ED=BP+2
    sp=opt.get('spread',0) and ED==6
    R2=opt.get('ramp2',0)
    if R2:
        for k in range(R2): fetch_e(a,k,f"H_pe{k}")
        fetch_g(a,0,0,"H_pg0")
        if opt.get('rb',1): a("s_barrier")
        for k in range(R2,ED): fetch_e(a,k,f"H_pe{k}")
        fetch_g(a,1,1,"H_pg1")
        n2=ED-R2
        a(f"""s_mov_b32 s{S_FIRST}, 0
        s_waitcnt vmcnt({32+n2})
        s_cmp_ge_u32 s{S_NT}, {ED}
        s_cbranch_scc1 H_loop
        s_waitcnt vmcnt(0)
        .p2align 3
        H_loop:""")
        step_body(a,0,opt)
        a("s_cbranch_scc1 H_done")
        step_body(a,1,opt)
        a("s_cbranch_scc0 H_loop\nH_done:")
        st(8)
        return
    if sp:
        fetch_e(a,0,"H_pe0",own=True); fetch_e(a,4,"H_pe4")
    else:
        for k in range(ED-1): fetch_e(a,k,f"H_pe{k}")
    fetch_g(a,0,0,"H_pg0")
    if opt.get('rb',1): a("s_barrier")
    fetch_e(a,ED-1,"H_pel")
    fetch_g(a,1,1,"H_pg1")
    if ULATE[0]:
        a(f"s_cmp_eq_u32 s{S_FIRST}, 0\ns_cbranch_scc1 H_nou\ns_lshr_b32 s46, s{S_W}, 2")
        gemm_addr(a,46,S_J,VL,V_T0,V_T1,125)
        gemm_one(a,V_T0,V_T1,125,V_ACC,V_E,V_IDX,1)
        a("H_nou:")
    if opt.get('er',0):
        a(f"""s_add_u32 s{S_NE}, s{S_J}, {ED}
        s_cmp_lt_u32 s{S_J}, {opt['er']}
        s_cselect_b32 s{S_NE}, s{S_NE}, 0x7fffffff
        s_cmp_gt_u32 s{S_NT}, {ED-1}
        s_cselect_b32 s44, s{S_J}, 1
        s_cmp_eq_u32 s44, 0
        s_cselect_b32 s{S_EF}, 1, 0""")
    st(7)
    a(f"""s_mov_b32 s{S_FIRST}, 0
    s_waitcnt vmcnt(33)
    s_cmp_eq_u32 s{S_J}, 0
    s_cbranch_scc1 H_pw
    s_waitcnt vmcnt(32)
    H_pw:
    s_cmp_ge_u32 s{S_NT}, {ED}
    s_cbranch_scc1 H_loop
    s_waitcnt vmcnt(0)
    .p2align 3
    H_loop:""")
    if opt.get('u4',0):
        for k in range(4):
            step_body(a,k&1,opt,k)
            a("s_cbranch_scc1 H_done" if k<3 else "s_cbranch_scc0 H_loop\nH_done:")
    else:
        step_body(a,0,opt)
        a("s_cbranch_scc1 H_done")
        step_body(a,1,opt)
        a("s_cbranch_scc0 H_loop\nH_done:")
    if opt.get('prof',0): a("s_sub_u32 s100, s90, s79")
    if opt.get('cyc',0): a('s_memtime s[92:93]\ns_waitcnt lgkmcnt(0)\ns_sub_u32 s95, s92, s79')
    if opt.get('nst',0): a(f's_add_u32 s96, s91, s87\ns_lshl_b32 s96, s96, 8\ns_add_u32 s95, s96, s{S_NSTEP}')
    st(8)
def e_touch(a, lo, hi, fl):
    a(f"""s_mul_i32 s44, s2, {CH*32}
    s_mul_i32 s45, s{S_W}, 3200
    s_add_u32 s44, s44, s45
    v_lshl_add_u32 v16, v{VL}, 7, s44
    s_mov_b64 exec, {((1<<hi)-1)^((1<<lo)-1):#x}
    buffer_load_dword v125, v16, s[12:15], 0 offen{fl}
    s_mov_b64 exec, -1""")
def q_touch(a, first, n, t=16):
    a(f"""s_lshr_b32 s44, s2, 3
    s_lshl_b32 s44, s44, 4
    s_add_u32 s44, s44, s{S_W}
    s_mul_i32 s44, s44, {n*128}
    s_add_u32 s44, s44, {first*512*128}
    v_lshl_add_u32 v{t}, v{VL}, 7, s44
    v_cmp_gt_u32 vcc, {n}, v{VL}
    s_mov_b64 exec, vcc
    buffer_load_dword v124, v{t}, s[72:75], 0 offen sc1
    s_mov_b64 exec, -1""")
def pu(a,regs,hook=None):
    ta,tb,tc,D,A,B=regs
    a(f"s_lshr_b32 s46, s{S_W}, 2\ns_and_b32 s47, s{S_W}, 3")
    gemm_addr(a,46,47,VL,ta,tb,tc)
    if CLDS[0]:
        a(f"v_add_u32 v{tc}, {L_CS-L_W}, v{tb}")
        for q in range(2): a(f"ds_read_b64_tr_b16 {vr(V_C+2*q,2)}, v{tc} offset:{1024*q}")
    if ULATE[0]: gemm_one(a,ta,tb,tc,D,A,B,0,hook)
    else: gemm_core(a,ta,tb,tc,D,V_ACC,A,B,hook)
    if not FINL[0]: pu_fin(a,D)
def pu_fin(a,D):
    a(f"s_mov_b32 s44, {f2u(-LOG2E):#x}")
    if CLDS[0]:
        for i in range(4): a(f"v_lshlrev_b32 v{V_CR+2*i}, 16, v{V_C+i}\nv_and_b32 v{V_CR+2*i+1}, 0xffff0000, v{V_C+i}")
        for i in range(8): a(f"v_mul_f32 v{V_CR+i}, s44, v{V_CR+i}")
    else:
        for i in range(8): a(f"v_lshlrev_b32 v{V_CR+i}, 16, v{V_CR+i}\nv_mul_f32 v{V_CR+i}, s44, v{V_CR+i}")
    for i in range(4): a(f"v_cvt_pk_bf16_f32 v{V_C+i}, v{V_CR+2*i}, v{V_CR+2*i+1}")
    for r in range(16): a(f"v_mul_f32 v{D+r}, s44, v{D+r}")
    for r in range(8): a(f"v_cvt_pk_bf16_f32 v{V_P+r}, v{D+2*r}, v{D+2*r+1}")

def prologue(a, opt, st):
    def BK(i):
        if opt.get('b16',1): return f"v_mul_u32_u24 v16, 42949, v{12+i}\nv_bfe_u32 v16, v16, 26, 4"
        return f"v_bfe_u32 v16, v{12+i}, 11, 4"
    CLDS[0]=opt.get('clds',1); FINL[0]=opt.get('finl',1); ULATE[0]=opt.get('ulate',0)
    xl=opt.get('xlate',1)
    a(f"""s_load_dwordx4 s[4:7], s[0:1], 0
    s_load_dwordx4 s[64:67], s[0:1], 16
    s_load_dwordx4 s[28:31], s[0:1], 32
    s_load_dwordx4 s[48:51], s[0:1], 48
    s_load_dwordx4 s[80:83], s[0:1], 64
    s_memrealtime s[58:59]""")
    if opt.get('cw',0):
        a(f"""s_getpc_b64 s[88:89]
        F_pc:
        s_mov_b32 s90, K2_exit-F_pc
        s_mov_b32 s91, 0x20000
        v_lshlrev_b32 v3, 7, v0
        v_subrev_u32 v3, {(1024-opt['cw'])*128}, v3
        buffer_load_dword v125, v3, s[88:91], 0 offen""")
    a(f"""v_lshrrev_b32 v2, 6, v0
    v_and_b32 v{VL}, 63, v0
    v_readfirstlane_b32 s{S_W}, v2
    v_mov_b32 v{VT}, v0
    s_mul_i32 s45, s2, {CH*4}
    v_lshlrev_b32 v4, 4, v0
    v_add_u32 v5, s45, v4
    v_cmp_gt_u32 vcc, {CH//4}, v0
    s_cmp_lt_u32 s2, {NCH}
    s_cselect_b64 s[78:79], vcc, 0
    s_waitcnt lgkmcnt(0)
    s_mov_b32 s68, s66
    s_mov_b32 s69, s67""")
    srd(a,64,64,E*4); srd(a,68,68,E*4)
    il=opt.get('il',0)
    def idx_loads():
        a(f"""s_mov_b64 exec, s[78:79]
        s_cbranch_execz F_noload
        buffer_load_dwordx4 v[8:11], v5, s[68:71], 0 offen
        buffer_load_dwordx4 v[12:15], v5, s[64:67], 0 offen
        F_noload:
        s_mov_b64 exec, -1""")
    if not il: idx_loads()
    a(f"""    s_mov_b32 s12, s6
    s_mov_b32 s13, s7
    s_mov_b32 s56, s82
    s_mov_b32 s57, s83
    s_mov_b32 s76, s28
    s_mov_b32 s77, s29""")
    srd(a,80,80,256)
    a(f"""s_or_b32 s58, s58, 1
    v_mov_b32 v6, 0
    v_mov_b32 v7, s58
    s_add_u32 s45, s2, s{S_W}
    s_cmp_lg_u32 s45, 0
    s_cbranch_scc1 F_nononce
    s_mov_b64 exec, 1
    buffer_store_dword v7, v6, s[80:83], 0 offen sc1
    s_mov_b64 exec, -1
    F_nononce:""")
    srd(a,4,4,N*256); srd(a,24,48,32768,add=32768); srd(a,28,30,32768)
    stage_x(a,S_W,2,4,VL,(16,17,18,19))
    def wstage():
        stage_w(a,S_W,24,28,VL,(16,17,18))
        a("v_mov_b32 v2, v18")
        if opt.get('clds',1):
            srd(a,84,48,4096,add=65536)
            a(f"""s_cmp_lt_u32 s{S_W}, 12
            s_cbranch_scc1 F_nocs
            s_and_b32 s44, s{S_W}, 3
            s_lshl_b32 s44, s44, 10
            v_and_b32 v18, 0x3ff, v18
            v_add_u32 v18, s44, v18
            s_add_u32 s44, s44, {L_CS}
            s_mov_b32 m0, s44
            s_nop 0
            buffer_load_dwordx4 v18, s[84:87], 0 offen lds
            F_nocs:""")
    if not opt.get('wlate',0): wstage()
    srd(a,12,12,E*32); srd(a,32,56,NCH*CH*8,add=WS_ENT); srd(a,36,56,NWG*2048,add=WS_CELL); srd(a,52,50,N*256)
    srd(a,72,56,N*RS,add=WS_QH)
    if opt.get('tlb',0):
        g=opt['tlb']
        srd(a,88,56,WS_CELL+NWG*2048)
        a(f"""s_cmp_lg_u32 s{S_W}, 11
        s_cbranch_scc1 F_notlb
        v_lshlrev_b32 v16, {g}, v{VL}
        buffer_load_dword v124, v16, s[88:91], 0 offen
        buffer_load_dword v125, v16, s[12:15], 0 offen
        buffer_load_dword v126, v16, s[52:55], 0 offen
        F_notlb:""")
    a(f"""s_and_b32 s46, s{S_W}, 3
    s_lshl_b32 s44, s46, 7
    s_add_u32 s44, s44, {WS_QH-128}
    s_add_u32 s8, s56, s44
    s_addc_u32 s9, s57, 0
    s_or_b32 s9, s9, 0x40000
    s_mov_b32 s10, {N*RS+128}
    s_mov_b32 s11, 0x800000
    v_lshrrev_b32 v16, 5, v{VL}
    v_lshlrev_b32 v{V_H16}, 4, v16
    v_and_b32 v17, 31, v{VL}
    """)
    a(f"""s_mul_i32 s19, s{S_W}, {STW}
    s_add_u32 s19, s19, {L_ST}
    s_movk_i32 s{S_80}, 80
    s_mov_b32 s{S_M31}, 0xffffffe0
    v_mad_u32_u24 v{V_SR}, v17, s{S_80}, v{V_H16}
    v_add_u32 v{V_SR}, s19, v{V_SR}
    v_and_b32 v19, 19, v17
    v_and_b32 v20, 4, v17
    v_lshl_add_u32 v19, v20, 1, v19
    v_and_b32 v20, 8, v17
    v_lshrrev_b32 v20, 1, v20
    v_add_u32 v19, v19, v20
    v_lshlrev_b32 v19, 1, v19
    v_add_u32 v{V_SW}, s19, v19
    v_mov_b32 v{V_ONE}, 0x3f800000
    v_lshlrev_b32 v{V_ML}, 2, v17
    v_add_u32 v{V_ML}, {L_META-L_OFFS}, v{V_ML}
    v_lshlrev_b32 v{V_EL}, 4, v{VL}
    v_mov_b32 v24, 0
    v_mov_b32 v25, 0
    v_mov_b32 v26, 0
    v_mov_b32 v27, 0
    s_cmp_lg_u32 s{S_W}, 7
    s_cbranch_scc1 F_noinit
    v_lshlrev_b32 v20, 4, v{VL}
    v_add_u32 v21, {B_CNT}, v20
    ds_write_b128 v21, v[24:27]
    ds_write_b128 v20, v[24:27]
    ds_write_b128 v20, v[24:27] offset:1024
    ds_write_b128 v20, v[24:27] offset:2048
    v_mad_u32_u24 v20, v17, s{S_80}, v19
    ds_write_b16_d16_hi v20, v{V_ONE} offset:{L_TBL}
    s_waitcnt lgkmcnt(0)
    F_noinit:
    s_mov_b32 s{S_FIRST}, 1
    s_barrier""")
    if opt.get('wlate',0): wstage()
    def ranks(w):
        a(f"""s_mov_b64 exec, s[78:79]
        s_cbranch_execz F_norank
        s_mov_b32 s44, {M49}
        s_movk_i32 s45, {NB}
        s_movk_i32 s46, {RS}
        s_mul_i32 s47, s2, {CH}
        v_lshl_add_u32 v3, v0, 2, s47
        v_lshlrev_b32 v3, 5, v3
        v_mov_b32 v7, 1
        s_waitcnt vmcnt({w})""")
        for i in range(4):
            a(f"""v_lshrrev_b32 v16, 1, v{8+i}
            v_mul_hi_u32 v16, v16, s44
            v_mul_u32_u24 v17, s45, v16
            v_sub_u32 v17, v{8+i}, v17
            v_and_b32 v18, 7, v16
            v_bfe_u32 v16, v16, 3, 5
            v_lshl_add_u32 v16, v18, 5, v16
            v_lshlrev_b32 v{8+i}, 2, v16
            v_add_u32 v16, {B_CNT}, v{8+i}
            ds_add_rtn_u32 v{20+i}, v16, v7
            v_lshrrev_b32 v16, 2, v17
            v_add3_u32 v{41+2*i}, v3, v16, {32*i if i<3 else 64}
            v_and_b32 v17, 3, v17
            {BK(i)}
            v_lshl_add_u32 v16, v17, 4, v16
            v_mul_u32_u24 v17, s46, v{12+i}
            v_lshl_or_b32 v{40+2*i}, v16, 26, v17""")
            if i==3: a(f"v_add_u32 v{41+2*i}, 32, v{41+2*i}")
        a("F_norank:\ns_mov_b64 exec, -1")
    if not il:
        ranks(6)
        a("v_mov_b32 v6, 0\ns_waitcnt vmcnt(0) lgkmcnt(0)")
    else:
        idx_loads()
        a(f"""v_mov_b32 v6, 0
        s_waitcnt vmcnt(2)
        s_cmp_lg_u64 s[78:79], 0
        s_cbranch_scc1 F_b1
        s_waitcnt vmcnt(0)
        F_b1:""")
    st(1)
    a("s_barrier")
    if il:
        ranks(0)
        a(f"s_cmp_ge_u32 s{S_W}, 7\ns_cbranch_scc1 F_binsync\ns_waitcnt lgkmcnt(0)")
        lds_arrive(a,M_BIN,16); lds_wait(a,M_BIN,7,16,"F_binw")
        a("F_binsync:")
    a("buffer_load_dword v7, v6, s[80:83], 0 offen sc1")
    srd(a,24,48,32768); srd(a,28,76,32768)
    def au():
        for k in range(4): a(f"buffer_load_dwordx4 {vr(88+4*k,4)}, v2, s[{24+4*(k>>1)}:{27+4*(k>>1)}], 0 offen offset:{1024*(k&1)}")
    if not opt.get('auin',0): au()
    if not opt.get('clds',1): c_loads(a)
    if opt.get('ew0',0): e_touch(a,0,opt['ew0'],['',' nt'][opt.get('ewf',0)])
    a(f"""    s_cmp_ge_u32 s{S_W}, 7
    s_cbranch_scc1 F_noscan
    v_lshlrev_b32 v16, 4, v{VL}
    v_add_u32 v17, {B_CNT}, v16
    ds_read_b128 v[24:27], v17
    s_lshl_b32 s44, s{S_W}, 10
    s_add_u32 s44, s44, {B_BASE}
    s_waitcnt lgkmcnt(0)
    v_add_u32 v29, v24, v25
    v_add_u32 v30, v29, v26
    v_add_u32 v31, v30, v27
    v_mov_b32 v32, v31""")
    scan_row(a,32)
    a(f"""s_nop 1
    v_add_u32_dpp v32, v32, v32 row_bcast:15 row_mask:0xa bank_mask:0xf
    s_nop 1
    v_add_u32_dpp v32, v32, v32 row_bcast:31 row_mask:0xc bank_mask:0xf
    s_nop 1
    v_sub_u32 v32, v32, v31
    v_add_u32 v33, v32, v24
    v_add_u32 v34, v32, v29
    v_add_u32 v35, v32, v30
    v_add_u32 v17, s44, v16
    ds_write_b128 v17, v[32:35]
    v_lshl_or_b32 v80, v24, 16, v32
    v_lshl_or_b32 v82, v25, 16, v33
    v_lshl_or_b32 v84, v26, 16, v34
    v_lshl_or_b32 v86, v27, 16, v35
    s_mov_b64 exec, s[78:79]""")
    for i in range(4):
        a(f"v_add_u32 v16, s44, v{8+i}\nds_read_b32 v{36+i}, v16")
    a("s_waitcnt lgkmcnt(0)")
    for i in range(4):
        a(f"v_add_u32 v16, v{36+i}, v{20+i}\nv_lshlrev_b32 v16, 3, v16\nv_add_u32 v16, {B_SORT}, v16\nds_write_b64 v16, v[{40+2*i}:{41+2*i}]")
    a(f"""s_mov_b64 exec, -1
    F_noscan:
    s_lshr_b32 s46, s{S_W}, 2
    s_and_b32 s47, s{S_W}, 3""")
    gemm_addr(a,46,47,VL,8,9,10)
    Q=48; H=64
    gemm_core(a,8,9,10,Q,H,24,32,hook=(lambda ks: au() if (ks==opt.get('auin',0)-1 and opt.get('auin',0)) else None))
    st(2)
    a(f"""s_mov_b32 s44, {SPIN}
    F_nonce_poll:
    s_waitcnt vmcnt(0)
    v_readfirstlane_b32 s{S_NONCE}, v7
    s_sub_u32 s44, s44, 1
    s_cbranch_scc1 F_nonce_ok
    s_cmp_lg_u32 s{S_NONCE}, 0
    s_cbranch_scc1 F_nonce_ok
    buffer_load_dword v7, v6, s[80:83], 0 offen sc1
    s_branch F_nonce_poll
    F_nonce_ok:
    s_mul_i32 s44, s2, {NB}
    s_add_u32 s44, s44, s46
    s_mul_i32 s44, s44, {RS}
    s_lshl_b32 s45, s47, 7
    s_add_u32 s44, s44, s45
    v_mul_u32_u24 v11, {RS}, v{V_H16}
    v_and_b32 v12, 31, v{VL}
    v_lshl_add_u32 v11, v12, 2, v11
    v_add_u32 v11, s44, v11
    s_mov_b32 s45, {f2u(QSCALE):#x}
    s_nop 1""")
    for r in range(13):
        a(f"v_mul_f32 v{Q+r}, s45, v{Q+r}")
        a(f"v_cvt_pk_bf16_f32 v{Q+r}, v{H+r}, v{Q+r}")
        if r and (r&3)==0: a(f"v_add_u32 v11, {5*4*RS}, v11")
        elif r: a(f"v_add_u32 v11, {4*RS}, v11")
        if r==12: a(f"s_cmp_ge_u32 s46, 2\ns_cbranch_scc1 F_q\ns_mov_b32 exec_hi, 0")
        a(f"buffer_store_dword v{Q+r}, v11, s[72:75], 0 offen sc1")
    a(f"""F_q:
    s_mov_b64 exec, -1
    s_barrier
    s_lshl_b32 s44, s{S_W}, 11
    s_add_u32 s44, s44, {L_W}
    v_lshl_add_u32 v16, v{VL}, 4, s44
    ds_write_b128 v16, v[88:91]
    ds_write_b128 v16, v[92:95] offset:1024
    ds_write_b128 v16, v[96:99] offset:32768
    ds_write_b128 v16, v[100:103] offset:33792
    v_cmp_gt_u32 vcc, {CH//2}, v{VT}
    s_cmp_lt_u32 s2, {NCH}
    s_cselect_b64 s[46:47], vcc, 0
    s_mov_b64 exec, s[46:47]
    s_cbranch_execz F_noent
    v_add_u32 v16, {B_SORT}, v4
    ds_read_b128 v[8:11], v16
    s_mul_i32 s45, s2, {CH*8}
    v_add_u32 v5, s45, v4
    s_waitcnt lgkmcnt(0)
    buffer_store_dwordx4 v[8:11], v5, s[32:35], 0 offen sc1
    F_noent:
    s_mov_b64 exec, -1
    s_waitcnt vmcnt(0) lgkmcnt(0)""")
    st(3)
    a(f"""s_barrier
    s_cmp_lg_u32 s{S_W}, 0
    s_cbranch_scc1 F_nocell
    v_mov_b32 v81, s{S_NONCE}
    v_mov_b32 v83, s{S_NONCE}
    v_mov_b32 v85, s{S_NONCE}
    v_mov_b32 v87, s{S_NONCE}
    s_lshl_b32 s45, s2, 11
    v_lshl_add_u32 v16, v{VL}, 5, s45
    buffer_store_dwordx4 v[80:83], v16, s[36:39], 0 offen sc1
    buffer_store_dwordx4 v[84:87], v16, s[36:39], 0 offen offset:16 sc1
    F_nocell:
    v_mov_b32 v24, 0
    v_mov_b32 v25, 0
    v_mov_b32 v26, 0
    v_mov_b32 v27, 0
    v_add_u32 v16, {L_ST}, v4
    ds_write_b128 v16, v[24:27]
    ds_write_b128 v16, v[24:27] offset:16384
    v_and_b32 v16, 0x3f0, v4
    v_add_u32 v16, {L_ST+32768}, v16
    ds_write_b128 v16, v[24:27]""")
    ew=opt.get('ew',0); ewf=['',' nt'][opt.get('ewf',0)]
    if ew: e_touch(a,0,ew,ewf)
    if opt.get('pf0',0) and 'pf0at' not in opt: q_touch(a,0,opt['pf0'])
    if opt.get('pufirst',0): pu(a,(16,17,18,64,24,32))
    a(f"""s_and_b32 s44, s2, 7
    s_lshl_b32 s44, s44, 5
    s_lshr_b32 s45, s2, 3
    s_add_u32 s44, s44, s45
    s_lshl_b32 s44, s44, 3
    v_lshrrev_b32 v19, 2, v{VT}
    v_lshl_add_u32 v18, v19, 11, s44
    """)
    if not opt.get('pufirst',0):
        pat=opt.get('pat',5)
        poll=lambda: a("buffer_load_dwordx2 v[20:21], v18, s[36:39], 0 offen sc1")
        if pat<0: poll()
        pu(a,(16,17,22,64,24,32),hook=lambda ks: (poll() if ks==pat else None, q_touch(a,0,opt['pf0'],23) if ks==opt.get('pf0at',-1) else None))
        a(f"s_mov_b32 s44, {SPIN}\ns_branch F_cell_chk")
    a(f"""s_mov_b32 s44, {SPIN}
    F_cell_poll:
    buffer_load_dwordx2 v[20:21], v18, s[36:39], 0 offen sc1
    F_cell_chk:
    s_waitcnt vmcnt(0)
    v_cmp_eq_u32 vcc, s{S_NONCE}, v21
    s_cmp_eq_u64 vcc, -1
    s_cbranch_scc1 F_cell_ok
    s_sub_u32 s44, s44, 1
    s_cbranch_scc1 F_cell_ok
    s_sleep {opt.get('csleep',1)}
    s_branch F_cell_poll
    F_cell_ok:
    v_cndmask_b32 v21, 0, v20, vcc""")
    st(4)
    a(f"""s_branch F_take
    K2_round:""")
    lane_tid(a)
    a(f"""s_barrier
    s_cmp_lg_u32 s{S_W}, 7
    s_cbranch_scc1 F_noclr
    v_mov_b32 v24, 0
    v_mov_b32 v25, 0
    v_mov_b32 v26, 0
    v_mov_b32 v27, 0
    v_lshlrev_b32 v20, 4, v{VL}
    v_min_u32 v20, 304, v20
    ds_write_b128 v20, v[24:27] offset:{L_CNT}
    s_waitcnt lgkmcnt(0)
    F_noclr:
    s_barrier
    v_lshrrev_b32 v19, 2, v{VT}
    v_lshlrev_b32 v20, 2, v19
    ds_read_b32 v21, v20 offset:{L_STATE}
    s_waitcnt lgkmcnt(0)
    F_take:
    v_lshrrev_b32 v22, 16, v21
    v_min_u32 v23, 32, v22
    v_and_b32 v21, 0xffff, v21
    v_and_b32 v28, 3, v{VT}
    s_movk_i32 s46, {CH}
    v_mad_u32_u24 v30, v19, s46, v21
    v_lshlrev_b32 v27, 1, v28
    v_add_u32 v30, v30, v27
    v_lshlrev_b32 v30, 3, v30
    v_sub_u32 v26, v23, v27""")
    for k in range(4):
        a(f"""v_cmp_lt_i32 vcc, {8*k}, v26
        s_cbranch_vccz F_ld_done
        s_mov_b64 exec, vcc
        buffer_load_dwordx4 v[{32+4*k}:{35+4*k}], v30, s[32:35], 0 offen offset:{64*k} sc1
        s_mov_b64 exec, -1""")
    a(f"""F_ld_done:
    v_mov_b32 v29, 0
    v_cmp_eq_u32 vcc, 0, v28
    s_and_saveexec_b64 s[44:45], vcc
    ds_add_rtn_u32 v30, v29, v23 offset:{L_MISC+M_TICKET}
    s_waitcnt lgkmcnt(0)
    v_add_u32 v30, v30, v23
    v_cmp_ge_u32 vcc, {CAP}, v30
    s_nop 1
    v_cndmask_b32 v23, 0, v23, vcc
    v_sub_u32 v22, v22, v23
    v_add_u32 v30, v21, v23
    v_lshl_or_b32 v30, v22, 16, v30
    v_lshlrev_b32 v31, 2, v19
    ds_write_b32 v31, v30 offset:{L_STATE}
    v_cmp_lt_u32 vcc, 0, v22
    s_and_b64 exec, exec, vcc
    v_mov_b32 v30, 1
    ds_write_b32 v29, v30 offset:{L_MISC+M_MORE}
    s_mov_b64 exec, s[44:45]
    s_nop 4
    v_mov_b32_dpp v23, v23 quad_perm:[0,0,0,0] row_mask:0xf bank_mask:0xf
    v_sub_u32 v23, v23, v27
    v_mov_b32 v29, 1""")
    if FINL[0]:
        a(f"s_cmp_eq_u32 s{S_FIRST}, 0\ns_cbranch_scc1 F_nofin")
        pu_fin(a,64)
        a("F_nofin:")
    for k in range(4):
        for i in range(2): a(f"v_cmp_lt_i32 s[{80+4*k+2*i}:{81+4*k+2*i}], {8*k+i}, v23") if k<2 else None
    a(f"""s_mov_b32 s46, 0xffffff
    s_mov_b32 s47, {(N-1)*RS}
    s_waitcnt vmcnt(0)""")
    def mask(k,i):
        if k<2: return f"s[{80+4*k+2*i}:{81+4*k+2*i}]"
        a(f"v_cmp_lt_i32 vcc, {8*k+i}, v23"); return "vcc"
    for k in range(4):
        for i in range(2):
            m=mask(k,i); e=32+4*k+2*i
            if i==0: a(f"s_cmp_eq_u64 {m}, 0\ns_cbranch_scc1 F_rk_done")
            a(f"""v_lshrrev_b32 v{48+2*k+i}, 24, v{e}
            s_mov_b64 exec, {m}
            ds_add_rtn_u32 v{64+2*k+i}, v{48+2*k+i}, v29 offset:{L_CNT}
            s_mov_b64 exec, -1
            v_and_b32 v{e}, s46, v{e}
            v_min_u32 v{e}, s47, v{e}
            v_add_u32 v{e}, 128, v{e}""")
    a(f"""F_rk_done:
    s_waitcnt lgkmcnt(0)""")
    st(5)
    a("s_barrier")
    npf=opt.get('pf',16)
    if npf:
        a(f"""s_cmp_eq_u32 s{S_FIRST}, 0
        s_cbranch_scc1 F_nopf""")
        q_touch(a,opt.get("pf0",0),npf)
        if opt.get('ew2',0): e_touch(a,opt.get('ew',0),opt['ew2'],['',' nt'][opt.get('ewf',0)])
        a(f"""
        F_nopf:""")
    a(f"""v_lshlrev_b32 v16, 2, v{VL}
    ds_read_b32 v17, v16 offset:{L_CNT}
    v_mov_b32 v16, 0
    ds_read_b32 v18, v16 offset:{L_MISC+M_MORE}
    s_waitcnt lgkmcnt(0)
    v_mov_b32 v20, v17
    v_readfirstlane_b32 s{S_MORE}, v18""")
    scan_row(a,20)
    a(f"""s_lshr_b32 s47, s{S_W}, 2
    s_lshl_b32 s45, s47, 4
    s_add_u32 s44, s45, 15
    v_add_u32 v21, 31, v20
    v_lshrrev_b32 v21, 5, v21
    v_mov_b32 v18, 0
    v_mov_b32 v22, 0
    v_readlane_b32 s88, v20, s44
    v_mov_b32_dpp v18, v21 row_bcast:15 row_mask:0xa bank_mask:0xf
    v_readlane_b32 s{S_NT}, v21, s44
    v_add_u32 v16, v21, v18
    v_max_u32 v21, v21, v18
    v_sub_u32 v20, v20, v17
    v_mov_b32_dpp v22, v16 row_bcast:31 row_mask:0xc bank_mask:0xf
    v_readlane_b32 s89, v21, 31
    v_readlane_b32 s90, v21, 63
    v_add_u32 v18, v18, v22
    s_nop 0
    v_readlane_b32 s91, v18, s45
    v_lshl_add_u32 v20, v18, 5, v20
    s_max_u32 s{S_NSTEP}, s89, s90""")
    a(f"s_mov_b32 s46, {L_OFFS}\ns_movk_i32 s47, -128")
    for half in range(2):
        if half: a(f"v_cmp_lt_i32 vcc, 16, v23\ns_cbranch_vccz F_pos_done")
        for q in range(4*half,4*half+4): a(f"ds_bpermute_b32 v{48+q}, v{48+q}, v20")
        for k in range(2*half,2*half+2):
            if k==2*half: a("s_waitcnt lgkmcnt(0)")
            for i in range(2):
                q=2*k+i; e=32+4*k+2*i
                a(f"""v_add_u32 v{48+q}, v{48+q}, v{64+q}
                v_bfe_u32 v16, v{48+q}, 2, 1
                v_mad_i32_i24 v{e}, v16, s47, v{e}
                v_lshl_add_u32 v{48+q}, v{48+q}, 2, s46""")
                m=mask(k,i)
                a(f"""s_mov_b64 exec, {m}
                ds_write_b32 v{48+q}, v{e}
                ds_write_b32 v{48+q}, v{e+1} offset:{L_META-L_OFFS}
                s_mov_b64 exec, -1""")
    a(f"""F_pos_done:
    s_lshl_b32 s{S_PA}, s91, 7
    s_add_u32 s{S_PA}, s{S_PA}, {L_OFFS}
    s_mov_b32 s{S_P0}, s{S_PA}
    s_and_b32 s{S_J}, s{S_W}, 3
    s_lshr_b32 s{S_EWB}, s{S_W}, 2
    s_lshl_b32 s{S_EWB}, s{S_EWB}, 10
    s_add_u32 s{S_EWB}, s{S_EWB}, {L_W}
    s_mov_b32 s44, s88
    s_mov_b32 s45, s91
    s_mov_b32 s46, s{S_NT}
    s_and_b32 s58, s44, 31
    s_cbranch_scc0 K2_nopad
    s_cmp_lg_u32 s{S_J}, 3
    s_cbranch_scc1 K2_nopad
    v_and_b32 v16, 31, v{VL}
    v_cmp_le_u32 vcc, s58, v16
    s_add_u32 s59, s45, s46
    s_sub_u32 s59, s59, 1
    s_lshl_b32 s59, s59, 7
    s_add_u32 s59, s59, {L_OFFS}
    s_mul_i32 s58, s2, {NB*RS}
    v_and_b32 v17, 4, v16
    v_lshlrev_b32 v17, 5, v17
    v_sub_u32 v17, 128, v17
    v_add_u32 v17, s58, v17
    v_lshl_add_u32 v18, v16, 2, s59
    v_mov_b32 v19, {PADROW}
    s_and_saveexec_b64 s[46:47], vcc
    ds_write_b32 v18, v17
    ds_write_b32 v18, v19 offset:{L_META-L_OFFS}
    s_mov_b64 exec, s[46:47]
    K2_nopad:
    s_waitcnt lgkmcnt(0)""")
    st(6)
    a("s_barrier")

def epilogue(a,opt,st):
    a(f"""s_cmp_lg_u32 s{S_MORE}, 0
    s_cbranch_scc1 K2_round
    s_mul_i32 s44, s2, {NB}
    s_lshr_b32 s45, s{S_W}, 2
    s_add_u32 s44, s44, s45
    s_lshl_b32 s44, s44, 8
    s_and_b32 s46, s{S_W}, 3
    s_lshl_b32 s46, s46, 6
    s_add_u32 s44, s44, s46
    s_sub_u32 s44, s44, {(L_META-L_OFFS)//2}
    v_lshlrev_b32 v16, 8, v{V_H16}
    v_lshrrev_b32 v17, 1, v{V_ML}
    v_add3_u32 v16, v16, v17, s44
    s_mov_b32 s47, {f2u(-LOG2E):#x}
    s_nop 4""")
    for r in range(13): a(f"v_mul_f32 v{V_Z+r}, s47, v{V_ACC+r}")
    for r in range(13): a(f"v_exp_f32 v{V_Z+r}, v{V_Z+r}")
    for r in range(13): a(f"v_add_f32 v{V_Z+r}, 1.0, v{V_Z+r}")
    for r in range(13): a(f"v_rcp_f32 v{V_Z+r}, v{V_Z+r}")
    for r in range(13): a(f"v_mul_f32 v{V_Z+r}, v{V_Z+r}, v{V_ACC+r}")
    for r in range(13): a(f"v_cvt_pk_bf16_f32 v{V_Z+r}, v{V_Z+r}, v{V_Z+r}")
    OF=['',' sc1',' nt',' sc0 sc1'][opt.get('of',1)]
    if opt.get('wide',0):
        a(f"""s_lshl_b32 s44, s45, 8
        s_add_u32 s44, s44, s46
        s_add_u32 s44, s44, {L_XS-(L_META-L_OFFS)//2}
        v_lshlrev_b32 v16, 8, v{V_H16}
        v_add3_u32 v16, v16, v17, s44""")
        for r in range(13): a(f"ds_write_b16 v16, v{V_Z+r} offset:{(r>>2)*8192+(r&3)*1024}")
        lane_tid(a)
        a(f"""v_lshlrev_b32 v16, 4, v{VT}
        v_add_u32 v17, {L_XS}, v16
        s_mul_i32 s44, s2, {NB*256}
        v_add_u32 v16, s44, v16
        v_add_u32 v18, 16384, v16
        v_cmp_gt_u32 vcc, {NB*16-1024}, v{VT}
        s_waitcnt lgkmcnt(0)
        s_barrier
        ds_read_b128 v[20:23], v17
        ds_read_b128 v[24:27], v17 offset:16384
        s_waitcnt lgkmcnt(1)
        buffer_store_dwordx4 v[20:23], v16, s[52:55], 0 offen{OF}
        s_and_saveexec_b64 s[46:47], vcc
        s_cbranch_execz K2_done
        s_waitcnt lgkmcnt(0)
        buffer_store_dwordx4 v[24:27], v18, s[52:55], 0 offen{OF}""")
        return
    for r in range(13):
        if r==12:
            a(f"""s_cmp_ge_u32 s45, 2
            s_cbranch_scc1 K2_done
            s_mov_b32 exec_hi, 0""")
        if r and (r&3)==0: a(f"v_add_u32 v16, 8192, v16")
        a(f"buffer_store_short v{V_Z+r}, v16, s[52:55], 0 offen offset:{(r&3)*1024}{['',' sc1',' nt',' sc0 sc1'][opt.get('of',1)]}")


def gen(a,opt):
    st=Stamper(a,opt.get('stamp',0),94)
    a(kstart(KNAME))
    a(f"s_cmp_ge_u32 s2, {NWG}\ns_cbranch_scc1 K2_exit")
    st()
    prologue(a,opt,st); main_loop(a,opt,st); epilogue(a,opt,st)
    a("K2_done:"); st.flush(0,S_W,56,opt.get('amp')); a("K2_exit:\ns_endpgm")
    a(kdesc(KNAME,NV))
```

```python
import sys
from f11 import *
opt={k:int(v) for k,v in (kv.split('=') for kv in sys.argv[1:])}
a=Asm()
for l in open('gather_scatter__edge_featured_mpnn_egc__graph.s.ref').read().split('\n'):
    if l.startswith('; Override'): break
    a(l)
a(f"; @launch grid=({NWG},1,1) block=(1024,1,1) lds={F_LDS}")
a(f""";
; 6. out = silu(x @ u_w + agg).""")
a('.amdgcn_target "amdgcn-amd-amdhsa--gfx950"')
gen(a,opt)
print(a.text())
```

```python
import os
os.environ['L_W']='4096'
from common import *
KNAME='gather_scatter__edge_featured_mpnn_egc__graph_kernel'
QSCALE=-LOG2E*(1-0.0027)
CAP=1856
L_TBL=0; L_CNT=2560; L_MISC=L_CNT+256; L_STATE=L_MISC+64
assert L_STATE+1024<=L_W
STW=2080; PADROW=25
L_ST=L_XS+32768
L_OFFS=L_ST+16*STW+512
NSLOT=CAP+160
L_META=L_OFFS+NSLOT*4
L_CS=L_META+NSLOT*4
F_LDS=L_CS+4096
assert F_LDS<=163840
B_CNT=L_ST; B_BASE=B_CNT+1024; B_SORT=B_BASE+7*1024
assert B_SORT+CH*8<=L_OFFS
SPIN=400000
M_TICKET=0; M_MORE=4; M_BIN=8
V_ACC=0; V_G=16; V_Z=48; V_IDX=64; V_P=80; V_C=88; V_E=92; V_I4=96; V_S=100; V_MSG=108; V_META=116
V_H16=118; V_SW=119; V_SR=120; V_ONE=121; V_ML=122; V_EL=123; V_T0=126; V_T1=127
NV=128
S_QH=8; S_EA=12; S_80=17; S_M31=18; S_W=20; S_W8=21; S_MORE=23; S_FIRST=60; S_NONCE=61
S_STEP=62; S_NSTEP=63; S_NT=64; S_PA=65; S_ERB=66; S_EWB=67; S_J=68; S_P0=69; S_NE=70; S_EF=71
V_CR=110; VL=V_MSG; VT=V_MSG+1

def lane_tid(a):
    a(f"""v_mbcnt_lo_u32_b32 v{VL}, -1, 0
    v_mbcnt_hi_u32_b32 v{VL}, -1, v{VL}
    v_lshl_add_u32 v{VT}, s{S_W}, 6, v{VL}""")
def lds_arrive(a, off, vt, sdst=None):
    a(f"v_mov_b32 v{vt}, 0\nv_mov_b32 v{vt+1}, 1\ns_mov_b64 exec, 1")
    if sdst is None: a(f"ds_add_u32 v{vt}, v{vt+1} offset:{L_MISC+off}\ns_mov_b64 exec, -1")
    else: a(f"ds_add_rtn_u32 v{vt+1}, v{vt}, v{vt+1} offset:{L_MISC+off}\ns_mov_b64 exec, -1\ns_waitcnt lgkmcnt(0)\nv_readfirstlane_b32 s{sdst}, v{vt+1}")
def lds_wait(a, off, target, vt, lab, nap=0):
    a(f"""v_mov_b32 v{vt}, 0
    {lab}:
    {'s_sleep 1' if nap else ''}
    ds_read_b32 v{vt+1}, v{vt} offset:{L_MISC+off}
    s_waitcnt lgkmcnt(0)
    v_readfirstlane_b32 s44, v{vt+1}
    s_cmp_lt_u32 s44, {target}
    s_cbranch_scc1 {lab}""")
def scan_row(a, v):
    for sh in (1,2,4,8): a(f"s_nop 1\nv_add_u32_dpp v{v}, v{v}, v{v} row_shr:{sh} row_mask:0xf bank_mask:0xf bound_ctrl:0")

def c_loads(a):
    srd(a,84,48,4096,add=65536)
    a(f"""v_and_b32 v0, 31, v{VL}
    s_and_b32 s44, s{S_W}, 3
    s_lshl_b32 s44, s44, 6
    v_lshlrev_b32 v1, 7, v{V_H16}
    v_lshl_add_u32 v1, v0, 1, v1
    v_add_u32 v1, s44, v1""")
    for i in range(8): a(f"buffer_load_ushort v{V_CR+i}, v1, s[84:87], 0 offen offset:{256*i}")
PROF=[0]
def tick(a,k):
    if not PROF[0]: return
    a(f"s_memtime s[92:93]\ns_waitcnt lgkmcnt(0)\ns_sub_u32 s91, s92, s90\ns_add_u32 s{95+k}, s{95+k}, s91\ns_mov_b32 s90, s92")
def e_slot(a, tt, dst):
    a(f"s_and_b32 s45, s{tt}, 15\ns_lshl_b32 s45, s45, 12\ns_add_u32 s{dst}, s{S_EWB}, s45")
def fetch_e(a, ahead, lab, own=False):
    if own: a(f"s_add_u32 s46, s{S_J}, {ahead}")
    else: a(f"s_cmp_lg_u32 s{S_J}, 0\ns_cbranch_scc1 {lab}\ns_add_u32 s46, s{S_STEP}, {ahead}")
    a(f"""
    s_cmp_ge_u32 s46, s{S_NT}
    s_cbranch_scc1 {lab}
    s_lshl_b32 s44, s46, 7
    s_add_u32 s44, s44, s{S_P0}
    v_add_u32 v{V_T1}, s44, v{V_ML}
    ds_read_b32 v{V_T0}, v{V_T1}""")
    e_slot(a,46,44)
    a(f"""s_mov_b32 m0, s44
    s_waitcnt lgkmcnt(0)
    v_and_or_b32 v{V_T1}, v{V_T0}, s{S_M31}, v{V_H16}""")
    if EM[0] is not None:
        a(f"s_cmp_lt_u32 s46, {EM[0]}\ns_cselect_b32 s44, -1, 0x1fffff\nv_and_b32 v{V_T1}, s44, v{V_T1}")
    a(f"""buffer_load_dwordx4 v{V_T1}, {sr(S_EA,4)}, 0 offen lds
    {lab}:""")
def fetch_e2(a, R, ED, lab):
    a(f"""s_mov_b32 s{S_EF}, 0
    s_add_u32 s46, s{S_STEP}, 11
    s_cmp_gt_u32 s{S_NE}, s46
    s_cbranch_scc1 {lab}
    s_cmp_ge_u32 s{S_NE}, s{S_NT}
    s_cbranch_scc1 {lab}
    s_lshl_b32 s44, s{S_NE}, 7
    s_add_u32 s44, s44, s{S_P0}
    v_add_u32 v{V_T1}, s44, v{V_ML}
    ds_read_b32 v{V_T0}, v{V_T1}""")
    e_slot(a,S_NE,44)
    a(f"""s_mov_b32 m0, s44
    s_add_u32 s{S_NE}, s{S_NE}, {R}
    s_mov_b32 s{S_EF}, 1
    s_waitcnt lgkmcnt(0)
    v_and_or_b32 v{V_T1}, v{V_T0}, s{S_M31}, v{V_H16}
    buffer_load_dwordx4 v{V_T1}, {sr(S_EA,4)}, 0 offen lds
    {lab}:""")
def fetch_g(a, par, ahead, lab):
    G=V_G+16*par
    a(f"""s_add_u32 s46, s{S_STEP}, {ahead}
    s_cmp_ge_u32 s46, s{S_NT}
    s_cbranch_scc1 {lab}
    v_add_u32 v{V_T1}, s{S_PA}, v{V_H16}""")
    for q in range(4): a(f"ds_read_b128 {vr(V_IDX+4*q,4)}, v{V_T1} offset:{32*q}")
    a(f"""v_add_u32 v{V_T1}, s{S_PA}, v{V_ML}
    ds_read_b32 v{V_META+par}, v{V_T1}
    s_add_u32 s{S_PA}, s{S_PA}, 128""")
    for q in range(4):
        a(f"s_waitcnt lgkmcnt({4-q})")
        for i in range(4*q,4*q+4): a(f"buffer_load_dword v{G+i}, v{V_IDX+i}, {sr(S_QH,4)}, 0 offen{QF[0]}")
    a(f"{lab}:")
QF=[' sc1']; EM=[None]; CLDS=[1]; FINL=[1]; ULATE=[1]
def early_reads(a, par, ED):
    a(f"v_add_u32 v{V_T1}, s{S_PA}, v{V_H16}")
    for q in range(4): a(f"ds_read_b128 {vr(V_IDX+4*q,4)}, v{V_T1} offset:{32*q}")
    a(f"""v_add_u32 v{V_T1}, s{S_PA}, v{V_ML}
    ds_read_b32 v{V_META+par}, v{V_T1}
    ds_read_b32 v124, v{V_T1} offset:{128*(ED-2)}""")
def late_issue(a, par, ED, u):
    G=V_G+16*par
    a(f"""s_add_u32 s46, s{S_STEP}, {ED}
    s_cmp_lt_u32 s46, s{S_NT}
    s_cselect_b32 s45, s{S_J}, 1
    s_cmp_lg_u32 s45, 0
    s_cbranch_scc1 H_fe{u}""")
    e_slot(a,46,44)
    a(f"""s_mov_b32 m0, s44
    s_nop 0
    buffer_load_dwordx4 v124, {sr(S_EA,4)}, 0 offen lds
    H_fe{u}:
    s_add_u32 s46, s{S_STEP}, 2
    s_cmp_ge_u32 s46, s{S_NT}
    s_cbranch_scc1 H_fg{u}
    s_add_u32 s{S_PA}, s{S_PA}, 128""")
    for i in range(16): a(f"buffer_load_dword v{G+i}, v{V_IDX+i}, {sr(S_QH,4)}, 0 offen{QF[0]}")
    a(f"H_fg{u}:")
def step_body(a, par, opt, k4=None):
    prio=opt.get('prio',0); G=V_G+16*par; Z=V_Z; u=str(par if k4 is None else k4)
    BP=opt.get('bp',4); ED=BP+2
    a("s_waitcnt lgkmcnt(0)")
    if k4 is not None:
        pm=opt.get('pm4',0)
        lo4={0:3-k4,1:2*(k4<2),2:int(k4<2),3:0}[pm]; hi4={0:None,1:lo4+1,2:lo4+2,3:1}[pm]
        if k4==0: a("s_barrier")
        a(f"s_setprio {lo4}")
    elif BP==1: a("s_barrier")
    elif BP==2:
        if par==0: a("s_barrier")
        if opt.get('pp',1): a(f"s_setprio {2*(1-par) if prio==3 else 1-par}")
    elif BP==8:
        if par==0:
            a(f"""s_and_b32 s44, s{S_STEP}, 6
            s_cbranch_scc1 H_q1
            s_barrier
            s_setprio 3
            s_branch H_q9
            H_q1:
            s_cmp_eq_u32 s44, 2
            s_cbranch_scc0 H_q2
            s_setprio 2
            s_branch H_q9
            H_q2:
            s_cmp_eq_u32 s44, 4
            s_cbranch_scc0 H_q3
            s_setprio 1
            s_branch H_q9
            H_q3:
            s_setprio 0
            H_q9:""")
    else:
        b='s_barrier' if par==0 else ''
        a(f"""s_and_b32 s44, s{S_STEP}, 2
        s_cbranch_scc1 H_p1{u}
        {b}
        s_setprio {3-par}
        s_branch H_p2{u}
        H_p1{u}:
        {f"s_cmp_lg_u32 s{S_STEP}, 2" if (par==0 and opt.get('ramp2',0)) else ''}
        {"s_cbranch_scc1 H_p3" if (par==0 and opt.get('ramp2',0)) else ''}
        {"s_barrier" if (par==0 and opt.get('ramp2',0)) else ''}
        {"H_p3:" if (par==0 and opt.get('ramp2',0)) else ''}
        s_setprio {1-par}
        H_p2{u}:""")
    tick(a,0)
    a(f"""s_cmp_ge_u32 s{S_STEP}, s{S_NT}
    s_cbranch_scc1 H_idle{u}
    v_and_b32 v{V_T0}, 31, v{V_META+par}
    v_mad_u32_u24 v{V_T1}, v{V_T0}, s{S_80}, v{V_H16}
    v_mad_u32_u24 v{V_T0}, v{V_T0}, s{S_80}, v{V_SW}
    ds_read_b128 {vr(V_S,4)}, v{V_T1} offset:{L_TBL}
    ds_read_b128 {vr(V_S+4,4)}, v{V_T1} offset:{L_TBL+32}""")
    e_slot(a,S_STEP,44)
    a(f"""v_add_u32 v{V_T1}, s44, v{V_EL}
    ds_read_b128 {vr(V_E,4)}, v{V_T1}
    ; younger operations: 16 table loads of the next tile, and one e request in the wave that makes them""")
    if par==0 and opt.get('ramp2',0):
        a(f"""s_waitcnt vmcnt({16+ED-opt['ramp2']})
        s_or_b32 s44, s{S_STEP}, s{S_J}
        s_cbranch_scc0 H_go0""")
    a(f"""s_waitcnt vmcnt(17)
""")
    if opt.get('er',0): a(f"s_cmp_lg_u32 s{S_EF}, 0\ns_cbranch_scc1 H_go{u}")
    else:
        a(f"""s_add_u32 s44, s{S_STEP}, {ED-1}
        s_cmp_lt_u32 s44, s{S_NT}
        s_cselect_b32 s45, s{S_J}, 1
        s_cmp_eq_u32 s45, 0
        s_cbranch_scc1 H_go{u}""")
    a(f"""s_waitcnt vmcnt(16)
    s_add_u32 s44, s{S_STEP}, 1
    s_cmp_lt_u32 s44, s{S_NT}
    s_cbranch_scc1 H_go{u}
    s_waitcnt vmcnt(0)
    H_go{u}:
    s_waitcnt lgkmcnt(0)""")
    tick(a,1)
    a(f"{MFMA} {vr(Z,16)}, {vr(V_E,4)}, {vr(V_C,4)}, {vr(G,16)}")
    X=opt.get('x',0)
    if not X&1: a(f"{MFMA} {vr(Z,16)}, {vr(V_S,4)}, {vr(V_P,4)}, {vr(Z,16)}")
    if not X&2: a(f"{MFMA} {vr(Z,16)}, {vr(V_S+4,4)}, {vr(V_P+4,4)}, {vr(Z,16)}")
    if X&3: a("s_nop 1")
    a(f"ds_write_b16_d16_hi v{V_T0}, v{V_ONE}")
    a(f"ds_read_b128 {vr(V_S,4)}, v{V_SR}")
    a(f"ds_read_b128 {vr(V_S+4,4)}, v{V_SR} offset:32")
    a(f"ds_write_b16 v{V_T0}, v{V_ONE}")
    er=opt.get('early',0)
    if er: early_reads(a,par,ED)
    else: a("s_nop 0")
    if X&4: a("s_nop 7")
    else:
        for i in range(16): a(f"v_lshlrev_b32 v{G+i}, 16, v{G+i}")
    pk=opt.get('pk',0)
    hi={0:None,1:1,2:3-par,3:2*(1-par)+1}[prio]; lo={0:None,1:0,2:1-par,3:2*(1-par)}[prio]
    if k4 is not None and hi4 is not None: prio=1; hi=hi4; lo=lo4
    if prio: a(f"s_setprio {hi}")
    for i in range(16): a(f"v_exp_f32 v{Z+i}, v{Z+i}")
    if prio: a(f"s_setprio {lo}")
    if pk&1:
        for i in range(8): a(f"v_pk_add_f32 v[{Z+2*i}:{Z+2*i+1}], v[{Z+2*i}:{Z+2*i+1}], 1.0 op_sel_hi:[1,0]")
    elif not X&8:
        for i in range(16): a(f"v_add_f32 v{Z+i}, 1.0, v{Z+i}")
    if prio: a(f"s_setprio {hi}")
    if not X&16:
        for i in range(16): a(f"v_rcp_f32 v{Z+i}, v{Z+i}")
    if prio: a(f"s_setprio {lo}")
    if pk&2:
        for i in range(8): a(f"v_pk_mul_f32 v[{Z+2*i}:{Z+2*i+1}], v[{Z+2*i}:{Z+2*i+1}], v[{G+2*i}:{G+2*i+1}]")
    else:
        for i in range(16): a(f"v_mul_f32 v{Z+i}, v{Z+i}, v{G+i}")
    if er==2:
        a("s_waitcnt lgkmcnt(0)")
        a(f"v_and_or_b32 v124, v124, s{S_M31}, v{V_H16}")
        late_issue(a,par,ED,u)
    for i in range(8): a(f"v_cvt_pk_bf16_f32 v{V_MSG+i}, v{Z+2*i}, v{Z+2*i+1}")
    a("s_waitcnt lgkmcnt(0)")
    if er==1: a(f"v_and_or_b32 v124, v124, s{S_M31}, v{V_H16}")
    else: a("s_nop 0")
    a(f"{MFMA} {vr(V_ACC,16)}, {vr(V_S,4)}, {vr(V_MSG,4)}, {vr(V_ACC,16)}")
    a(f"{MFMA} {vr(V_ACC,16)}, {vr(V_S+4,4)}, {vr(V_MSG+4,4)}, {vr(V_ACC,16)}")
    tick(a,2)
    if er==1: late_issue(a,par,ED,u)
    if opt.get('er',0): fetch_e2(a,opt['er'],ED,f"H_fe{u}")
    elif not er: fetch_e(a,ED,f"H_fe{u}")
    tick(a,3)
    if not er: fetch_g(a,par,2,f"H_fg{u}")
    tick(a,4)
    a(f"""H_idle{u}:
    s_add_u32 s{S_STEP}, s{S_STEP}, 1
    s_cmp_ge_u32 s{S_STEP}, s{S_NSTEP}""")

def main_loop(a,opt,st):
    EM[0]=opt.get('em')
    QF[0]=['',' sc1'][opt.get('qf',1)]
    if opt.get('cyc',0): a('s_memtime s[92:93]\ns_waitcnt lgkmcnt(0)\ns_mov_b32 s79, s92')
    a(f"s_mov_b32 s{S_STEP}, 0")
    if opt.get('prof',0):
        PROF[0]=1
        a("s_memtime s[92:93]\ns_waitcnt lgkmcnt(0)\ns_mov_b32 s90, s92\ns_mov_b32 s79, s92")
        for k in range(6): a(f"s_mov_b32 s{95+k}, 1")
    BP=opt.get('bp',4); ED=BP+2
    sp=opt.get('spread',0) and ED==6
    R2=opt.get('ramp2',0)
    if R2:
        for k in range(R2): fetch_e(a,k,f"H_pe{k}")
        fetch_g(a,0,0,"H_pg0")
        if opt.get('rb',1): a("s_barrier")
        for k in range(R2,ED): fetch_e(a,k,f"H_pe{k}")
        fetch_g(a,1,1,"H_pg1")
        n2=ED-R2
        a(f"""s_mov_b32 s{S_FIRST}, 0
        s_waitcnt vmcnt({32+n2})
        s_cmp_ge_u32 s{S_NT}, {ED}
        s_cbranch_scc1 H_loop
        s_waitcnt vmcnt(0)
        .p2align 3
        H_loop:""")
        step_body(a,0,opt)
        a("s_cbranch_scc1 H_done")
        step_body(a,1,opt)
        a("s_cbranch_scc0 H_loop\nH_done:")
        st(8)
        return
    if sp:
        fetch_e(a,0,"H_pe0",own=True); fetch_e(a,4,"H_pe4")
    else:
        for k in range(ED-1): fetch_e(a,k,f"H_pe{k}")
    fetch_g(a,0,0,"H_pg0")
    if opt.get('rb',1): a("s_barrier")
    fetch_e(a,ED-1,"H_pel")
    fetch_g(a,1,1,"H_pg1")
    if ULATE[0]:
        a(f"s_cmp_eq_u32 s{S_FIRST}, 0\ns_cbranch_scc1 H_nou\ns_lshr_b32 s46, s{S_W}, 2")
        gemm_addr(a,46,S_J,VL,V_T0,V_T1,125)
        gemm_one(a,V_T0,V_T1,125,V_ACC,V_E,V_IDX,1)
        a("H_nou:")
    if opt.get('er',0):
        a(f"""s_add_u32 s{S_NE}, s{S_J}, {ED}
        s_cmp_lt_u32 s{S_J}, {opt['er']}
        s_cselect_b32 s{S_NE}, s{S_NE}, 0x7fffffff
        s_cmp_gt_u32 s{S_NT}, {ED-1}
        s_cselect_b32 s44, s{S_J}, 1
        s_cmp_eq_u32 s44, 0
        s_cselect_b32 s{S_EF}, 1, 0""")
    st(7)
    a(f"""s_mov_b32 s{S_FIRST}, 0
    s_waitcnt vmcnt(33)
    s_cmp_eq_u32 s{S_J}, 0
    s_cbranch_scc1 H_pw
    s_waitcnt vmcnt(32)
    H_pw:
    s_cmp_ge_u32 s{S_NT}, {ED}
    s_cbranch_scc1 H_loop
    s_waitcnt vmcnt(0)
    .p2align {opt.get('al',3)}
    {'s_nop 0' if opt.get('al4',0) else ''}
    H_loop:""")
    if opt.get('u4',0):
        for k in range(4):
            step_body(a,k&1,opt,k)
            a("s_cbranch_scc1 H_done" if k<3 else "s_cbranch_scc0 H_loop\nH_done:")
    else:
        step_body(a,0,opt)
        a("s_cbranch_scc1 H_done")
        step_body(a,1,opt)
        a("s_cbranch_scc0 H_loop\nH_done:")
    if opt.get('prof',0): a("s_sub_u32 s100, s90, s79")
    if opt.get('cyc',0): a('s_memtime s[92:93]\ns_waitcnt lgkmcnt(0)\ns_sub_u32 s95, s92, s79')
    if opt.get('nst',0): a(f's_add_u32 s96, s91, s87\ns_lshl_b32 s96, s96, 8\ns_add_u32 s95, s96, s{S_NSTEP}')
    st(8)
def e_touch(a, lo, hi, fl):
    a(f"""s_mul_i32 s44, s2, {CH*32}
    s_mul_i32 s45, s{S_W}, 3200
    s_add_u32 s44, s44, s45
    v_lshl_add_u32 v16, v{VL}, 7, s44
    s_mov_b64 exec, {((1<<hi)-1)^((1<<lo)-1):#x}
    buffer_load_dword v125, v16, s[12:15], 0 offen{fl}
    s_mov_b64 exec, -1""")
def q_touch(a, first, n, t=16):
    a(f"""s_lshr_b32 s44, s2, 3
    s_lshl_b32 s44, s44, 4
    s_add_u32 s44, s44, s{S_W}
    s_mul_i32 s44, s44, {n*128}
    s_add_u32 s44, s44, {first*512*128}
    v_lshl_add_u32 v{t}, v{VL}, 7, s44
    v_cmp_gt_u32 vcc, {n}, v{VL}
    s_mov_b64 exec, vcc
    buffer_load_dword v124, v{t}, s[72:75], 0 offen sc1
    s_mov_b64 exec, -1""")
def pu(a,regs,hook=None):
    ta,tb,tc,D,A,B=regs
    a(f"s_lshr_b32 s46, s{S_W}, 2\ns_and_b32 s47, s{S_W}, 3")
    gemm_addr(a,46,47,VL,ta,tb,tc)
    if CLDS[0]:
        a(f"v_add_u32 v{tc}, {L_CS-L_W}, v{tb}")
        for q in range(2): a(f"ds_read_b64_tr_b16 {vr(V_C+2*q,2)}, v{tc} offset:{1024*q}")
    if ULATE[0]: gemm_one(a,ta,tb,tc,D,A,B,0,hook)
    else: gemm_core(a,ta,tb,tc,D,V_ACC,A,B,hook)
    if not FINL[0]: pu_fin(a,D)
def pu_fin(a,D):
    a(f"s_mov_b32 s44, {f2u(-LOG2E):#x}")
    if CLDS[0]:
        for i in range(4): a(f"v_lshlrev_b32 v{V_CR+2*i}, 16, v{V_C+i}\nv_and_b32 v{V_CR+2*i+1}, 0xffff0000, v{V_C+i}")
        for i in range(8): a(f"v_mul_f32 v{V_CR+i}, s44, v{V_CR+i}")
    else:
        for i in range(8): a(f"v_lshlrev_b32 v{V_CR+i}, 16, v{V_CR+i}\nv_mul_f32 v{V_CR+i}, s44, v{V_CR+i}")
    for i in range(4): a(f"v_cvt_pk_bf16_f32 v{V_C+i}, v{V_CR+2*i}, v{V_CR+2*i+1}")
    for r in range(16): a(f"v_mul_f32 v{D+r}, s44, v{D+r}")
    for r in range(8): a(f"v_cvt_pk_bf16_f32 v{V_P+r}, v{D+2*r}, v{D+2*r+1}")

def prologue(a, opt, st):
    def BK(i):
        if opt.get('b16',1): return f"v_mul_u32_u24 v16, 42949, v{12+i}\nv_bfe_u32 v16, v16, 26, 4"
        return f"v_bfe_u32 v16, v{12+i}, 11, 4"
    CLDS[0]=opt.get('clds',1); FINL[0]=opt.get('finl',1); ULATE[0]=opt.get('ulate',0)
    xl=opt.get('xlate',1)
    a(f"""s_load_dwordx4 s[4:7], s[0:1], 0
    s_load_dwordx4 s[64:67], s[0:1], 16
    s_load_dwordx4 s[28:31], s[0:1], 32
    s_load_dwordx4 s[48:51], s[0:1], 48
    s_load_dwordx4 s[80:83], s[0:1], 64
    s_memrealtime s[58:59]""")
    if opt.get('cw',0):
        a(f"""s_getpc_b64 s[88:89]
        F_pc:
        s_mov_b32 s90, K2_exit-F_pc
        s_mov_b32 s91, 0x20000
        v_lshlrev_b32 v3, 7, v0
        v_subrev_u32 v3, {(1024-opt['cw'])*128}, v3
        buffer_load_dword v125, v3, s[88:91], 0 offen""")
    a(f"""v_lshrrev_b32 v2, 6, v0
    v_and_b32 v{VL}, 63, v0
    v_readfirstlane_b32 s{S_W}, v2
    v_mov_b32 v{VT}, v0
    s_mul_i32 s45, s2, {CH*4}
    v_lshlrev_b32 v4, 4, v0
    v_add_u32 v5, s45, v4
    v_cmp_gt_u32 vcc, {CH//4}, v0
    s_cmp_lt_u32 s2, {NCH}
    s_cselect_b64 s[78:79], vcc, 0
    s_waitcnt lgkmcnt(0)
    s_mov_b32 s68, s66
    s_mov_b32 s69, s67""")
    srd(a,64,64,E*4); srd(a,68,68,E*4)
    il=opt.get('il',0)
    def idx_loads():
        a(f"""s_mov_b64 exec, s[78:79]
        s_cbranch_execz F_noload
        buffer_load_dwordx4 v[8:11], v5, s[68:71], 0 offen
        buffer_load_dwordx4 v[12:15], v5, s[64:67], 0 offen
        F_noload:
        s_mov_b64 exec, -1""")
    if not il: idx_loads()
    a(f"""    s_mov_b32 s12, s6
    s_mov_b32 s13, s7
    s_mov_b32 s56, s82
    s_mov_b32 s57, s83
    s_mov_b32 s76, s28
    s_mov_b32 s77, s29""")
    srd(a,80,80,256)
    a(f"""s_or_b32 s58, s58, 1
    v_mov_b32 v6, 0
    v_mov_b32 v7, s58
    s_add_u32 s45, s2, s{S_W}
    s_cmp_lg_u32 s45, 0
    s_cbranch_scc1 F_nononce
    s_mov_b64 exec, 1
    buffer_store_dword v7, v6, s[80:83], 0 offen sc1
    s_mov_b64 exec, -1
    F_nononce:""")
    srd(a,4,4,N*256); srd(a,24,48,32768,add=32768); srd(a,28,30,32768)
    stage_x(a,S_W,2,4,VL,(16,17,18,19))
    def wstage():
        stage_w(a,S_W,24,28,VL,(16,17,18))
        a("v_mov_b32 v2, v18")
        if opt.get('clds',1):
            srd(a,84,48,4096,add=65536)
            a(f"""s_cmp_lt_u32 s{S_W}, 12
            s_cbranch_scc1 F_nocs
            s_and_b32 s44, s{S_W}, 3
            s_lshl_b32 s44, s44, 10
            v_and_b32 v18, 0x3ff, v18
            v_add_u32 v18, s44, v18
            s_add_u32 s44, s44, {L_CS}
            s_mov_b32 m0, s44
            s_nop 0
            buffer_load_dwordx4 v18, s[84:87], 0 offen lds
            F_nocs:""")
    if not opt.get('wlate',0): wstage()
    srd(a,12,12,E*32); srd(a,32,56,NCH*CH*8,add=WS_ENT); srd(a,36,56,NWG*2048,add=WS_CELL); srd(a,52,50,N*256)
    srd(a,72,56,N*RS,add=WS_QH)
    if opt.get('tlb',0):
        g=opt['tlb']
        srd(a,88,56,WS_CELL+NWG*2048)
        a(f"""s_cmp_lg_u32 s{S_W}, 11
        s_cbranch_scc1 F_notlb
        v_lshlrev_b32 v16, {g}, v{VL}
        buffer_load_dword v124, v16, s[88:91], 0 offen
        buffer_load_dword v125, v16, s[12:15], 0 offen
        buffer_load_dword v126, v16, s[52:55], 0 offen
        F_notlb:""")
    a(f"""s_and_b32 s46, s{S_W}, 3
    s_lshl_b32 s44, s46, 7
    s_add_u32 s44, s44, {WS_QH-128}
    s_add_u32 s8, s56, s44
    s_addc_u32 s9, s57, 0
    s_or_b32 s9, s9, 0x40000
    s_mov_b32 s10, {N*RS+128}
    s_mov_b32 s11, 0x800000
    v_lshrrev_b32 v16, 5, v{VL}
    v_lshlrev_b32 v{V_H16}, 4, v16
    v_and_b32 v17, 31, v{VL}
    """)
    a(f"""s_mul_i32 s19, s{S_W}, {STW}
    s_add_u32 s19, s19, {L_ST}
    s_movk_i32 s{S_80}, 80
    s_mov_b32 s{S_M31}, 0xffffffe0
    v_mad_u32_u24 v{V_SR}, v17, s{S_80}, v{V_H16}
    v_add_u32 v{V_SR}, s19, v{V_SR}
    v_and_b32 v19, 19, v17
    v_and_b32 v20, 4, v17
    v_lshl_add_u32 v19, v20, 1, v19
    v_and_b32 v20, 8, v17
    v_lshrrev_b32 v20, 1, v20
    v_add_u32 v19, v19, v20
    v_lshlrev_b32 v19, 1, v19
    v_add_u32 v{V_SW}, s19, v19
    v_mov_b32 v{V_ONE}, 0x3f800000
    v_lshlrev_b32 v{V_ML}, 2, v17
    v_add_u32 v{V_ML}, {L_META-L_OFFS}, v{V_ML}
    v_lshlrev_b32 v{V_EL}, 4, v{VL}
    v_mov_b32 v24, 0
    v_mov_b32 v25, 0
    v_mov_b32 v26, 0
    v_mov_b32 v27, 0
    s_cmp_lg_u32 s{S_W}, 7
    s_cbranch_scc1 F_noinit
    v_lshlrev_b32 v20, 4, v{VL}
    v_add_u32 v21, {B_CNT}, v20
    ds_write_b128 v21, v[24:27]
    ds_write_b128 v20, v[24:27]
    ds_write_b128 v20, v[24:27] offset:1024
    ds_write_b128 v20, v[24:27] offset:2048
    v_mad_u32_u24 v20, v17, s{S_80}, v19
    ds_write_b16_d16_hi v20, v{V_ONE} offset:{L_TBL}
    s_waitcnt lgkmcnt(0)
    F_noinit:
    s_mov_b32 s{S_FIRST}, 1
    s_barrier""")
    if opt.get('wlate',0): wstage()
    def ranks(w):
        a(f"""s_mov_b64 exec, s[78:79]
        s_cbranch_execz F_norank
        s_mov_b32 s44, {M49}
        s_movk_i32 s45, {NB}
        s_movk_i32 s46, {RS}
        s_mul_i32 s47, s2, {CH}
        v_lshl_add_u32 v3, v0, 2, s47
        v_lshlrev_b32 v3, 5, v3
        v_mov_b32 v7, 1
        s_waitcnt vmcnt({w})""")
        for i in range(4):
            a(f"""v_lshrrev_b32 v16, 1, v{8+i}
            v_mul_hi_u32 v16, v16, s44
            v_mul_u32_u24 v17, s45, v16
            v_sub_u32 v17, v{8+i}, v17
            v_and_b32 v18, 7, v16
            v_bfe_u32 v16, v16, 3, 5
            v_lshl_add_u32 v16, v18, 5, v16
            v_lshlrev_b32 v{8+i}, 2, v16
            v_add_u32 v16, {B_CNT}, v{8+i}
            ds_add_rtn_u32 v{20+i}, v16, v7
            v_lshrrev_b32 v16, 2, v17
            v_add3_u32 v{41+2*i}, v3, v16, {32*i if i<3 else 64}
            v_and_b32 v17, 3, v17
            {BK(i)}
            v_lshl_add_u32 v16, v17, 4, v16
            v_mul_u32_u24 v17, s46, v{12+i}
            v_lshl_or_b32 v{40+2*i}, v16, 26, v17""")
            if i==3: a(f"v_add_u32 v{41+2*i}, 32, v{41+2*i}")
        a("F_norank:\ns_mov_b64 exec, -1")
    if not il:
        ranks(6)
        a("v_mov_b32 v6, 0\ns_waitcnt vmcnt(0) lgkmcnt(0)")
    else:
        idx_loads()
        a(f"""v_mov_b32 v6, 0
        s_waitcnt vmcnt(2)
        s_cmp_lg_u64 s[78:79], 0
        s_cbranch_scc1 F_b1
        s_waitcnt vmcnt(0)
        F_b1:""")
    st(1)
    a("s_barrier")
    if il:
        ranks(0)
        a(f"s_cmp_ge_u32 s{S_W}, 7\ns_cbranch_scc1 F_binsync\ns_waitcnt lgkmcnt(0)")
        lds_arrive(a,M_BIN,16); lds_wait(a,M_BIN,7,16,"F_binw")
        a("F_binsync:")
    a("buffer_load_dword v7, v6, s[80:83], 0 offen sc1")
    srd(a,24,48,32768); srd(a,28,76,32768)
    def au():
        for k in range(4): a(f"buffer_load_dwordx4 {vr(88+4*k,4)}, v2, s[{24+4*(k>>1)}:{27+4*(k>>1)}], 0 offen offset:{1024*(k&1)}")
    if not opt.get('auin',0): au()
    if not opt.get('clds',1): c_loads(a)
    if opt.get('ew0',0): e_touch(a,0,opt['ew0'],['',' nt'][opt.get('ewf',0)])
    a(f"""    s_cmp_ge_u32 s{S_W}, 7
    s_cbranch_scc1 F_noscan
    v_lshlrev_b32 v16, 4, v{VL}
    v_add_u32 v17, {B_CNT}, v16
    ds_read_b128 v[24:27], v17
    s_lshl_b32 s44, s{S_W}, 10
    s_add_u32 s44, s44, {B_BASE}
    s_waitcnt lgkmcnt(0)
    v_add_u32 v29, v24, v25
    v_add_u32 v30, v29, v26
    v_add_u32 v31, v30, v27
    v_mov_b32 v32, v31""")
    scan_row(a,32)
    a(f"""s_nop 1
    v_add_u32_dpp v32, v32, v32 row_bcast:15 row_mask:0xa bank_mask:0xf
    s_nop 1
    v_add_u32_dpp v32, v32, v32 row_bcast:31 row_mask:0xc bank_mask:0xf
    s_nop 1
    v_sub_u32 v32, v32, v31
    v_add_u32 v33, v32, v24
    v_add_u32 v34, v32, v29
    v_add_u32 v35, v32, v30
    v_add_u32 v17, s44, v16
    ds_write_b128 v17, v[32:35]
    v_lshl_or_b32 v80, v24, 16, v32
    v_lshl_or_b32 v82, v25, 16, v33
    v_lshl_or_b32 v84, v26, 16, v34
    v_lshl_or_b32 v86, v27, 16, v35
    s_mov_b64 exec, s[78:79]""")
    for i in range(4):
        a(f"v_add_u32 v16, s44, v{8+i}\nds_read_b32 v{36+i}, v16")
    a("s_waitcnt lgkmcnt(0)")
    for i in range(4):
        a(f"v_add_u32 v16, v{36+i}, v{20+i}\nv_lshlrev_b32 v16, 3, v16\nv_add_u32 v16, {B_SORT}, v16\nds_write_b64 v16, v[{40+2*i}:{41+2*i}]")
    a(f"""s_mov_b64 exec, -1
    F_noscan:
    s_lshr_b32 s46, s{S_W}, 2
    s_and_b32 s47, s{S_W}, 3""")
    gemm_addr(a,46,47,VL,8,9,10)
    Q=48; H=64
    gemm_core(a,8,9,10,Q,H,24,32,hook=(lambda ks: au() if (ks==opt.get('auin',0)-1 and opt.get('auin',0)) else None))
    st(2)
    if opt.get('sp',2): a(f"s_setprio {opt.get('sp',2)}")
    a(f"""s_mov_b32 s44, {SPIN}
    F_nonce_poll:
    s_waitcnt vmcnt(0)
    v_readfirstlane_b32 s{S_NONCE}, v7
    s_sub_u32 s44, s44, 1
    s_cbranch_scc1 F_nonce_ok
    s_cmp_lg_u32 s{S_NONCE}, 0
    s_cbranch_scc1 F_nonce_ok
    buffer_load_dword v7, v6, s[80:83], 0 offen sc1
    s_branch F_nonce_poll
    F_nonce_ok:
    s_mul_i32 s44, s2, {NB}
    s_add_u32 s44, s44, s46
    s_mul_i32 s44, s44, {RS}
    s_lshl_b32 s45, s47, 7
    s_add_u32 s44, s44, s45
    v_mul_u32_u24 v11, {RS}, v{V_H16}
    v_and_b32 v12, 31, v{VL}
    v_lshl_add_u32 v11, v12, 2, v11
    v_add_u32 v11, s44, v11
    s_mov_b32 s45, {f2u(QSCALE):#x}
    s_nop 1""")
    for r in range(13):
        a(f"v_mul_f32 v{Q+r}, s45, v{Q+r}")
        a(f"v_cvt_pk_bf16_f32 v{Q+r}, v{H+r}, v{Q+r}")
        if r and (r&3)==0: a(f"v_add_u32 v11, {5*4*RS}, v11")
        elif r: a(f"v_add_u32 v11, {4*RS}, v11")
        if r==12: a(f"s_cmp_ge_u32 s46, 2\ns_cbranch_scc1 F_q\ns_mov_b32 exec_hi, 0")
        a(f"buffer_store_dword v{Q+r}, v11, s[72:75], 0 offen sc1")
    a(f"""F_q:
    {'s_setprio 0' if opt.get('sp',2) else ''}
    s_mov_b64 exec, -1
    s_barrier
    s_lshl_b32 s44, s{S_W}, 11
    s_add_u32 s44, s44, {L_W}
    v_lshl_add_u32 v16, v{VL}, 4, s44
    ds_write_b128 v16, v[88:91]
    ds_write_b128 v16, v[92:95] offset:1024
    ds_write_b128 v16, v[96:99] offset:32768
    ds_write_b128 v16, v[100:103] offset:33792
    v_cmp_gt_u32 vcc, {CH//2}, v{VT}
    s_cmp_lt_u32 s2, {NCH}
    s_cselect_b64 s[46:47], vcc, 0
    s_mov_b64 exec, s[46:47]
    s_cbranch_execz F_noent
    v_add_u32 v16, {B_SORT}, v4
    ds_read_b128 v[8:11], v16
    s_mul_i32 s45, s2, {CH*8}
    v_add_u32 v5, s45, v4
    s_waitcnt lgkmcnt(0)
    buffer_store_dwordx4 v[8:11], v5, s[32:35], 0 offen sc1
    F_noent:
    s_mov_b64 exec, -1
    s_waitcnt vmcnt(0) lgkmcnt(0)""")
    st(3)
    a(f"""s_barrier
    s_cmp_lg_u32 s{S_W}, 0
    s_cbranch_scc1 F_nocell
    v_mov_b32 v81, s{S_NONCE}
    v_mov_b32 v83, s{S_NONCE}
    v_mov_b32 v85, s{S_NONCE}
    v_mov_b32 v87, s{S_NONCE}
    s_lshl_b32 s45, s2, 11
    v_lshl_add_u32 v16, v{VL}, 5, s45
    buffer_store_dwordx4 v[80:83], v16, s[36:39], 0 offen sc1
    buffer_store_dwordx4 v[84:87], v16, s[36:39], 0 offen offset:16 sc1
    F_nocell:
    v_mov_b32 v24, 0
    v_mov_b32 v25, 0
    v_mov_b32 v26, 0
    v_mov_b32 v27, 0
    v_add_u32 v16, {L_ST}, v4
    ds_write_b128 v16, v[24:27]
    ds_write_b128 v16, v[24:27] offset:16384
    v_and_b32 v16, 0x3f0, v4
    v_add_u32 v16, {L_ST+32768}, v16
    ds_write_b128 v16, v[24:27]""")
    ew=opt.get('ew',0); ewf=['',' nt'][opt.get('ewf',0)]
    if ew: e_touch(a,0,ew,ewf)
    if opt.get('pf0',0) and 'pf0at' not in opt: q_touch(a,0,opt['pf0'])
    if opt.get('pufirst',0): pu(a,(16,17,18,64,24,32))
    a(f"""s_and_b32 s44, s2, 7
    s_lshl_b32 s44, s44, 5
    s_lshr_b32 s45, s2, 3
    s_add_u32 s44, s44, s45
    s_lshl_b32 s44, s44, 3
    v_lshrrev_b32 v19, 2, v{VT}
    v_lshl_add_u32 v18, v19, 11, s44
    """)
    if not opt.get('pufirst',0):
        pat=opt.get('pat',5)
        poll=lambda: a("buffer_load_dwordx2 v[20:21], v18, s[36:39], 0 offen sc1")
        if pat<0: poll()
        pu(a,(16,17,22,64,24,32),hook=lambda ks: (poll() if ks==pat else None, q_touch(a,0,opt['pf0'],23) if ks==opt.get('pf0at',-1) else None))
        a(f"s_mov_b32 s44, {SPIN}\ns_branch F_cell_chk")
    a(f"""s_mov_b32 s44, {SPIN}
    F_cell_poll:
    buffer_load_dwordx2 v[20:21], v18, s[36:39], 0 offen sc1
    F_cell_chk:
    s_waitcnt vmcnt(0)
    v_cmp_eq_u32 vcc, s{S_NONCE}, v21
    s_cmp_eq_u64 vcc, -1
    s_cbranch_scc1 F_cell_ok
    s_sub_u32 s44, s44, 1
    s_cbranch_scc1 F_cell_ok
    s_sleep {opt.get('csleep',1)}
    s_branch F_cell_poll
    F_cell_ok:
    v_cndmask_b32 v21, 0, v20, vcc""")
    st(4)
    a(f"""s_branch F_take
    K2_round:""")
    lane_tid(a)
    a(f"""s_barrier
    s_cmp_lg_u32 s{S_W}, 7
    s_cbranch_scc1 F_noclr
    v_mov_b32 v24, 0
    v_mov_b32 v25, 0
    v_mov_b32 v26, 0
    v_mov_b32 v27, 0
    v_lshlrev_b32 v20, 4, v{VL}
    v_min_u32 v20, 304, v20
    ds_write_b128 v20, v[24:27] offset:{L_CNT}
    s_waitcnt lgkmcnt(0)
    F_noclr:
    s_barrier
    v_lshrrev_b32 v19, 2, v{VT}
    v_lshlrev_b32 v20, 2, v19
    ds_read_b32 v21, v20 offset:{L_STATE}
    s_waitcnt lgkmcnt(0)
    F_take:
    v_lshrrev_b32 v22, 16, v21
    v_min_u32 v23, 32, v22
    v_and_b32 v21, 0xffff, v21
    v_and_b32 v28, 3, v{VT}
    s_movk_i32 s46, {CH}
    v_mad_u32_u24 v30, v19, s46, v21
    v_lshlrev_b32 v27, 1, v28
    v_add_u32 v30, v30, v27
    v_lshlrev_b32 v30, 3, v30
    v_sub_u32 v26, v23, v27""")
    for k in range(4):
        a(f"""v_cmp_lt_i32 vcc, {8*k}, v26
        s_cbranch_vccz F_ld_done
        s_mov_b64 exec, vcc
        buffer_load_dwordx4 v[{32+4*k}:{35+4*k}], v30, s[32:35], 0 offen offset:{64*k} sc1
        s_mov_b64 exec, -1""")
    a(f"""F_ld_done:
    v_mov_b32 v29, 0
    v_cmp_eq_u32 vcc, 0, v28
    s_and_saveexec_b64 s[44:45], vcc
    ds_add_rtn_u32 v30, v29, v23 offset:{L_MISC+M_TICKET}
    s_waitcnt lgkmcnt(0)
    v_add_u32 v30, v30, v23
    v_cmp_ge_u32 vcc, {CAP}, v30
    s_nop 1
    v_cndmask_b32 v23, 0, v23, vcc
    v_sub_u32 v22, v22, v23
    v_add_u32 v30, v21, v23
    v_lshl_or_b32 v30, v22, 16, v30
    v_lshlrev_b32 v31, 2, v19
    ds_write_b32 v31, v30 offset:{L_STATE}
    v_cmp_lt_u32 vcc, 0, v22
    s_and_b64 exec, exec, vcc
    v_mov_b32 v30, 1
    ds_write_b32 v29, v30 offset:{L_MISC+M_MORE}
    s_mov_b64 exec, s[44:45]
    s_nop 4
    v_mov_b32_dpp v23, v23 quad_perm:[0,0,0,0] row_mask:0xf bank_mask:0xf
    v_sub_u32 v23, v23, v27
    v_mov_b32 v29, 1""")
    if FINL[0]:
        a(f"s_cmp_eq_u32 s{S_FIRST}, 0\ns_cbranch_scc1 F_nofin")
        pu_fin(a,64)
        a("F_nofin:")
    for k in range(4):
        for i in range(2): a(f"v_cmp_lt_i32 s[{80+4*k+2*i}:{81+4*k+2*i}], {8*k+i}, v23") if k<2 else None
    a(f"""s_mov_b32 s46, 0xffffff
    s_mov_b32 s47, {(N-1)*RS}
    s_waitcnt vmcnt(0)""")
    def mask(k,i):
        if k<2: return f"s[{80+4*k+2*i}:{81+4*k+2*i}]"
        a(f"v_cmp_lt_i32 vcc, {8*k+i}, v23"); return "vcc"
    for k in range(4):
        for i in range(2):
            m=mask(k,i); e=32+4*k+2*i
            if i==0: a(f"s_cmp_eq_u64 {m}, 0\ns_cbranch_scc1 F_rk_done")
            a(f"""v_lshrrev_b32 v{48+2*k+i}, 24, v{e}
            s_mov_b64 exec, {m}
            ds_add_rtn_u32 v{64+2*k+i}, v{48+2*k+i}, v29 offset:{L_CNT}
            s_mov_b64 exec, -1
            v_and_b32 v{e}, s46, v{e}
            v_min_u32 v{e}, s47, v{e}
            v_add_u32 v{e}, 128, v{e}""")
    a(f"""F_rk_done:
    s_waitcnt lgkmcnt(0)""")
    st(5)
    a("s_barrier")
    npf=opt.get('pf',16)
    if npf:
        a(f"""s_cmp_eq_u32 s{S_FIRST}, 0
        s_cbranch_scc1 F_nopf""")
        q_touch(a,opt.get("pf0",0),npf)
        if opt.get('ew2',0): e_touch(a,opt.get('ew',0),opt['ew2'],['',' nt'][opt.get('ewf',0)])
        a(f"""
        F_nopf:""")
    a(f"""v_lshlrev_b32 v16, 2, v{VL}
    ds_read_b32 v17, v16 offset:{L_CNT}
    v_mov_b32 v16, 0
    ds_read_b32 v18, v16 offset:{L_MISC+M_MORE}
    s_waitcnt lgkmcnt(0)
    v_mov_b32 v20, v17
    v_readfirstlane_b32 s{S_MORE}, v18""")
    scan_row(a,20)
    a(f"""s_lshr_b32 s47, s{S_W}, 2
    s_lshl_b32 s45, s47, 4
    s_add_u32 s44, s45, 15
    v_add_u32 v21, 31, v20
    v_lshrrev_b32 v21, 5, v21
    v_mov_b32 v18, 0
    v_mov_b32 v22, 0
    v_readlane_b32 s88, v20, s44
    v_mov_b32_dpp v18, v21 row_bcast:15 row_mask:0xa bank_mask:0xf
    v_readlane_b32 s{S_NT}, v21, s44
    v_add_u32 v16, v21, v18
    v_max_u32 v21, v21, v18
    v_sub_u32 v20, v20, v17
    v_mov_b32_dpp v22, v16 row_bcast:31 row_mask:0xc bank_mask:0xf
    v_readlane_b32 s89, v21, 31
    v_readlane_b32 s90, v21, 63
    v_add_u32 v18, v18, v22
    s_nop 0
    v_readlane_b32 s91, v18, s45
    v_lshl_add_u32 v20, v18, 5, v20
    s_max_u32 s{S_NSTEP}, s89, s90""")
    a(f"s_mov_b32 s46, {L_OFFS}\ns_movk_i32 s47, -128")
    for half in range(2):
        if half: a(f"v_cmp_lt_i32 vcc, 16, v23\ns_cbranch_vccz F_pos_done")
        for q in range(4*half,4*half+4): a(f"ds_bpermute_b32 v{48+q}, v{48+q}, v20")
        for k in range(2*half,2*half+2):
            if k==2*half: a("s_waitcnt lgkmcnt(0)")
            for i in range(2):
                q=2*k+i; e=32+4*k+2*i
                a(f"""v_add_u32 v{48+q}, v{48+q}, v{64+q}
                v_bfe_u32 v16, v{48+q}, 2, 1
                v_mad_i32_i24 v{e}, v16, s47, v{e}
                v_lshl_add_u32 v{48+q}, v{48+q}, 2, s46""")
                m=mask(k,i)
                a(f"""s_mov_b64 exec, {m}
                ds_write_b32 v{48+q}, v{e}
                ds_write_b32 v{48+q}, v{e+1} offset:{L_META-L_OFFS}
                s_mov_b64 exec, -1""")
    a(f"""F_pos_done:
    s_lshl_b32 s{S_PA}, s91, 7
    s_add_u32 s{S_PA}, s{S_PA}, {L_OFFS}
    s_mov_b32 s{S_P0}, s{S_PA}
    s_and_b32 s{S_J}, s{S_W}, 3
    s_lshr_b32 s{S_EWB}, s{S_W}, 2
    s_lshl_b32 s{S_EWB}, s{S_EWB}, 10
    s_add_u32 s{S_EWB}, s{S_EWB}, {L_W}
    s_mov_b32 s44, s88
    s_mov_b32 s45, s91
    s_mov_b32 s46, s{S_NT}
    s_and_b32 s58, s44, 31
    s_cbranch_scc0 K2_nopad
    s_cmp_lg_u32 s{S_J}, 3
    s_cbranch_scc1 K2_nopad
    v_and_b32 v16, 31, v{VL}
    v_cmp_le_u32 vcc, s58, v16
    s_add_u32 s59, s45, s46
    s_sub_u32 s59, s59, 1
    s_lshl_b32 s59, s59, 7
    s_add_u32 s59, s59, {L_OFFS}
    s_mul_i32 s58, s2, {NB*RS}
    v_and_b32 v17, 4, v16
    v_lshlrev_b32 v17, 5, v17
    v_sub_u32 v17, 128, v17
    v_add_u32 v17, s58, v17
    v_lshl_add_u32 v18, v16, 2, s59
    v_mov_b32 v19, {PADROW}
    s_and_saveexec_b64 s[46:47], vcc
    ds_write_b32 v18, v17
    ds_write_b32 v18, v19 offset:{L_META-L_OFFS}
    s_mov_b64 exec, s[46:47]
    K2_nopad:
    s_waitcnt lgkmcnt(0)""")
    st(6)
    a("s_barrier")

def epilogue(a,opt,st):
    a(f"""s_cmp_lg_u32 s{S_MORE}, 0
    s_cbranch_scc1 K2_round
    s_mul_i32 s44, s2, {NB}
    s_lshr_b32 s45, s{S_W}, 2
    s_add_u32 s44, s44, s45
    s_lshl_b32 s44, s44, 8
    s_and_b32 s46, s{S_W}, 3
    s_lshl_b32 s46, s46, 6
    s_add_u32 s44, s44, s46
    s_sub_u32 s44, s44, {(L_META-L_OFFS)//2}
    v_lshlrev_b32 v16, 8, v{V_H16}
    v_lshrrev_b32 v17, 1, v{V_ML}
    v_add3_u32 v16, v16, v17, s44
    s_mov_b32 s47, {f2u(-LOG2E):#x}
    s_nop 4""")
    for r in range(13): a(f"v_mul_f32 v{V_Z+r}, s47, v{V_ACC+r}")
    for r in range(13): a(f"v_exp_f32 v{V_Z+r}, v{V_Z+r}")
    for r in range(13): a(f"v_add_f32 v{V_Z+r}, 1.0, v{V_Z+r}")
    for r in range(13): a(f"v_rcp_f32 v{V_Z+r}, v{V_Z+r}")
    for r in range(13): a(f"v_mul_f32 v{V_Z+r}, v{V_Z+r}, v{V_ACC+r}")
    ep=opt.get('ep',1) and not opt.get('wide',0)
    for r in range(13):
        if not ep: a(f"v_cvt_pk_bf16_f32 v{V_Z+r}, v{V_Z+r}, v{V_Z+r}")
        elif r%2==0: a(f"v_cvt_pk_bf16_f32 v{V_Z+r}, v{V_Z+r}, v{V_Z+min(r+1,12)}")
    OF=['',' sc1',' nt',' sc0 sc1'][opt.get('of',1)]
    if opt.get('wide',0):
        a(f"""s_lshl_b32 s44, s45, 8
        s_add_u32 s44, s44, s46
        s_add_u32 s44, s44, {L_XS-(L_META-L_OFFS)//2}
        v_lshlrev_b32 v16, 8, v{V_H16}
        v_add3_u32 v16, v16, v17, s44""")
        for r in range(13): a(f"ds_write_b16 v16, v{V_Z+r} offset:{(r>>2)*8192+(r&3)*1024}")
        lane_tid(a)
        a(f"""v_lshlrev_b32 v16, 4, v{VT}
        v_add_u32 v17, {L_XS}, v16
        s_mul_i32 s44, s2, {NB*256}
        v_add_u32 v16, s44, v16
        v_add_u32 v18, 16384, v16
        v_cmp_gt_u32 vcc, {NB*16-1024}, v{VT}
        s_waitcnt lgkmcnt(0)
        s_barrier
        ds_read_b128 v[20:23], v17
        ds_read_b128 v[24:27], v17 offset:16384
        s_waitcnt lgkmcnt(1)
        buffer_store_dwordx4 v[20:23], v16, s[52:55], 0 offen{OF}
        s_and_saveexec_b64 s[46:47], vcc
        s_cbranch_execz K2_done
        s_waitcnt lgkmcnt(0)
        buffer_store_dwordx4 v[24:27], v18, s[52:55], 0 offen{OF}""")
        return
    for r in range(13):
        if r==12:
            a(f"""s_cmp_ge_u32 s45, 2
            s_cbranch_scc1 K2_done
            s_mov_b32 exec_hi, 0""")
        if r and (r&3)==0: a(f"v_add_u32 v16, 8192, v16")
        a(f"buffer_store_short{'_d16_hi' if (ep and r&1) else ''} v{V_Z+(r&~1 if ep else r)}, v16, s[52:55], 0 offen offset:{(r&3)*1024}{['',' sc1',' nt',' sc0 sc1'][opt.get('of',1)]}")


def gen(a,opt):
    st=Stamper(a,opt.get('stamp',0),94)
    a(kstart(KNAME))
    a(f"s_cmp_ge_u32 s2, {NWG}\ns_cbranch_scc1 K2_exit")
    st()
    prologue(a,opt,st); main_loop(a,opt,st); epilogue(a,opt,st)
    a("K2_done:"); st.flush(0,S_W,56,opt.get('amp')); a("K2_exit:\ns_endpgm")
    a(kdesc(KNAME,NV))
```

```python
N=25000; E=400000; NB=98; NWG=256
CH=1600; NCH=250
import os
RS=int(os.environ.get('RS',512))
WS_QH   = 1<<20
WS_ENT  = 36<<20
WS_CELL = 40<<20
WS_FLAG = 41<<20
WS_MIR = 16<<20
WS_PROBE = 44<<20
WS_DBG  = 32<<20
M49=87652394; M25=171798692
LOG2E=1.4426950408889634
import struct
def f2u(x): return struct.unpack('<I',struct.pack('<f',x))[0]

class Asm:
    def __init__(s): s.L=[]
    def __call__(s, t):
        for l in t.split('\n'):
            l=l.strip()
            if l: s.L.append(l if l.endswith(':') or l.startswith('.') or l.startswith(';') else '  '+l)
    def text(s): return '\n'.join(s.L)

def vr(a,n=1): return f"v{a}" if n==1 else f"v[{a}:{a+n-1}]"
def sr(a,n=1): return f"s{a}" if n==1 else f"s[{a}:{a+n-1}]"

def kstart(name):
    return f""".text
.globl {name}
.p2align 8
.type {name},@function
{name}:"""
def kdesc(name, v, s=102):
    return f""".section .rodata,"a"
.p2align 6
.amdhsa_kernel {name}
  .amdhsa_next_free_vgpr {v}
  .amdhsa_next_free_sgpr {s}
  .amdhsa_accum_offset {(v+3)//4*4}
  .amdhsa_group_segment_fixed_size 0
  .amdhsa_kernarg_size 80
  .amdhsa_user_sgpr_count 2
  .amdhsa_user_sgpr_kernarg_segment_ptr 1
  .amdhsa_system_sgpr_workgroup_id_x 1
  .amdhsa_float_denorm_mode_32 3
.end_amdhsa_kernel"""
def kk(p):
    s=p>>4; h=(p>>2)&1; i=((p>>3)&1)*4+(p&3)
    return 16*s+8*h+i
def srd(a, s, lo, size, add=0, w3=0x20000):
    if add:
        a(f"s_add_u32 s{s}, s{lo}, {add}\ns_addc_u32 s{s+1}, s{lo+1}, 0")
    elif s!=lo:
        a(f"s_mov_b32 s{s}, s{lo}\ns_mov_b32 s{s+1}, s{lo+1}")
    a(f"s_mov_b32 s{s+2}, {size}\ns_mov_b32 s{s+3}, {w3:#x}")

MFMA="v_mfma_f32_32x32x16_bf16"
L_W=int(os.environ.get('L_W',0)); L_XS=L_W+65536
def stage_xw(a, sW, sB, srdX, srdM0, srdM1, vl, t):
    t0,t1,t2,t3=t
    a(f"""; ---- weights: rows 4m+(lane>>4), source chunk (lane&15)^(4*(lane>>4))
    v_lshrrev_b32 v{t0}, 4, v{vl}
    v_and_b32 v{t1}, 15, v{vl}
    v_lshlrev_b32 v{t2}, 2, v{t0}
    v_xor_b32 v{t2}, v{t2}, v{t1}
    v_lshlrev_b32 v{t2}, 4, v{t2}
    v_lshl_add_u32 v{t2}, v{t0}, 8, v{t2}
    s_lshl_b32 s44, s{sW}, 11
    v_add_u32 v{t2}, s44, v{t2}
    s_mov_b32 m0, s44
    s_and_b32 s45, s{sW}, 3
    s_lshl_b32 s45, s45, 3
    buffer_load_dwordx4 v{t2}, {sr(srdM0,4)}, 0 offen lds
    buffer_load_dwordx4 v{t2}, {sr(srdM0,4)}, 0 offen offset:1024 lds
    s_add_u32 s46, s44, 32768
    s_mov_b32 m0, s46
    v_add_u32 v{t0}, s45, v{t0}
    s_lshr_b32 s45, s{sW}, 2
    buffer_load_dwordx4 v{t2}, {sr(srdM1,4)}, 0 offen lds
    buffer_load_dwordx4 v{t2}, {sr(srdM1,4)}, 0 offen offset:1024 lds
    s_mul_i32 s47, s{sB}, {NB}
    s_add_u32 s47, s47, s45
    s_add_u32 s46, s44, {L_XS}
    s_sub_u32 s45, {NB}, s45""")
    for q in range(2):
        a(f"""v_and_b32 v{t2}, 15, v{t0}
        v_xor_b32 v{t2}, v{t2}, v{t1}
        v_lshlrev_b32 v{t3}, 2, v{t0}
        v_cmp_gt_u32 vcc, s45, v{t3}
        v_add_u32 v{t3}, s47, v{t3}
        v_lshlrev_b32 v{t3}, 8, v{t3}
        v_lshl_add_u32 v{t2}, v{t2}, 4, v{t3}
        s_mov_b32 m0, s46
        v_mov_b32 v{t3}, 0x7fff0000
        v_cndmask_b32 v{t2}, v{t3}, v{t2}, vcc
        s_add_u32 s46, s46, 1024
        buffer_load_dwordx4 v{t2}, {sr(srdX,4)}, 0 offen lds""")
        if q==0: a(f"v_add_u32 v{t0}, 4, v{t0}")

def stage_w(a, sW, srdM0, srdM1, vl, t):
    t0,t1,t2=t
    a(f"""v_lshrrev_b32 v{t0}, 4, v{vl}
    v_and_b32 v{t1}, 15, v{vl}
    v_lshlrev_b32 v{t2}, 2, v{t0}
    v_xor_b32 v{t2}, v{t2}, v{t1}
    v_lshlrev_b32 v{t2}, 4, v{t2}
    v_lshl_add_u32 v{t2}, v{t0}, 8, v{t2}
    s_lshl_b32 s44, s{sW}, 11
    v_add_u32 v{t2}, s44, v{t2}
    s_add_u32 s44, s44, {L_W}
    s_mov_b32 m0, s44
    s_add_u32 s44, s44, 32768
    buffer_load_dwordx4 v{t2}, {sr(srdM0,4)}, 0 offen lds
    buffer_load_dwordx4 v{t2}, {sr(srdM0,4)}, 0 offen offset:1024 lds
    s_mov_b32 m0, s44
    s_nop 0
    buffer_load_dwordx4 v{t2}, {sr(srdM1,4)}, 0 offen lds
    buffer_load_dwordx4 v{t2}, {sr(srdM1,4)}, 0 offen offset:1024 lds""")
def stage_x(a, sW, sB, srdX, vl, t):
    t0,t1,t2,t3=t
    a(f"""v_lshrrev_b32 v{t0}, 4, v{vl}
    v_and_b32 v{t1}, 15, v{vl}
    s_and_b32 s45, s{sW}, 3
    s_lshl_b32 s45, s45, 3
    v_add_u32 v{t0}, s45, v{t0}
    s_lshr_b32 s45, s{sW}, 2
    s_mul_i32 s47, s{sB}, {NB}
    s_add_u32 s47, s47, s45
    s_lshl_b32 s46, s{sW}, 11
    s_add_u32 s46, s46, {L_XS}
    s_sub_u32 s45, {NB}, s45""")
    for q in range(2):
        a(f"""v_and_b32 v{t2}, 15, v{t0}
        v_xor_b32 v{t2}, v{t2}, v{t1}
        v_lshlrev_b32 v{t3}, 2, v{t0}
        v_cmp_gt_u32 vcc, s45, v{t3}
        v_add_u32 v{t3}, s47, v{t3}
        v_lshlrev_b32 v{t3}, 8, v{t3}
        v_lshl_add_u32 v{t2}, v{t2}, 4, v{t3}
        s_mov_b32 m0, s46
        v_mov_b32 v{t3}, 0x7fff0000
        v_cndmask_b32 v{t2}, v{t3}, v{t2}, vcc
        s_add_u32 s46, s46, 1024
        buffer_load_dwordx4 v{t2}, {sr(srdX,4)}, 0 offen lds""")
        if q==0: a(f"v_add_u32 v{t0}, 4, v{t0}")
def gemm16(a, sW, vl, D0, D1, vA, vB, t):
    ta,tb,tc=t
    a(f"""; A address
    v_and_b32 v{ta}, 31, v{vl}
    v_lshrrev_b32 v{tb}, 5, v{vl}
    v_and_b32 v{tc}, 15, v{ta}
    v_xor_b32 v{tc}, v{tc}, v{tb}
    v_lshlrev_b32 v{tc}, 4, v{tc}
    v_lshl_add_u32 v{ta}, v{ta}, 8, v{tc}
    s_lshr_b32 s44, s{sW}, 2
    s_lshl_b32 s44, s44, 13
    s_add_u32 s44, s44, {L_XS}
    v_add_u32 v{ta}, s44, v{ta}
    ; B address: (8h+r)*256 + ((4j+2*g16+(c>>1))^(4r))*16 + (c&1)*8
    v_bfe_u32 v{tc}, v{vl}, 2, 2
    v_lshl_add_u32 v{tb}, v{tb}, 3, v{tc}
    v_lshlrev_b32 v{tb}, 8, v{tb}
    v_lshlrev_b32 v{tc}, 2, v{tc}
    s_and_b32 s44, s{sW}, 3
    s_lshl_b32 s44, s44, 2
    v_xor_b32 v{tc}, s44, v{tc}
    v_lshl_add_u32 v{tb}, v{tc}, 4, v{tb}
    v_bfe_u32 v{tc}, v{vl}, 4, 1
    v_lshl_add_u32 v{tb}, v{tc}, 5, v{tb}
    v_and_b32 v{tc}, 3, v{vl}
    v_lshl_add_u32 v{tb}, v{tc}, 3, v{tb}""")
    def rd(ks):
        p=ks&1
        if ks==0: a(f"ds_read_b128 {vr(vA,4)}, v{ta}")
        else:
            a(f"v_xor_b32 v{tc}, {32*ks}, v{ta}")
            a(f"ds_read_b128 {vr(vA+4*p,4)}, v{tc}")
        for m in range(2):
            for q in range(2):
                a(f"ds_read_b64_tr_b16 {vr(vB+8*p+4*m+2*q,2)}, v{tb} offset:{m*32768+ks*4096+q*1024}")
    rd(0)
    for ks in range(8):
        p=ks&1
        if ks<7:
            rd(ks+1); a("s_waitcnt lgkmcnt(5)")
        else: a("s_waitcnt lgkmcnt(0)")
        a(f"{MFMA} {vr(D0,16)}, {vr(vA+4*p,4)}, {vr(vB+8*p,4)}, {'0' if ks==0 else vr(D0,16)}")
        a(f"{MFMA} {vr(D1,16)}, {vr(vA+4*p,4)}, {vr(vB+8*p+4,4)}, {'0' if ks==0 else vr(D1,16)}")

class Stamper:
    def __init__(s,a,on,base): s.a=a; s.on=on; s.n=0; s.base=base; s.slot={}
    def __call__(s, bit=None):
        if not s.on: return
        if bit is not None and not (s.on>>bit)&1: return
        if s.n==0:
            for k in range(1,8): s.a(f"s_mov_b32 s{s.base+k}, 0")
        if bit is None or bit not in s.slot:
            k=s.n; s.n+=1
            if bit is not None: s.slot[bit]=k
        else: k=s.slot[bit]
        s.a(f"s_memrealtime s[92:93]\ns_waitcnt lgkmcnt(0)\ns_mov_b32 s{s.base+k}, s92")
    def flush(s, kid, sW, wsreg, amp=None):
        if not s.on: return
        a=s.a
        if amp is not None:
            a("s_mov_b64 exec, -1\ns_waitcnt vmcnt(0)")
            s()
            k = s.n-1 if amp<0 else (0 if amp==0 else s.slot[amp])
            a(f"""s_sub_u32 s44, s{s.base+k}, s{s.base}
            s_min_u32 s44, s44, 10000
            s_mul_i32 s44, s44, 10
            s_add_u32 s44, s44, 10000
            s_mov_b32 s45, 0
            AMP_spin:
            s_memrealtime s[92:93]
            s_waitcnt lgkmcnt(0)
            s_sub_u32 s46, s92, s{s.base}
            s_add_u32 s45, s45, 1
            s_cmp_gt_u32 s45, 400000
            s_cbranch_scc1 AMP_done
            s_sleep 4
            s_cmp_lt_u32 s46, s44
            s_cbranch_scc1 AMP_spin
            AMP_done:""")
            return
        a(f"""s_mov_b64 exec, -1
        s_waitcnt vmcnt(0)""")
        s()
        a(f"""s_load_dwordx2 s[4:5], s[0:1], 72
        s_waitcnt lgkmcnt(0)
        s_mov_b32 s6, {256<<20}
        s_mov_b32 s7, 0x20000
        s_lshl_b32 s44, s2, 4
        s_add_u32 s44, s44, s{sW}
        s_lshl_b32 s44, s44, 6
        s_add_u32 s44, s44, {WS_DBG+kid*(1<<20)}
        v_mov_b32 v20, s44""")
        for i in range(s.n): a(f"v_mov_b32 v21, s{s.base+i}\nbuffer_store_dword v21, v20, s[4:7], 0 offen offset:{4*i}")

def stage_w8(a, sw8, srdM0, srdM1, vl, t):
    t0,t1,t2=t
    a(f"""v_lshrrev_b32 v{t0}, 4, v{vl}
    v_and_b32 v{t1}, 15, v{vl}
    v_lshlrev_b32 v{t2}, 2, v{t0}
    v_xor_b32 v{t2}, v{t2}, v{t1}
    v_lshlrev_b32 v{t2}, 4, v{t2}
    v_lshl_add_u32 v{t2}, v{t0}, 8, v{t2}
    s_lshl_b32 s44, s{sw8}, 12
    v_add_u32 v{t2}, s44, v{t2}
    s_add_u32 s44, s44, {L_W}
    s_mov_b32 m0, s44
    s_add_u32 s44, s44, 32768""")
    for k in range(4): a(f"buffer_load_dwordx4 v{t2}, {sr(srdM0,4)}, 0 offen offset:{1024*k} lds")
    a("s_mov_b32 m0, s44\ns_nop 0")
    for k in range(4): a(f"buffer_load_dwordx4 v{t2}, {sr(srdM1,4)}, 0 offen offset:{1024*k} lds")
def stage_x8(a, sw8, sB, srdX, vl, t):
    t0,t1,t2,t3=t
    a(f"""v_lshrrev_b32 v{t0}, 4, v{vl}
    v_and_b32 v{t1}, 15, v{vl}
    s_and_b32 s45, s{sw8}, 1
    s_lshl_b32 s45, s45, 4
    v_add_u32 v{t0}, s45, v{t0}
    s_lshr_b32 s45, s{sw8}, 1
    s_mul_i32 s47, s{sB}, {NB}
    s_add_u32 s47, s47, s45
    s_lshl_b32 s46, s{sw8}, 12
    s_add_u32 s46, s46, {L_XS}
    s_sub_u32 s45, {NB}, s45""")
    for q in range(4):
        a(f"""v_and_b32 v{t2}, 15, v{t0}
        v_xor_b32 v{t2}, v{t2}, v{t1}
        v_lshlrev_b32 v{t3}, 2, v{t0}
        v_cmp_gt_u32 vcc, s45, v{t3}
        v_add_u32 v{t3}, s47, v{t3}
        v_lshlrev_b32 v{t3}, 8, v{t3}
        v_lshl_add_u32 v{t2}, v{t2}, 4, v{t3}
        s_mov_b32 m0, s46
        v_mov_b32 v{t3}, 0x7fff0000
        v_cndmask_b32 v{t2}, v{t3}, v{t2}, vcc
        s_add_u32 s46, s46, 1024
        buffer_load_dwordx4 v{t2}, {sr(srdX,4)}, 0 offen lds""")
        if q<3: a(f"v_add_u32 v{t0}, 4, v{t0}")
def gemm_addr(a, sg, sj, vl, ta, tb, tc):
    a(f"""v_and_b32 v{ta}, 31, v{vl}
    v_lshrrev_b32 v{tb}, 5, v{vl}
    v_and_b32 v{tc}, 15, v{ta}
    v_xor_b32 v{tc}, v{tc}, v{tb}
    v_lshlrev_b32 v{tc}, 4, v{tc}
    v_lshl_add_u32 v{ta}, v{ta}, 8, v{tc}
    s_lshl_b32 s44, s{sg}, 13
    s_add_u32 s44, s44, {L_XS}
    v_add_u32 v{ta}, s44, v{ta}
    v_bfe_u32 v{tc}, v{vl}, 2, 2
    v_lshl_add_u32 v{tb}, v{tb}, 3, v{tc}
    v_lshlrev_b32 v{tb}, 8, v{tb}
    v_lshlrev_b32 v{tc}, 2, v{tc}
    s_lshl_b32 s44, s{sj}, 2
    v_xor_b32 v{tc}, s44, v{tc}
    v_lshl_add_u32 v{tb}, v{tc}, 4, v{tb}
    v_bfe_u32 v{tc}, v{vl}, 4, 1
    v_lshl_add_u32 v{tb}, v{tc}, 5, v{tb}
    v_and_b32 v{tc}, 3, v{vl}
    v_lshl_add_u32 v{tb}, v{tc}, 3, v{tb}""")
    if L_W: a(f"v_add_u32 v{tb}, {L_W}, v{tb}")
def gemm32(a, sg, sj, vl, D, vA, vB, t):
    ta,tb,tc,td=t
    gemm_addr(a,sg,sj,vl,ta,tb,tc)
    a(f"v_xor_b32 v{td}, 64, v{tb}")
    def rd(ks):
        p=ks&1
        if ks==0: a(f"ds_read_b128 {vr(vA,4)}, v{ta}")
        else:
            a(f"v_xor_b32 v{tc}, {32*ks}, v{ta}")
            a(f"ds_read_b128 {vr(vA+4*p,4)}, v{tc}")
        for b in range(2):
            if b and ks: a("s_waitcnt lgkmcnt(11)")
            for m in range(2):
                for q in range(2):
                    a(f"ds_read_b64_tr_b16 {vr(vB+16*p+8*b+4*m+2*q,2)}, v{td if b else tb} offset:{m*32768+ks*4096+q*1024}")
    rd(0)
    for ks in range(8):
        p=ks&1
        if ks<7:
            rd(ks+1); a("s_waitcnt lgkmcnt(9)")
        else: a("s_waitcnt lgkmcnt(0)")
        for u in range(4):
            a(f"{MFMA} {vr(D+16*u,16)}, {vr(vA+4*p,4)}, {vr(vB+16*p+4*u,4)}, {'0' if ks==0 else vr(D+16*u,16)}")

def gemm_core(a, ta, tb, tc, D0, D1, vA, vB, hook=None):
    def rd(ks):
        p=ks&1
        if ks==0: a(f"ds_read_b128 {vr(vA,4)}, v{ta}")
        else:
            a(f"v_xor_b32 v{tc}, {32*ks}, v{ta}")
            a(f"ds_read_b128 {vr(vA+4*p,4)}, v{tc}")
        for m in range(2):
            for q in range(2):
                a(f"ds_read_b64_tr_b16 {vr(vB+8*p+4*m+2*q,2)}, v{tb} offset:{m*32768+ks*4096+q*1024}")
    rd(0)
    for ks in range(8):
        p=ks&1
        if ks<7:
            rd(ks+1); a("s_waitcnt lgkmcnt(5)")
        else: a("s_waitcnt lgkmcnt(0)")
        a(f"{MFMA} {vr(D0,16)}, {vr(vA+4*p,4)}, {vr(vB+8*p,4)}, {'0' if ks==0 else vr(D0,16)}")
        a(f"{MFMA} {vr(D1,16)}, {vr(vA+4*p,4)}, {vr(vB+8*p+4,4)}, {'0' if ks==0 else vr(D1,16)}")
        if hook: hook(ks)

def gemm_one(a, ta, tb, tc, D, vA, vB, m, hook=None):
    def rd(ks):
        p=ks&1
        if ks==0: a(f"ds_read_b128 {vr(vA,4)}, v{ta}")
        else:
            a(f"v_xor_b32 v{tc}, {32*ks}, v{ta}")
            a(f"ds_read_b128 {vr(vA+4*p,4)}, v{tc}")
        for q in range(2):
            a(f"ds_read_b64_tr_b16 {vr(vB+4*p+2*q,2)}, v{tb} offset:{m*32768+ks*4096+q*1024}")
    rd(0)
    for ks in range(8):
        p=ks&1
        if ks<7:
            rd(ks+1); a("s_waitcnt lgkmcnt(3)")
        else: a("s_waitcnt lgkmcnt(0)")
        a(f"{MFMA} {vr(D,16)}, {vr(vA+4*p,4)}, {vr(vB+4*p,4)}, {'0' if ks==0 else vr(D,16)}")
        if hook: hook(ks)
```

```python
import os
os.environ['L_W']='4096'
from common import *
KNAME='gather_scatter__edge_featured_mpnn_egc__graph_kernel'
QSCALE=-LOG2E*(1-0.0027)
CAP=1856
L_TBL=0; L_CNT=2560; L_MISC=L_CNT+256; L_STATE=L_MISC+80
assert L_STATE+1024<=L_W
STW=2080; PADROW=25
L_ST=L_XS+32768
L_OFFS=L_ST+16*STW+512
NSLOT=CAP+160
L_META=L_OFFS+NSLOT*4
L_CS=L_META+NSLOT*4
F_LDS=L_CS+4096
assert F_LDS<=163840
B_CNT=L_ST; B_BASE=B_CNT+1024; B_SORT=B_BASE+7*1024
assert B_SORT+CH*8<=L_OFFS
SPIN=400000
M_TICKET=0; M_MORE=4; M_BIN=8; M_LAT=64
V_ACC=0; V_G=16; V_Z=48; V_IDX=64; V_P=80; V_C=88; V_E=92; V_I4=96; V_S=100; V_MSG=108; V_META=116
V_H16=118; V_SW=119; V_SR=120; V_ONE=121; V_ML=122; V_EL=123; V_T0=126; V_T1=127
NV=128
S_QH=8; S_EA=12; S_80=17; S_M31=18; S_W=20; S_W8=21; S_MORE=23; S_FIRST=60; S_NONCE=61
S_STEP=62; S_NSTEP=63; S_NT=64; S_PA=65; S_ERB=66; S_EWB=67; S_J=68; S_P0=69; S_NE=70; S_EF=71; S_LM=66; S_FM=21
V_CR=110; VL=V_MSG; VT=V_MSG+1

def lane_tid(a):
    a(f"""v_mbcnt_lo_u32_b32 v{VL}, -1, 0
    v_mbcnt_hi_u32_b32 v{VL}, -1, v{VL}
    v_lshl_add_u32 v{VT}, s{S_W}, 6, v{VL}""")
def lds_arrive(a, off, vt, sdst=None):
    a(f"v_mov_b32 v{vt}, 0\nv_mov_b32 v{vt+1}, 1\ns_mov_b64 exec, 1")
    if sdst is None: a(f"ds_add_u32 v{vt}, v{vt+1} offset:{L_MISC+off}\ns_mov_b64 exec, -1")
    else: a(f"ds_add_rtn_u32 v{vt+1}, v{vt}, v{vt+1} offset:{L_MISC+off}\ns_mov_b64 exec, -1\ns_waitcnt lgkmcnt(0)\nv_readfirstlane_b32 s{sdst}, v{vt+1}")
def lds_wait(a, off, target, vt, lab, nap=0):
    a(f"""v_mov_b32 v{vt}, 0
    {lab}:
    {'s_sleep 1' if nap else ''}
    ds_read_b32 v{vt+1}, v{vt} offset:{L_MISC+off}
    s_waitcnt lgkmcnt(0)
    v_readfirstlane_b32 s44, v{vt+1}
    s_cmp_lt_u32 s44, {target}
    s_cbranch_scc1 {lab}""")
def scan_row(a, v):
    for sh in (1,2,4,8): a(f"s_nop 1\nv_add_u32_dpp v{v}, v{v}, v{v} row_shr:{sh} row_mask:0xf bank_mask:0xf bound_ctrl:0")

def c_loads(a):
    srd(a,84,48,4096,add=65536)
    a(f"""v_and_b32 v0, 31, v{VL}
    s_and_b32 s44, s{S_W}, 3
    s_lshl_b32 s44, s44, 6
    v_lshlrev_b32 v1, 7, v{V_H16}
    v_lshl_add_u32 v1, v0, 1, v1
    v_add_u32 v1, s44, v1""")
    for i in range(8): a(f"buffer_load_ushort v{V_CR+i}, v1, s[84:87], 0 offen offset:{256*i}")
PROF=[0]
def tick(a,k):
    if not PROF[0]: return
    a(f"s_memtime s[92:93]\ns_waitcnt lgkmcnt(0)\ns_sub_u32 s91, s92, s90\ns_add_u32 s{95+k}, s{95+k}, s91\ns_mov_b32 s90, s92")
def e_slot(a, tt, dst):
    a(f"s_and_b32 s45, s{tt}, 15\ns_lshl_b32 s45, s45, 12\ns_add_u32 s{dst}, s{S_EWB}, s45")
def fetch_e(a, ahead, lab, own=False):
    if own: a(f"s_add_u32 s46, s{S_J}, {ahead}")
    else: a(f"s_cmp_gt_u32 s{S_J}, {E2[0]}\ns_cbranch_scc1 {lab}\ns_add_u32 s46, s{S_STEP}, {ahead}")
    a(f"""
    s_cmp_ge_u32 s46, s{S_NT}
    s_cbranch_scc1 {lab}
    s_lshl_b32 s44, s46, 7
    s_add_u32 s44, s44, s{S_P0}
    v_add_u32 v{V_T1}, s44, v{V_ML}
    ds_read_b32 v{V_T0}, v{V_T1}""")
    e_slot(a,46,44)
    a(f"""s_mov_b32 m0, s44
    s_waitcnt lgkmcnt(0)
    v_and_or_b32 v{V_T1}, v{V_T0}, s{S_M31}, v{V_H16}""")
    if E2[0]: a(f"s_lshl_b32 s44, s{S_J}, 20\nv_xor_b32 v{V_T1}, s44, v{V_T1}")
    if EM[0] is not None:
        a(f"s_cmp_lt_u32 s46, {EM[0]}\ns_cselect_b32 s44, -1, 0x1fffff\nv_and_b32 v{V_T1}, s44, v{V_T1}")
    a(f"""buffer_load_dwordx4 v{V_T1}, {sr(S_EA,4)}, 0 offen lds
    {lab}:""")
def fetch_e2(a, R, ED, lab):
    a(f"""s_mov_b32 s{S_EF}, 0
    s_add_u32 s46, s{S_STEP}, 11
    s_cmp_gt_u32 s{S_NE}, s46
    s_cbranch_scc1 {lab}
    s_cmp_ge_u32 s{S_NE}, s{S_NT}
    s_cbranch_scc1 {lab}
    s_lshl_b32 s44, s{S_NE}, 7
    s_add_u32 s44, s44, s{S_P0}
    v_add_u32 v{V_T1}, s44, v{V_ML}
    ds_read_b32 v{V_T0}, v{V_T1}""")
    e_slot(a,S_NE,44)
    a(f"""s_mov_b32 m0, s44
    s_add_u32 s{S_NE}, s{S_NE}, {R}
    s_mov_b32 s{S_EF}, 1
    s_waitcnt lgkmcnt(0)
    v_and_or_b32 v{V_T1}, v{V_T0}, s{S_M31}, v{V_H16}
    buffer_load_dwordx4 v{V_T1}, {sr(S_EA,4)}, 0 offen lds
    {lab}:""")
def fetch_g(a, par, ahead, lab):
    G=V_G+16*par
    a(f"""s_add_u32 s46, s{S_STEP}, {ahead}
    s_cmp_ge_u32 s46, s{S_NT}
    s_cbranch_scc1 {lab}
    v_add_u32 v{V_T1}, s{S_PA}, v{V_H16}""")
    for q in range(4): a(f"ds_read_b128 {vr(V_IDX+4*q,4)}, v{V_T1} offset:{32*q}")
    a(f"""v_add_u32 v{V_T1}, s{S_PA}, v{V_ML}
    ds_read_b32 v{V_META+par}, v{V_T1}
    s_add_u32 s{S_PA}, s{S_PA}, 128""")
    for q in range(4):
        a(f"s_waitcnt lgkmcnt({4-q})")
        for i in range(4*q,4*q+4): a(f"buffer_load_dword v{G+i}, v{V_IDX+i}, {sr(S_QH,4)}, 0 offen{QF[0]}")
    a(f"{lab}:")
QF=[' sc1']; EM=[None]; E2=[0]; CLDS=[1]; FINL=[1]; ULATE=[1]
def early_reads(a, par, ED):
    a(f"v_add_u32 v{V_T1}, s{S_PA}, v{V_H16}")
    for q in range(4): a(f"ds_read_b128 {vr(V_IDX+4*q,4)}, v{V_T1} offset:{32*q}")
    a(f"""v_add_u32 v{V_T1}, s{S_PA}, v{V_ML}
    ds_read_b32 v{V_META+par}, v{V_T1}
    ds_read_b32 v124, v{V_T1} offset:{128*(ED-2)}""")
def late_issue(a, par, ED, u):
    G=V_G+16*par
    a(f"""s_add_u32 s46, s{S_STEP}, {ED}
    s_cmp_lt_u32 s46, s{S_NT}
    s_cselect_b32 s45, s{S_J}, 1
    s_cmp_lg_u32 s45, 0
    s_cbranch_scc1 H_fe{u}""")
    e_slot(a,46,44)
    a(f"""s_mov_b32 m0, s44
    s_nop 0
    buffer_load_dwordx4 v124, {sr(S_EA,4)}, 0 offen lds
    H_fe{u}:
    s_add_u32 s46, s{S_STEP}, 2
    s_cmp_ge_u32 s46, s{S_NT}
    s_cbranch_scc1 H_fg{u}
    s_add_u32 s{S_PA}, s{S_PA}, 128""")
    for i in range(16): a(f"buffer_load_dword v{G+i}, v{V_IDX+i}, {sr(S_QH,4)}, 0 offen{QF[0]}")
    a(f"H_fg{u}:")
def step_body(a, par, opt, k4=None):
    prio=opt.get('prio',0); G=V_G+16*par; Z=V_Z; u=str(par if k4 is None else k4)
    BP=opt.get('bp',4); ED=BP+2
    a("s_waitcnt lgkmcnt(0)")
    if k4 is not None:
        pm=opt.get('pm4',0)
        lo4={0:3-k4,1:2*(k4<2),2:int(k4<2),3:0}[pm]; hi4={0:None,1:lo4+1,2:lo4+2,3:1}[pm]
        if k4==0: a("s_barrier")
        a(f"s_setprio {lo4}")
    elif BP==1: a("s_barrier")
    elif BP==2:
        if par==0: a("s_barrier")
        if opt.get('pp',1): a(f"s_setprio {2*(1-par) if prio==3 else 1-par}")
    elif BP==8:
        if par==0:
            a(f"""s_and_b32 s44, s{S_STEP}, 6
            s_cbranch_scc1 H_q1
            s_barrier
            s_setprio 3
            s_branch H_q9
            H_q1:
            s_cmp_eq_u32 s44, 2
            s_cbranch_scc0 H_q2
            s_setprio 2
            s_branch H_q9
            H_q2:
            s_cmp_eq_u32 s44, 4
            s_cbranch_scc0 H_q3
            s_setprio 1
            s_branch H_q9
            H_q3:
            s_setprio 0
            H_q9:""")
    else:
        b='s_barrier' if par==0 else ''
        a(f"""s_and_b32 s44, s{S_STEP}, 2
        s_cbranch_scc1 H_p1{u}
        {b}
        s_setprio {3-par}
        s_branch H_p2{u}
        H_p1{u}:
        {f"s_cmp_lg_u32 s{S_STEP}, 2" if (par==0 and opt.get('ramp2',0)) else ''}
        {"s_cbranch_scc1 H_p3" if (par==0 and opt.get('ramp2',0)) else ''}
        {"s_barrier" if (par==0 and opt.get('ramp2',0)) else ''}
        {"H_p3:" if (par==0 and opt.get('ramp2',0)) else ''}
        s_setprio {1-par}
        H_p2{u}:""")
    tick(a,0)
    a(f"""s_cmp_ge_u32 s{S_STEP}, s{S_NT}
    s_cbranch_scc1 H_idle{u}
    v_and_b32 v{V_T0}, 31, v{V_META+par}
    v_mad_u32_u24 v{V_T1}, v{V_T0}, s{S_80}, v{V_H16}
    v_mad_u32_u24 v{V_T0}, v{V_T0}, s{S_80}, v{V_SW}
    ds_read_b128 {vr(V_S,4)}, v{V_T1} offset:{L_TBL}
    ds_read_b128 {vr(V_S+4,4)}, v{V_T1} offset:{L_TBL+32}""")
    e_slot(a,S_STEP,44)
    a(f"""v_add_u32 v{V_T1}, s44, v{V_EL}
    ds_read_b128 {vr(V_E,4)}, v{V_T1}
    ; younger operations: 16 table loads of the next tile, and one e request in the wave that makes them""")
    if par==0 and opt.get('ramp2',0):
        a(f"""s_waitcnt vmcnt({16+ED-opt['ramp2']})
        s_or_b32 s44, s{S_STEP}, s{S_J}
        s_cbranch_scc0 H_go0""")
    a(f"""s_waitcnt vmcnt(17)
""")
    if opt.get('er',0): a(f"s_cmp_lg_u32 s{S_EF}, 0\ns_cbranch_scc1 H_go{u}")
    else:
        a(f"""s_add_u32 s44, s{S_STEP}, {ED-1}
        s_cmp_lt_u32 s44, s{S_NT}
        s_cselect_b32 s45, s{S_J}, 3
        s_cmp_le_u32 s45, {E2[0]}
        s_cbranch_scc1 H_go{u}""")
    a(f"""s_waitcnt vmcnt(16)
    s_add_u32 s44, s{S_STEP}, 1
    s_cmp_lt_u32 s44, s{S_NT}
    s_cbranch_scc1 H_go{u}
    s_waitcnt vmcnt(0)
    H_go{u}:
    s_waitcnt lgkmcnt(0)""")
    tick(a,1)
    a(f"{MFMA} {vr(Z,16)}, {vr(V_E,4)}, {vr(V_C,4)}, {vr(G,16)}")
    X=opt.get('x',0)
    if not X&1: a(f"{MFMA} {vr(Z,16)}, {vr(V_S,4)}, {vr(V_P,4)}, {vr(Z,16)}")
    if not X&2: a(f"{MFMA} {vr(Z,16)}, {vr(V_S+4,4)}, {vr(V_P+4,4)}, {vr(Z,16)}")
    if X&3: a("s_nop 1")
    a(f"ds_write_b16_d16_hi v{V_T0}, v{V_ONE}")
    a(f"ds_read_b128 {vr(V_S,4)}, v{V_SR}")
    a(f"ds_read_b128 {vr(V_S+4,4)}, v{V_SR} offset:32")
    a(f"ds_write_b16 v{V_T0}, v{V_ONE}")
    er=opt.get('early',0)
    if er: early_reads(a,par,ED)
    else: a("s_nop 0")
    if X&4: a("s_nop 7")
    else:
        for i in range(16): a(f"v_lshlrev_b32 v{G+i}, 16, v{G+i}")
    pk=opt.get('pk',0)
    hi={0:None,1:1,2:3-par,3:2*(1-par)+1}[prio]; lo={0:None,1:0,2:1-par,3:2*(1-par)}[prio]
    if k4 is not None and hi4 is not None: prio=1; hi=hi4; lo=lo4
    if prio: a(f"s_setprio {hi}")
    for i in range(16): a(f"v_exp_f32 v{Z+i}, v{Z+i}")
    if prio: a(f"s_setprio {lo}")
    if pk&1:
        for i in range(8): a(f"v_pk_add_f32 v[{Z+2*i}:{Z+2*i+1}], v[{Z+2*i}:{Z+2*i+1}], 1.0 op_sel_hi:[1,0]")
    elif not X&8:
        for i in range(16): a(f"v_add_f32 v{Z+i}, 1.0, v{Z+i}")
    if prio: a(f"s_setprio {hi}")
    if not X&16:
        for i in range(16): a(f"v_rcp_f32 v{Z+i}, v{Z+i}")
    if prio: a(f"s_setprio {lo}")
    if pk&2:
        for i in range(8): a(f"v_pk_mul_f32 v[{Z+2*i}:{Z+2*i+1}], v[{Z+2*i}:{Z+2*i+1}], v[{G+2*i}:{G+2*i+1}]")
    else:
        for i in range(16): a(f"v_mul_f32 v{Z+i}, v{Z+i}, v{G+i}")
    if er==2:
        a("s_waitcnt lgkmcnt(0)")
        a(f"v_and_or_b32 v124, v124, s{S_M31}, v{V_H16}")
        late_issue(a,par,ED,u)
    for i in range(8): a(f"v_cvt_pk_bf16_f32 v{V_MSG+i}, v{Z+2*i}, v{Z+2*i+1}")
    a("s_waitcnt lgkmcnt(0)")
    if er==1: a(f"v_and_or_b32 v124, v124, s{S_M31}, v{V_H16}")
    else: a("s_nop 0")
    a(f"{MFMA} {vr(V_ACC,16)}, {vr(V_S,4)}, {vr(V_MSG,4)}, {vr(V_ACC,16)}")
    a(f"{MFMA} {vr(V_ACC,16)}, {vr(V_S+4,4)}, {vr(V_MSG+4,4)}, {vr(V_ACC,16)}")
    tick(a,2)
    if er==1: late_issue(a,par,ED,u)
    if opt.get('er',0): fetch_e2(a,opt['er'],ED,f"H_fe{u}")
    elif not er: fetch_e(a,ED,f"H_fe{u}")
    tick(a,3)
    if not er: fetch_g(a,par,2,f"H_fg{u}")
    tick(a,4)
    a(f"""H_idle{u}:
    s_add_u32 s{S_STEP}, s{S_STEP}, 1
    s_cmp_ge_u32 s{S_STEP}, s{S_NSTEP}""")

def main_loop(a,opt,st):
    EM[0]=opt.get('em'); E2[0]=opt.get('e2',0)
    QF[0]=['',' sc1'][opt.get('qf',1)]
    if opt.get('cyc',0): a('s_memtime s[92:93]\ns_waitcnt lgkmcnt(0)\ns_mov_b32 s79, s92')
    a(f"s_mov_b32 s{S_STEP}, 0")
    if opt.get('prof',0):
        PROF[0]=1
        a("s_memtime s[92:93]\ns_waitcnt lgkmcnt(0)\ns_mov_b32 s90, s92\ns_mov_b32 s79, s92")
        for k in range(6): a(f"s_mov_b32 s{95+k}, 1")
    BP=opt.get('bp',4); ED=BP+2
    sp=opt.get('spread',0) and ED==6
    R2=opt.get('ramp2',0)
    if R2:
        for k in range(R2): fetch_e(a,k,f"H_pe{k}")
        fetch_g(a,0,0,"H_pg0")
        if opt.get('rb',1): a("s_barrier")
        for k in range(R2,ED): fetch_e(a,k,f"H_pe{k}")
        fetch_g(a,1,1,"H_pg1")
        n2=ED-R2
        a(f"""s_mov_b32 s{S_FIRST}, 0
        s_waitcnt vmcnt({32+n2})
        s_cmp_ge_u32 s{S_NT}, {ED}
        s_cbranch_scc1 H_loop
        s_waitcnt vmcnt(0)
        .p2align 3
        H_loop:""")
        step_body(a,0,opt)
        a("s_cbranch_scc1 H_done")
        step_body(a,1,opt)
        a("s_cbranch_scc0 H_loop\nH_done:")
        st(8)
        return
    if sp:
        fetch_e(a,0,"H_pe0",own=True); fetch_e(a,4,"H_pe4")
    else:
        for k in range(ED-1): fetch_e(a,k,f"H_pe{k}")
    fetch_g(a,0,0,"H_pg0")
    if opt.get('rb',1): a("s_barrier")
    fetch_e(a,ED-1,"H_pel")
    fetch_g(a,1,1,"H_pg1")
    if ULATE[0]:
        a(f"s_cmp_eq_u32 s{S_FIRST}, 0\ns_cbranch_scc1 H_nou\ns_lshr_b32 s46, s{S_W}, 2")
        gemm_addr(a,46,S_J,VL,V_T0,V_T1,125)
        gemm_one(a,V_T0,V_T1,125,V_ACC,V_E,V_IDX,1)
        a("H_nou:")
    if opt.get('er',0):
        a(f"""s_add_u32 s{S_NE}, s{S_J}, {ED}
        s_cmp_lt_u32 s{S_J}, {opt['er']}
        s_cselect_b32 s{S_NE}, s{S_NE}, 0x7fffffff
        s_cmp_gt_u32 s{S_NT}, {ED-1}
        s_cselect_b32 s44, s{S_J}, 1
        s_cmp_eq_u32 s44, 0
        s_cselect_b32 s{S_EF}, 1, 0""")
    st(7)
    a(f"""s_mov_b32 s{S_FIRST}, 0
    s_waitcnt vmcnt(33)
    s_cmp_le_u32 s{S_J}, {E2[0]}
    s_cbranch_scc1 H_pw
    s_waitcnt vmcnt(32)
    H_pw:
    s_cmp_ge_u32 s{S_NT}, {ED}
    s_cbranch_scc1 H_loop
    s_waitcnt vmcnt(0)
    .p2align {opt.get('al',3)}
    {'s_nop 0' if opt.get('al4',0) else ''}
    H_loop:""")
    if opt.get('u4',0):
        for k in range(4):
            step_body(a,k&1,opt,k)
            a("s_cbranch_scc1 H_done" if k<3 else "s_cbranch_scc0 H_loop\nH_done:")
    else:
        step_body(a,0,opt)
        a("s_cbranch_scc1 H_done")
        step_body(a,1,opt)
        a("s_cbranch_scc0 H_loop\nH_done:")
    if opt.get('prof',0): a("s_sub_u32 s100, s90, s79")
    if opt.get('cyc',0): a('s_memtime s[92:93]\ns_waitcnt lgkmcnt(0)\ns_sub_u32 s95, s92, s79')
    if opt.get('nst',0): a(f's_add_u32 s96, s91, s87\ns_lshl_b32 s96, s96, 8\ns_add_u32 s95, s96, s{S_NSTEP}')
    st(8)
def e_touch(a, lo, hi, fl):
    a(f"""s_mul_i32 s44, s2, {CH*32}
    s_mul_i32 s45, s{S_W}, 3200
    s_add_u32 s44, s44, s45
    v_lshl_add_u32 v16, v{VL}, 7, s44
    s_mov_b64 exec, {((1<<hi)-1)^((1<<lo)-1):#x}
    buffer_load_dword v125, v16, s[12:15], 0 offen{fl}
    s_mov_b64 exec, -1""")
def pick(a, off, t, f):
    a(f"""v_add_u32 v{t}, {WS_QH}, v{off}
    v_lshrrev_b32 v{t}, 8, v{t}
    v_xor_b32 v{t}, v{t}, v{off}
    v_xor_b32 v{t}, s{S_LM}, v{t}
    v_and_b32 v{t}, v{t}, v{f}
    v_and_b32 v{t}, s{S_FM}, v{t}
    v_xor_b32 v{off}, v{off}, v{t}
    v_lshl_add_u32 v{off}, v{t}, 11, v{off}""")
def q_touch(a, first, n, t=16, dup=0):
    a(f"""s_lshr_b32 s44, s2, 3
    s_lshl_b32 s44, s44, 4
    s_add_u32 s44, s44, s{S_W}
    s_mul_i32 s44, s44, {n*128}
    s_add_u32 s44, s44, {first*512*128}
    v_lshl_add_u32 v{t}, v{VL}, 7, s44""")
    if dup:
        a(f"v_bfe_u32 v18, v{t}, 9, 2\nv_subrev_u32 v18, {dup}, v18\nv_ashrrev_i32 v18, 31, v18")
        pick(a,t,17,18)
    a(f"""v_cmp_gt_u32 vcc, {n}, v{VL}
    s_mov_b64 exec, vcc
    buffer_load_dword v124, v{t}, s[{40 if dup else 72}:{43 if dup else 75}], 0 offen sc1
    s_mov_b64 exec, -1""")
def pu(a,regs,hook=None):
    ta,tb,tc,D,A,B=regs
    a(f"s_lshr_b32 s46, s{S_W}, 2\ns_and_b32 s47, s{S_W}, 3")
    gemm_addr(a,46,47,VL,ta,tb,tc)
    if CLDS[0]:
        a(f"v_add_u32 v{tc}, {L_CS-L_W}, v{tb}")
        for q in range(2): a(f"ds_read_b64_tr_b16 {vr(V_C+2*q,2)}, v{tc} offset:{1024*q}")
    if ULATE[0]: gemm_one(a,ta,tb,tc,D,A,B,0,hook)
    else: gemm_core(a,ta,tb,tc,D,V_ACC,A,B,hook)
    if not FINL[0]: pu_fin(a,D)
def pu_fin(a,D):
    a(f"s_mov_b32 s44, {f2u(-LOG2E):#x}")
    if CLDS[0]:
        for i in range(4): a(f"v_lshlrev_b32 v{V_CR+2*i}, 16, v{V_C+i}\nv_and_b32 v{V_CR+2*i+1}, 0xffff0000, v{V_C+i}")
        for i in range(8): a(f"v_mul_f32 v{V_CR+i}, s44, v{V_CR+i}")
    else:
        for i in range(8): a(f"v_lshlrev_b32 v{V_CR+i}, 16, v{V_CR+i}\nv_mul_f32 v{V_CR+i}, s44, v{V_CR+i}")
    for i in range(4): a(f"v_cvt_pk_bf16_f32 v{V_C+i}, v{V_CR+2*i}, v{V_CR+2*i+1}")
    for r in range(16): a(f"v_mul_f32 v{D+r}, s44, v{D+r}")
    for r in range(8): a(f"v_cvt_pk_bf16_f32 v{V_P+r}, v{D+2*r}, v{D+2*r+1}")

def prologue(a, opt, st):
    DUP=opt.get('dup',1)
    def BK(i):
        if opt.get('b16',1): return f"v_mul_u32_u24 v16, 42949, v{12+i}\nv_bfe_u32 v16, v16, 26, 4"
        return f"v_bfe_u32 v16, v{12+i}, 11, 4"
    CLDS[0]=opt.get('clds',1); FINL[0]=opt.get('finl',1); ULATE[0]=opt.get('ulate',0)
    xl=opt.get('xlate',1)
    a(f"""s_load_dwordx4 s[4:7], s[0:1], 0
    s_load_dwordx4 s[64:67], s[0:1], 16
    s_load_dwordx4 s[28:31], s[0:1], 32
    s_load_dwordx4 s[48:51], s[0:1], 48
    s_load_dwordx4 s[80:83], s[0:1], 64
    s_memrealtime s[58:59]""")
    if opt.get('cw',0):
        a(f"""s_getpc_b64 s[88:89]
        F_pc:
        s_mov_b32 s90, K2_exit-F_pc
        s_mov_b32 s91, 0x20000
        v_lshlrev_b32 v3, 7, v0
        v_subrev_u32 v3, {(1024-opt['cw'])*128}, v3
        buffer_load_dword v125, v3, s[88:91], 0 offen""")
    a(f"""v_lshrrev_b32 v2, 6, v0
    v_and_b32 v{VL}, 63, v0
    v_readfirstlane_b32 s{S_W}, v2
    v_mov_b32 v{VT}, v0
    s_mul_i32 s45, s2, {CH*4}
    v_lshlrev_b32 v4, 4, v0
    v_add_u32 v5, s45, v4
    v_cmp_gt_u32 vcc, {CH//4}, v0
    s_cmp_lt_u32 s2, {NCH}
    s_cselect_b64 s[78:79], vcc, 0
    s_waitcnt lgkmcnt(0)
    s_mov_b32 s68, s66
    s_mov_b32 s69, s67""")
    srd(a,64,64,E*4); srd(a,68,68,E*4)
    il=opt.get('il',0)
    def idx_loads():
        a(f"""s_mov_b64 exec, s[78:79]
        s_cbranch_execz F_noload
        buffer_load_dwordx4 v[8:11], v5, s[68:71], 0 offen
        buffer_load_dwordx4 v[12:15], v5, s[64:67], 0 offen
        F_noload:
        s_mov_b64 exec, -1""")
    if not il: idx_loads()
    a(f"""    s_mov_b32 s12, s6
    s_mov_b32 s13, s7
    s_mov_b32 s56, s82
    s_mov_b32 s57, s83
    s_mov_b32 s76, s28
    s_mov_b32 s77, s29""")
    srd(a,80,80,256)
    a("s_or_b32 s3, s58, 1")
    def nonce_store():
        a(f"""v_mov_b32 v6, 0
        v_mov_b32 v7, s3
        s_add_u32 s45, s2, s{S_W}
        s_cmp_lg_u32 s45, 0
        s_cbranch_scc1 F_nononce
        s_mov_b64 exec, 1
        buffer_store_dword v7, v6, s[80:83], 0 offen sc1
        s_mov_b64 exec, -1
        F_nononce:""")
    if not opt.get('nl',0): nonce_store()
    srd(a,4,4,N*256); srd(a,24,48,32768,add=32768); srd(a,28,30,32768)
    stage_x(a,S_W,2,4,VL,(16,17,18,19))
    def wstage():
        stage_w(a,S_W,24,28,VL,(16,17,18))
        a("v_mov_b32 v2, v18")
        if opt.get('clds',1):
            srd(a,84,48,4096,add=65536)
            a(f"""s_cmp_lt_u32 s{S_W}, 12
            s_cbranch_scc1 F_nocs
            s_and_b32 s44, s{S_W}, 3
            s_lshl_b32 s44, s44, 10
            v_and_b32 v18, 0x3ff, v18
            v_add_u32 v18, s44, v18
            s_add_u32 s44, s44, {L_CS}
            s_mov_b32 m0, s44
            s_nop 0
            buffer_load_dwordx4 v18, s[84:87], 0 offen lds
            F_nocs:""")
    if not opt.get('wlate',0): wstage()
    srd(a,12,12,E*32); srd(a,32,56,NCH*CH*8,add=WS_ENT); srd(a,36,56,NWG*2048,add=WS_CELL); srd(a,52,50,N*256)
    srd(a,72,56,N*RS,add=WS_QH)
    if DUP: srd(a,40,56,WS_MIR+N*RS+8192,add=WS_QH)
    if opt.get('aut',0):
        srd(a,88,48,32768); srd(a,40,76,32768)
        a(f"""s_cmp_lg_u32 s{S_W}, 10
        s_cbranch_scc1 F_noaut
        s_lshr_b32 s44, s2, 3
        s_lshl_b32 s44, s44, 10
        v_lshl_add_u32 v16, v{VL}, 7, s44
        s_mov_b64 exec, 0xff
        buffer_load_dword v124, v16, s[88:91], 0 offen
        buffer_load_dword v125, v16, s[40:43], 0 offen
        s_mov_b64 exec, -1
        F_noaut:""")
    if opt.get('tlb',0):
        g=opt['tlb']
        srd(a,88,56,WS_CELL+NWG*2048)
        a(f"""s_cmp_lg_u32 s{S_W}, 11
        s_cbranch_scc1 F_notlb
        v_lshlrev_b32 v16, {g}, v{VL}
        buffer_load_dword v124, v16, s[88:91], 0 offen
        buffer_load_dword v125, v16, s[12:15], 0 offen
        buffer_load_dword v126, v16, s[52:55], 0 offen
        F_notlb:""")
    a(f"""s_and_b32 s46, s{S_W}, 3
    s_lshl_b32 s44, s46, 7
    s_add_u32 s44, s44, {WS_QH-128}
    s_add_u32 s8, s56, s44
    s_addc_u32 s9, s57, 0
    s_or_b32 s9, s9, 0x40000
    s_mov_b32 s10, {WS_MIR+N*RS+8192+128}
    s_mov_b32 s11, 0x800000
    v_lshrrev_b32 v16, 5, v{VL}
    v_lshlrev_b32 v{V_H16}, 4, v16
    v_and_b32 v17, 31, v{VL}
    """)
    a(f"""s_mul_i32 s19, s{S_W}, {STW}
    s_add_u32 s19, s19, {L_ST}
    s_movk_i32 s{S_80}, 80
    s_mov_b32 s{S_M31}, 0xffffffe0
    v_mad_u32_u24 v{V_SR}, v17, s{S_80}, v{V_H16}
    v_add_u32 v{V_SR}, s19, v{V_SR}
    v_and_b32 v19, 19, v17
    v_and_b32 v20, 4, v17
    v_lshl_add_u32 v19, v20, 1, v19
    v_and_b32 v20, 8, v17
    v_lshrrev_b32 v20, 1, v20
    v_add_u32 v19, v19, v20
    v_lshlrev_b32 v19, 1, v19
    v_add_u32 v{V_SW}, s19, v19
    v_mov_b32 v{V_ONE}, 0x3f800000
    v_lshlrev_b32 v{V_ML}, 2, v17
    v_add_u32 v{V_ML}, {L_META-L_OFFS}, v{V_ML}
    v_lshlrev_b32 v{V_EL}, 4, v{VL}
    v_mov_b32 v24, 0
    v_mov_b32 v25, 0
    v_mov_b32 v26, 0
    v_mov_b32 v27, 0
    s_cmp_lg_u32 s{S_W}, 7
    s_cbranch_scc1 F_noinit
    v_lshlrev_b32 v20, 4, v{VL}
    v_add_u32 v21, {B_CNT}, v20
    ds_write_b128 v21, v[24:27]
    ds_write_b128 v20, v[24:27]
    ds_write_b128 v20, v[24:27] offset:1024
    ds_write_b128 v20, v[24:27] offset:2048
    v_mad_u32_u24 v20, v17, s{S_80}, v19
    ds_write_b16_d16_hi v20, v{V_ONE} offset:{L_TBL}
    s_waitcnt lgkmcnt(0)
    F_noinit:
    s_mov_b32 s{S_FIRST}, 1
    s_barrier""")
    if opt.get('wlate',0): wstage()
    if opt.get('nl',0): nonce_store()
    PW=opt.get('pw',15)
    def probe_addr():
        a(f"""s_lshr_b32 s44, s2, 3
        s_lshl_b32 s44, s44, 14
        s_and_b32 s45, s2, 7
        s_lshl_b32 s45, s45, 10
        s_add_u32 s44, s44, s45
        s_add_u32 s44, s44, {WS_PROBE}
        s_add_u32 s46, s56, s44
        s_addc_u32 s47, s57, 0""")
    if DUP and 'near' not in opt:
        a(f"s_cmp_lg_u32 s{S_W}, {PW}\ns_cbranch_scc1 F_nowarm")
        probe_addr()
        a("s_load_dword s19, s[46:47], 0\nF_nowarm:")
    def probe():
        ns=opt.get('ns',1)
        a(f"s_cmp_lg_u32 s{S_W}, {PW}\ns_cbranch_scc1 F_noprobe")
        probe_addr()
        a("""s_mov_b32 s62, -1
        s_mov_b32 s63, -1
        s_memtime s[88:89]
        s_waitcnt lgkmcnt(0)""")
        order=[(0,1),(1,1),(1,2),(0,2),(0,3),(1,3)][:2*ns]
        for side,q in order:
            a(f"""s_load_dword s44, s[46:47], {side*8192+q*256}
            s_waitcnt lgkmcnt(0)
            s_memtime s[90:91]
            s_waitcnt lgkmcnt(0)
            s_sub_u32 s45, s90, s88
            s_min_u32 s{62+side}, s{62+side}, s45
            s_mov_b32 s88, s90""")
        a(f"""{'s_mov_b32 s95, s62' if opt.get('dbgp',0) else ''}
        {'s_mov_b32 s96, s63' if opt.get('dbgp',0) else ''}
        s_getreg_b32 s44, hwreg(HW_REG_XCC_ID, 2, 1)
        {'s_add_u32 s97, s44, 16' if opt.get('dbgp',0) else ''}
        s_cmp_lt_u32 s62, s63
        s_cselect_b32 s45, 0, 1
        s_xor_b32 s44, s44, s45
        s_lshl_b32 s44, s44, 15
        s_or_b32 s44, s44, 0x4000
        s_sub_u32 s45, s62, s63
        s_abs_i32 s45, s45
        s_cmp_ge_u32 s45, {opt.get('mind',64)}
        s_cselect_b32 s44, s44, 0
        v_mov_b32 v16, 0
        v_mov_b32 v17, s44
        ds_write_b32 v16, v17 offset:{L_MISC+M_LAT}
        F_noprobe:""")
    def ranks(w):
        a(f"""s_mov_b64 exec, s[78:79]
        s_cbranch_execz F_norank
        s_mov_b32 s44, {M49}
        s_movk_i32 s45, {NB}
        s_movk_i32 s46, {RS}
        s_mul_i32 s47, s2, {CH}
        v_lshl_add_u32 v3, v0, 2, s47
        v_lshlrev_b32 v3, 5, v3
        v_mov_b32 v7, 1
        s_waitcnt vmcnt({w})""")
        for i in range(4):
            a(f"""v_lshrrev_b32 v16, 1, v{8+i}
            v_mul_hi_u32 v16, v16, s44
            v_mul_u32_u24 v17, s45, v16
            v_sub_u32 v17, v{8+i}, v17
            v_and_b32 v18, 7, v16
            v_bfe_u32 v16, v16, 3, 5
            v_lshl_add_u32 v16, v18, 5, v16
            v_lshlrev_b32 v{8+i}, 2, v16
            v_add_u32 v16, {B_CNT}, v{8+i}
            ds_add_rtn_u32 v{20+i}, v16, v7
            v_lshrrev_b32 v16, 2, v17
            v_add3_u32 v{41+2*i}, v3, v16, {32*i if i<3 else 64}
            v_and_b32 v17, 3, v17
            {BK(i)}
            v_lshl_add_u32 v16, v17, 4, v16
            v_mul_u32_u24 v17, s46, v{12+i}
            v_lshl_or_b32 v{40+2*i}, v16, 26, v17""")
            if DUP:
                a(f"""v_and_b32 v16, 3, v{12+i}
                v_subrev_u32 v16, {DUP}, v16
                v_lshrrev_b32 v16, 31, v16
                v_lshl_or_b32 v{40+2*i}, v16, 24, v{40+2*i}""")
            if i==3: a(f"v_add_u32 v{41+2*i}, 32, v{41+2*i}")
        a("F_norank:\ns_mov_b64 exec, -1")
    if not il:
        ranks(6)
        a("v_mov_b32 v6, 0\ns_waitcnt vmcnt(0) lgkmcnt(0)")
    else:
        idx_loads()
        a(f"""v_mov_b32 v6, 0
        s_waitcnt vmcnt(2)
        s_cmp_lg_u64 s[78:79], 0
        s_cbranch_scc1 F_b1
        s_waitcnt vmcnt(0)
        F_b1:""")
    st(1)
    a("s_barrier")
    if il:
        ranks(0)
        a(f"s_cmp_ge_u32 s{S_W}, 7\ns_cbranch_scc1 F_binsync\ns_waitcnt lgkmcnt(0)")
        lds_arrive(a,M_BIN,16); lds_wait(a,M_BIN,7,16,"F_binw")
        a("F_binsync:")
    if DUP and 'near' not in opt and not opt.get('pa',0): probe()
    a("buffer_load_dword v7, v6, s[80:83], 0 offen sc1")
    srd(a,24,48,32768); srd(a,28,76,32768)
    def au():
        for k in range(4): a(f"buffer_load_dwordx4 {vr(88+4*k,4)}, v2, s[{24+4*(k>>1)}:{27+4*(k>>1)}], 0 offen offset:{1024*(k&1)}")
    if not opt.get('auin',0) and not opt.get('auaft',0): au()
    if DUP and 'near' not in opt and opt.get('pa',0): probe()
    if not opt.get('clds',1): c_loads(a)
    if opt.get('ew0',0): e_touch(a,0,opt['ew0'],['',' nt'][opt.get('ewf',0)])
    a(f"""    s_cmp_ge_u32 s{S_W}, 7
    s_cbranch_scc1 F_noscan
    v_lshlrev_b32 v16, 4, v{VL}
    v_add_u32 v17, {B_CNT}, v16
    ds_read_b128 v[24:27], v17
    s_lshl_b32 s44, s{S_W}, 10
    s_add_u32 s44, s44, {B_BASE}
    s_waitcnt lgkmcnt(0)
    v_add_u32 v29, v24, v25
    v_add_u32 v30, v29, v26
    v_add_u32 v31, v30, v27
    v_mov_b32 v32, v31""")
    scan_row(a,32)
    a(f"""s_nop 1
    v_add_u32_dpp v32, v32, v32 row_bcast:15 row_mask:0xa bank_mask:0xf
    s_nop 1
    v_add_u32_dpp v32, v32, v32 row_bcast:31 row_mask:0xc bank_mask:0xf
    s_nop 1
    v_sub_u32 v32, v32, v31
    v_add_u32 v33, v32, v24
    v_add_u32 v34, v32, v29
    v_add_u32 v35, v32, v30
    v_add_u32 v17, s44, v16
    ds_write_b128 v17, v[32:35]
    v_lshl_or_b32 v80, v24, 16, v32
    v_lshl_or_b32 v82, v25, 16, v33
    v_lshl_or_b32 v84, v26, 16, v34
    v_lshl_or_b32 v86, v27, 16, v35
    s_mov_b64 exec, s[78:79]""")
    for i in range(4):
        a(f"v_add_u32 v16, s44, v{8+i}\nds_read_b32 v{36+i}, v16")
    a("s_waitcnt lgkmcnt(0)")
    for i in range(4):
        a(f"v_add_u32 v16, v{36+i}, v{20+i}\nv_lshlrev_b32 v16, 3, v16\nv_add_u32 v16, {B_SORT}, v16\nds_write_b64 v16, v[{40+2*i}:{41+2*i}]")
    a(f"""s_mov_b64 exec, -1
    F_noscan:
    s_lshr_b32 s46, s{S_W}, 2
    s_and_b32 s47, s{S_W}, 3""")
    gemm_addr(a,46,47,VL,8,9,10)
    Q=48; H=64
    if 'wl' in opt: srd(a,88,56,48<<20,add=(64<<20)+WS_QH)
    gemm_core(a,8,9,10,Q,H,24,32,hook=(lambda ks: au() if (ks==opt.get('auin',0)-1 and opt.get('auin',0)) else None))
    st(2)
    if opt.get('sp',2): a(f"s_setprio {opt.get('sp',2)}")
    nw=opt.get('nw',0)
    a(f"""s_mov_b32 s44, {SPIN}
    {'s_waitcnt vmcnt(4)' if nw else ''}
    {'s_branch F_nonce_chk' if nw else ''}
    F_nonce_poll:
    s_waitcnt vmcnt(0)
    F_nonce_chk:
    v_readfirstlane_b32 s{S_NONCE}, v7
    s_sub_u32 s44, s44, 1
    s_cbranch_scc1 F_nonce_ok
    s_cmp_lg_u32 s{S_NONCE}, 0
    s_cbranch_scc1 F_nonce_ok
    buffer_load_dword v7, v6, s[80:83], 0 offen sc1
    s_branch F_nonce_poll
    F_nonce_ok:
    s_mul_i32 s44, s2, {NB}
    s_add_u32 s44, s44, s46
    s_mul_i32 s44, s44, {RS}
    s_lshl_b32 s45, s47, 7
    s_add_u32 s44, s44, s45
    v_mul_u32_u24 v11, {RS}, v{V_H16}
    v_and_b32 v12, 31, v{VL}
    v_lshl_add_u32 v11, v12, 2, v11
    v_add_u32 v11, s44, v11
    s_mov_b32 s45, {f2u(QSCALE):#x}
    s_nop 1""")
    for r in range(13):
        a(f"v_mul_f32 v{Q+r}, s45, v{Q+r}")
        a(f"v_cvt_pk_bf16_f32 v{Q+r}, v{H+r}, v{Q+r}")
        if r and (r&3)==0: a(f"v_add_u32 v11, {5*4*RS}, v11")
        elif r: a(f"v_add_u32 v11, {4*RS}, v11")
        if r==12: a(f"s_cmp_ge_u32 s46, 2\ns_cbranch_scc1 F_q\ns_mov_b32 exec_hi, 0")
        if 'wl' in opt:
            if r==0: a(f"s_getreg_b32 s59, hwreg(HW_REG_XCC_ID)\ns_lshr_b32 s59, s59, 2\ns_and_b32 s59, s59, 1\ns_xor_b32 s59, s59, {opt['wl']}\ns_lshl_b32 s59, s59, 13")
            a(f"""v_add_u32 v13, {WS_QH}, v11
            v_lshrrev_b32 v13, 8, v13
            v_xor_b32 v13, s59, v13
            v_and_b32 v13, 0x2000, v13
            v_and_b32 v14, 0xffffdfff, v11
            v_or_b32 v14, v14, v13
            v_and_b32 v13, 0x2000, v11
            v_lshl_add_u32 v14, v13, 11, v14
            buffer_store_dword v{Q+r}, v14, s[88:91], 0 offen sc1""")
        else:
            a(f"buffer_store_dword v{Q+r}, v11, s[72:75], 0 offen sc1")
            if DUP and r==0: a("v_mov_b32 v13, v11")
    a("F_q:\ns_mov_b64 exec, -1")
    if DUP:
        a(f"""; every fourth row also gets a mirror on the other side (address bit 13 flipped)
        s_lshl_b32 s44, s2, 1
        s_add_u32 s44, s44, s46
        s_and_b32 s44, s44, 3
        s_cmp_ge_u32 s44, {DUP}
        s_cbranch_scc1 F_m
        s_mov_b32 s45, {WS_MIR}""")
        for r in range(13):
            if r and (r&3)==0: a(f"v_add_u32 v13, {5*4*RS}, v13")
            elif r: a(f"v_add_u32 v13, {4*RS}, v13")
            if r==12: a(f"s_cmp_ge_u32 s46, 2\ns_cbranch_scc1 F_m\ns_mov_b32 exec_hi, 0")
            a(f"v_xor_b32 v14, 0x2000, v13\nbuffer_store_dword v{Q+r}, v14, s[40:43], s45 offen sc1")
        a("F_m:\ns_mov_b64 exec, -1")
    if opt.get('sp',2): a("s_setprio 0")
    def auw():
        a(f"""; the staged B and V are no longer needed: replace them by A and U
        s_lshl_b32 s44, s{S_W}, 11
        s_add_u32 s44, s44, {L_W}
        v_lshl_add_u32 v16, v{VL}, 4, s44
        ds_write_b128 v16, v[88:91]
        ds_write_b128 v16, v[92:95] offset:1024
        ds_write_b128 v16, v[96:99] offset:32768
        ds_write_b128 v16, v[100:103] offset:33792""")
    aa=opt.get('auaft',0)
    if aa==1: au()
    a("s_barrier")
    if aa==2:
        stage_w(a,S_W,24,28,VL,(16,17,18))
    if not aa:
        if nw: a("s_waitcnt vmcnt(12)")
        auw()
    a(f"""    ; sorted entries: 800 lanes x 16 bytes
    v_cmp_gt_u32 vcc, {CH//2}, v{VT}
    s_cmp_lt_u32 s2, {NCH}
    s_cselect_b64 s[46:47], vcc, 0
    s_mov_b64 exec, s[46:47]
    s_cbranch_execz F_noent
    v_add_u32 v16, {B_SORT}, v4
    ds_read_b128 v[8:11], v16
    s_mul_i32 s45, s2, {CH*8}
    v_add_u32 v5, s45, v4
    s_waitcnt lgkmcnt(0)
    buffer_store_dwordx4 v[8:11], v5, s[32:35], 0 offen sc1
    F_noent:
    s_mov_b64 exec, -1
    s_waitcnt vmcnt(0) lgkmcnt(0)""")
    if aa==1:
        auw(); a("s_waitcnt lgkmcnt(0)")
    st(3)
    a(f"""s_barrier
    s_cmp_lg_u32 s{S_W}, 0
    s_cbranch_scc1 F_nocell
""")
    if DUP and 'near' not in opt:
        a(f"""v_mov_b32 v16, 0
        ds_read_b32 v17, v16 offset:{L_MISC+M_LAT}
        s_waitcnt lgkmcnt(0)
        v_or_b32 v80, v80, v17
        v_or_b32 v82, v82, v17
        v_or_b32 v84, v84, v17
        v_or_b32 v86, v86, v17""")
    a(f"""v_mov_b32 v81, s{S_NONCE}
    v_mov_b32 v83, s{S_NONCE}
    v_mov_b32 v85, s{S_NONCE}
    v_mov_b32 v87, s{S_NONCE}
    s_lshl_b32 s45, s2, 11
    v_lshl_add_u32 v16, v{VL}, 5, s45
    buffer_store_dwordx4 v[80:83], v16, s[36:39], 0 offen sc1
    buffer_store_dwordx4 v[84:87], v16, s[36:39], 0 offen offset:16 sc1
    F_nocell:
    v_mov_b32 v24, 0
    v_mov_b32 v25, 0
    v_mov_b32 v26, 0
    v_mov_b32 v27, 0
    v_add_u32 v16, {L_ST}, v4
    ds_write_b128 v16, v[24:27]
    ds_write_b128 v16, v[24:27] offset:16384
    v_and_b32 v16, 0x3f0, v4
    v_add_u32 v16, {L_ST+32768}, v16
    ds_write_b128 v16, v[24:27]""")
    ew=opt.get('ew',0); ewf=['',' nt'][opt.get('ewf',0)]
    if ew: e_touch(a,0,ew,ewf)
    if opt.get('pf0',0) and 'pf0at' not in opt: q_touch(a,0,opt['pf0'])
    if opt.get('pufirst',0): pu(a,(16,17,18,64,24,32))
    a(f"""s_and_b32 s44, s2, 7
    s_lshl_b32 s44, s44, 5
    s_lshr_b32 s45, s2, 3
    s_add_u32 s44, s44, s45
    s_lshl_b32 s44, s44, 3
    v_lshrrev_b32 v19, 2, v{VT}
    v_lshl_add_u32 v18, v19, 11, s44
    """)
    if not opt.get('pufirst',0):
        pat=opt.get('pat',5)
        poll=lambda: a("buffer_load_dwordx2 v[20:21], v18, s[36:39], 0 offen sc1")
        if pat<0: poll()
        pu(a,(16,17,22,64,24,32),hook=lambda ks: (poll() if ks==pat else None, q_touch(a,0,opt['pf0'],23) if ks==opt.get('pf0at',-1) else None))
        a(f"s_mov_b32 s44, {SPIN}\ns_branch F_cell_chk")
    a(f"""s_mov_b32 s44, {SPIN}
    F_cell_poll:
    buffer_load_dwordx2 v[20:21], v18, s[36:39], 0 offen sc1
    F_cell_chk:
    s_waitcnt vmcnt(0)
    v_cmp_eq_u32 vcc, s{S_NONCE}, v21
    s_cmp_eq_u64 vcc, -1
    s_cbranch_scc1 F_cell_ok
    s_sub_u32 s44, s44, 1
    s_cbranch_scc1 F_cell_ok
    s_sleep {opt.get('csleep',1)}
    s_branch F_cell_poll
    F_cell_ok:
    v_cndmask_b32 v21, 0, v20, vcc""")
    if DUP and 'near' not in opt:
        a(f"""v_bfe_u32 v16, v21, 14, 2
        v_and_b32 v21, 0xffff3fff, v21
        v_cmp_eq_u32 vcc, 1, v16
        s_bcnt1_i32_b64 s44, vcc
        v_cmp_eq_u32 vcc, 3, v16
        s_bcnt1_i32_b64 s45, vcc
        s_getreg_b32 s46, hwreg(HW_REG_XCC_ID, 2, 1)
        s_cmp_lg_u32 s44, s45
        s_cselect_b32 s{S_FM}, 0x2000, 0
        s_cmp_lt_u32 s44, s45
        s_cselect_b32 s44, 1, 0
        s_xor_b32 s44, s44, s46
        s_lshl_b32 s{S_LM}, s44, 13""")
    st(4)
    a(f"""s_branch F_take
    K2_round:""")
    lane_tid(a)
    a(f"""s_barrier
    s_cmp_lg_u32 s{S_W}, 7
    s_cbranch_scc1 F_noclr
    v_mov_b32 v24, 0
    v_mov_b32 v25, 0
    v_mov_b32 v26, 0
    v_mov_b32 v27, 0
    v_lshlrev_b32 v20, 4, v{VL}
    v_min_u32 v20, 304, v20
    ds_write_b128 v20, v[24:27] offset:{L_CNT}
    s_waitcnt lgkmcnt(0)
    F_noclr:
    s_barrier
    v_lshrrev_b32 v19, 2, v{VT}
    v_lshlrev_b32 v20, 2, v19
    ds_read_b32 v21, v20 offset:{L_STATE}
    s_waitcnt lgkmcnt(0)
    F_take:
    v_lshrrev_b32 v22, 16, v21
    v_min_u32 v23, 32, v22
    v_and_b32 v21, 0xffff, v21
    v_and_b32 v28, 3, v{VT}
    s_movk_i32 s46, {CH}
    v_mad_u32_u24 v30, v19, s46, v21
    v_lshlrev_b32 v27, 1, v28
    v_add_u32 v30, v30, v27
    v_lshlrev_b32 v30, 3, v30
    v_sub_u32 v26, v23, v27""")
    for k in range(4):
        a(f"""v_cmp_lt_i32 vcc, {8*k}, v26
        s_cbranch_vccz F_ld_done
        s_mov_b64 exec, vcc
        buffer_load_dwordx4 v[{32+4*k}:{35+4*k}], v30, s[32:35], 0 offen offset:{64*k} sc1
        s_mov_b64 exec, -1""")
    a(f"""F_ld_done:
    v_mov_b32 v29, 0
    v_cmp_eq_u32 vcc, 0, v28
    s_and_saveexec_b64 s[44:45], vcc
    ds_add_rtn_u32 v30, v29, v23 offset:{L_MISC+M_TICKET}
    s_waitcnt lgkmcnt(0)
    v_add_u32 v30, v30, v23
    v_cmp_ge_u32 vcc, {CAP}, v30
    s_nop 1
    v_cndmask_b32 v23, 0, v23, vcc
    v_sub_u32 v22, v22, v23
    v_add_u32 v30, v21, v23
    v_lshl_or_b32 v30, v22, 16, v30
    v_lshlrev_b32 v31, 2, v19
    ds_write_b32 v31, v30 offset:{L_STATE}
    v_cmp_lt_u32 vcc, 0, v22
    s_and_b64 exec, exec, vcc
    v_mov_b32 v30, 1
    ds_write_b32 v29, v30 offset:{L_MISC+M_MORE}
    s_mov_b64 exec, s[44:45]
    s_nop 4
    v_mov_b32_dpp v23, v23 quad_perm:[0,0,0,0] row_mask:0xf bank_mask:0xf
    v_sub_u32 v23, v23, v27
    v_mov_b32 v29, 1""")
    if FINL[0]:
        a(f"s_cmp_eq_u32 s{S_FIRST}, 0\ns_cbranch_scc1 F_nofin")
        pu_fin(a,64)
        a("F_nofin:")
    for k in range(4):
        for i in range(2): a(f"v_cmp_lt_i32 s[{80+4*k+2*i}:{81+4*k+2*i}], {8*k+i}, v23") if k<2 else None
    if DUP and 'near' in opt:
        a(f"s_getreg_b32 s{S_LM}, hwreg(HW_REG_XCC_ID)\ns_lshr_b32 s{S_LM}, s{S_LM}, 2\ns_and_b32 s{S_LM}, s{S_LM}, 1\ns_xor_b32 s{S_LM}, s{S_LM}, {opt['near']}\ns_lshl_b32 s{S_LM}, s{S_LM}, 13\ns_movk_i32 s{S_FM}, 0x2000")
    a(f"""s_mov_b32 s46, 0xffffff
    s_mov_b32 s47, {(N-1)*RS}
    s_waitcnt vmcnt(0)""")
    if 'emu' in opt:
        a(f"s_getreg_b32 s59, hwreg(HW_REG_XCC_ID)\ns_lshr_b32 s59, s59, 2\ns_and_b32 s59, s59, 1\ns_xor_b32 s59, s59, {opt['emu']}\ns_lshl_b32 s59, s59, 13")
    def mask(k,i):
        if k<2: return f"s[{80+4*k+2*i}:{81+4*k+2*i}]"
        a(f"v_cmp_lt_i32 vcc, {8*k+i}, v23"); return "vcc"
    for k in range(4):
        for i in range(2):
            m=mask(k,i); e=32+4*k+2*i
            if i==0: a(f"s_cmp_eq_u64 {m}, 0\ns_cbranch_scc1 F_rk_done")
            a(f"""v_lshrrev_b32 v{48+2*k+i}, 24, v{e}
            v_and_b32 v{48+2*k+i}, 0xfc, v{48+2*k+i}
            s_mov_b64 exec, {m}
            ds_add_rtn_u32 v{64+2*k+i}, v{48+2*k+i}, v29 offset:{L_CNT}
            s_mov_b64 exec, -1
            v_lshrrev_b32 v17, 11, v{e}
            v_and_b32 v{e}, s46, v{e}
            v_min_u32 v{e}, s47, v{e}""")
            if DUP: pick(a,e,16,17)
            if 'emu' in opt:
                a(f"""v_add_u32 v16, {WS_QH}, v{e}
                v_lshrrev_b32 v16, 8, v16
                v_xor_b32 v16, s59, v16
                v_and_b32 v16, 0x2000, v16
                v_and_b32 v{e}, 0xffffdfff, v{e}
                v_or_b32 v{e}, v{e}, v16
                v_min_u32 v{e}, s47, v{e}""")
            a(f"v_add_u32 v{e}, 128, v{e}")
    a(f"""F_rk_done:
    s_waitcnt lgkmcnt(0)""")
    st(5)
    a("s_barrier")
    npf=opt.get('pf',16)
    if npf:
        a(f"""s_cmp_eq_u32 s{S_FIRST}, 0
        s_cbranch_scc1 F_nopf""")
        q_touch(a,opt.get("pf0",0),npf,16,DUP)
        if opt.get('ew2',0): e_touch(a,opt.get('ew',0),opt['ew2'],['',' nt'][opt.get('ewf',0)])
        a(f"""
        F_nopf:""")
    a(f"""v_lshlrev_b32 v16, 2, v{VL}
    ds_read_b32 v17, v16 offset:{L_CNT}
    v_mov_b32 v16, 0
    ds_read_b32 v18, v16 offset:{L_MISC+M_MORE}
    s_waitcnt lgkmcnt(0)
    v_mov_b32 v20, v17
    v_readfirstlane_b32 s{S_MORE}, v18""")
    scan_row(a,20)
    a(f"""s_lshr_b32 s47, s{S_W}, 2
    s_lshl_b32 s45, s47, 4
    s_add_u32 s44, s45, 15
    v_add_u32 v21, 31, v20
    v_lshrrev_b32 v21, 5, v21
    v_mov_b32 v18, 0
    v_mov_b32 v22, 0
    v_readlane_b32 s88, v20, s44
    v_mov_b32_dpp v18, v21 row_bcast:15 row_mask:0xa bank_mask:0xf
    v_readlane_b32 s{S_NT}, v21, s44
    v_add_u32 v16, v21, v18
    v_max_u32 v21, v21, v18
    v_sub_u32 v20, v20, v17
    v_mov_b32_dpp v22, v16 row_bcast:31 row_mask:0xc bank_mask:0xf
    v_readlane_b32 s89, v21, 31
    v_readlane_b32 s90, v21, 63
    v_add_u32 v18, v18, v22
    s_nop 0
    v_readlane_b32 s91, v18, s45
    v_lshl_add_u32 v20, v18, 5, v20
    s_max_u32 s{S_NSTEP}, s89, s90""")
    a(f"s_mov_b32 s46, {L_OFFS}\ns_movk_i32 s47, -128")
    for half in range(2):
        if half: a(f"v_cmp_lt_i32 vcc, 16, v23\ns_cbranch_vccz F_pos_done")
        for q in range(4*half,4*half+4): a(f"ds_bpermute_b32 v{48+q}, v{48+q}, v20")
        for k in range(2*half,2*half+2):
            if k==2*half: a("s_waitcnt lgkmcnt(0)")
            for i in range(2):
                q=2*k+i; e=32+4*k+2*i
                a(f"""v_add_u32 v{48+q}, v{48+q}, v{64+q}
                v_bfe_u32 v16, v{48+q}, 2, 1
                v_mad_i32_i24 v{e}, v16, s47, v{e}
                v_lshl_add_u32 v{48+q}, v{48+q}, 2, s46""")
                m=mask(k,i)
                a(f"""s_mov_b64 exec, {m}
                ds_write_b32 v{48+q}, v{e}
                ds_write_b32 v{48+q}, v{e+1} offset:{L_META-L_OFFS}
                s_mov_b64 exec, -1""")
    a(f"""F_pos_done:
    s_lshl_b32 s{S_PA}, s91, 7
    s_add_u32 s{S_PA}, s{S_PA}, {L_OFFS}
    s_mov_b32 s{S_P0}, s{S_PA}
    s_and_b32 s{S_J}, s{S_W}, 3
    s_lshr_b32 s{S_EWB}, s{S_W}, 2
    s_lshl_b32 s{S_EWB}, s{S_EWB}, 10
    s_add_u32 s{S_EWB}, s{S_EWB}, {L_W}
    s_mov_b32 s44, s88
    s_mov_b32 s45, s91
    s_mov_b32 s46, s{S_NT}
    s_and_b32 s58, s44, 31
    s_cbranch_scc0 K2_nopad
    s_cmp_lg_u32 s{S_J}, 3
    s_cbranch_scc1 K2_nopad
    v_and_b32 v16, 31, v{VL}
    v_cmp_le_u32 vcc, s58, v16
    s_add_u32 s59, s45, s46
    s_sub_u32 s59, s59, 1
    s_lshl_b32 s59, s59, 7
    s_add_u32 s59, s59, {L_OFFS}
    s_mul_i32 s58, s2, {NB*RS}
    v_and_b32 v17, 4, v16
    v_lshlrev_b32 v17, 5, v17
    v_sub_u32 v17, 128, v17
    v_add_u32 v17, s58, v17
    v_lshl_add_u32 v18, v16, 2, s59
    v_mov_b32 v19, {PADROW}
    s_and_saveexec_b64 s[46:47], vcc
    ds_write_b32 v18, v17
    ds_write_b32 v18, v19 offset:{L_META-L_OFFS}
    s_mov_b64 exec, s[46:47]
    K2_nopad:
    s_waitcnt lgkmcnt(0)""")
    st(6)
    a("s_barrier")

def epilogue(a,opt,st):
    a(f"""s_cmp_lg_u32 s{S_MORE}, 0
    s_cbranch_scc1 K2_round
    s_mul_i32 s44, s2, {NB}
    s_lshr_b32 s45, s{S_W}, 2
    s_add_u32 s44, s44, s45
    s_lshl_b32 s44, s44, 8
    s_and_b32 s46, s{S_W}, 3
    s_lshl_b32 s46, s46, 6
    s_add_u32 s44, s44, s46
    s_sub_u32 s44, s44, {(L_META-L_OFFS)//2}
    v_lshlrev_b32 v16, 8, v{V_H16}
    v_lshrrev_b32 v17, 1, v{V_ML}
    v_add3_u32 v16, v16, v17, s44
    s_mov_b32 s47, {f2u(-LOG2E):#x}
    s_nop 4""")
    for r in range(13): a(f"v_mul_f32 v{V_Z+r}, s47, v{V_ACC+r}")
    for r in range(13): a(f"v_exp_f32 v{V_Z+r}, v{V_Z+r}")
    for r in range(13): a(f"v_add_f32 v{V_Z+r}, 1.0, v{V_Z+r}")
    for r in range(13): a(f"v_rcp_f32 v{V_Z+r}, v{V_Z+r}")
    for r in range(13): a(f"v_mul_f32 v{V_Z+r}, v{V_Z+r}, v{V_ACC+r}")
    ep=opt.get('ep',1) and not opt.get('wide',0)
    for r in range(13):
        if not ep: a(f"v_cvt_pk_bf16_f32 v{V_Z+r}, v{V_Z+r}, v{V_Z+r}")
        elif r%2==0: a(f"v_cvt_pk_bf16_f32 v{V_Z+r}, v{V_Z+r}, v{V_Z+min(r+1,12)}")
    OF=['',' sc1',' nt',' sc0 sc1'][opt.get('of',1)]
    if opt.get('wide',0):
        a(f"""s_lshl_b32 s44, s45, 8
        s_add_u32 s44, s44, s46
        s_add_u32 s44, s44, {L_XS-(L_META-L_OFFS)//2}
        v_lshlrev_b32 v16, 8, v{V_H16}
        v_add3_u32 v16, v16, v17, s44""")
        for r in range(13): a(f"ds_write_b16 v16, v{V_Z+r} offset:{(r>>2)*8192+(r&3)*1024}")
        lane_tid(a)
        a(f"""v_lshlrev_b32 v16, 4, v{VT}
        v_add_u32 v17, {L_XS}, v16
        s_mul_i32 s44, s2, {NB*256}
        v_add_u32 v16, s44, v16
        v_add_u32 v18, 16384, v16
        v_cmp_gt_u32 vcc, {NB*16-1024}, v{VT}
        s_waitcnt lgkmcnt(0)
        s_barrier
        ds_read_b128 v[20:23], v17
        ds_read_b128 v[24:27], v17 offset:16384
        s_waitcnt lgkmcnt(1)
        buffer_store_dwordx4 v[20:23], v16, s[52:55], 0 offen{OF}
        s_and_saveexec_b64 s[46:47], vcc
        s_cbranch_execz K2_done
        s_waitcnt lgkmcnt(0)
        buffer_store_dwordx4 v[24:27], v18, s[52:55], 0 offen{OF}""")
        return
    for r in range(13):
        if r==12:
            a(f"""s_cmp_ge_u32 s45, 2
            s_cbranch_scc1 K2_done
            s_mov_b32 exec_hi, 0""")
        if r and (r&3)==0: a(f"v_add_u32 v16, 8192, v16")
        a(f"buffer_store_short{'_d16_hi' if (ep and r&1) else ''} v{V_Z+(r&~1 if ep else r)}, v16, s[52:55], 0 offen offset:{(r&3)*1024}{['',' sc1',' nt',' sc0 sc1'][opt.get('of',1)]}")


def gen(a,opt):
    st=Stamper(a,opt.get('stamp',0),94)
    a(kstart(KNAME))
    a(f"s_cmp_ge_u32 s2, {NWG}\ns_cbranch_scc1 K2_exit")
    st()
    if opt.get('dbgp',0): st(10); st(11); st(12)
    prologue(a,opt,st); main_loop(a,opt,st); epilogue(a,opt,st)
    a("K2_done:"); st.flush(0,S_W,56,opt.get('amp')); a("K2_exit:\ns_endpgm")
    a(kdesc(KNAME,NV))
```

```python
import sys
from f12 import *
opt={k:int(v) for k,v in (kv.split('=') for kv in sys.argv[1:])}
a=Asm()
for l in open('gather_scatter__edge_featured_mpnn_egc__graph.s.ref').read().split('\n'):
    if l.startswith('; Override'): break
    a(l)
if opt.get('list',0): a(f"; @launch kernel={KNAME} grid=({NWG},1,1) block=(1024,1,1) lds={F_LDS}")
else: a(f"; @launch grid=({NWG},1,1) block=(1024,1,1) lds={F_LDS}")
a('.amdgcn_target "amdgcn-amd-amdhsa--gfx950"')
gen(a,opt)
print(a.text())
```

```python
import os
os.environ['L_W']='4096'
from common import *
KNAME='gather_scatter__edge_featured_mpnn_egc__graph_kernel'
QSCALE=-LOG2E*(1-0.0027)
CAP=1856
L_TBL=0; L_CNT=2560; L_MISC=L_CNT+256; L_STATE=L_MISC+64
assert L_STATE+1024<=L_W
STW=2080; PADROW=25
L_ST=L_XS+32768
L_OFFS=L_ST+16*STW+512
NSLOT=CAP+160
L_META=L_OFFS+NSLOT*4
L_CS=L_META+NSLOT*4
F_LDS=L_CS+4096
assert F_LDS<=163840
B_CNT=L_ST; B_BASE=B_CNT+1024; B_SORT=B_BASE+7*1024
assert B_SORT+CH*8<=L_OFFS
SPIN=400000
M_TICKET=0; M_MORE=4; M_BIN=8
V_ACC=0; V_G=16; V_Z=48; V_IDX=64; V_P=80; V_C=88; V_E=92; V_I4=96; V_S=100; V_MSG=108; V_META=116
V_H16=118; V_SW=119; V_SR=120; V_ONE=121; V_ML=122; V_EL=123; V_T0=126; V_T1=127
NV=128
S_QH=8; S_EA=12; S_80=17; S_M31=18; S_W=20; S_W8=21; S_MORE=23; S_FIRST=60; S_NONCE=61
S_STEP=62; S_NSTEP=63; S_NT=64; S_PA=65; S_ERB=66; S_EWB=67; S_J=68; S_P0=69; S_NE=70; S_EF=71; S_HL=66; S_NQ=21
V_CR=110; VL=V_MSG; VT=V_MSG+1

def lane_tid(a):
    a(f"""v_mbcnt_lo_u32_b32 v{VL}, -1, 0
    v_mbcnt_hi_u32_b32 v{VL}, -1, v{VL}
    v_lshl_add_u32 v{VT}, s{S_W}, 6, v{VL}""")
def lds_arrive(a, off, vt, sdst=None):
    a(f"v_mov_b32 v{vt}, 0\nv_mov_b32 v{vt+1}, 1\ns_mov_b64 exec, 1")
    if sdst is None: a(f"ds_add_u32 v{vt}, v{vt+1} offset:{L_MISC+off}\ns_mov_b64 exec, -1")
    else: a(f"ds_add_rtn_u32 v{vt+1}, v{vt}, v{vt+1} offset:{L_MISC+off}\ns_mov_b64 exec, -1\ns_waitcnt lgkmcnt(0)\nv_readfirstlane_b32 s{sdst}, v{vt+1}")
def lds_wait(a, off, target, vt, lab, nap=0):
    a(f"""v_mov_b32 v{vt}, 0
    {lab}:
    {'s_sleep 1' if nap else ''}
    ds_read_b32 v{vt+1}, v{vt} offset:{L_MISC+off}
    s_waitcnt lgkmcnt(0)
    v_readfirstlane_b32 s44, v{vt+1}
    s_cmp_lt_u32 s44, {target}
    s_cbranch_scc1 {lab}""")
def scan_row(a, v):
    for sh in (1,2,4,8): a(f"s_nop 1\nv_add_u32_dpp v{v}, v{v}, v{v} row_shr:{sh} row_mask:0xf bank_mask:0xf bound_ctrl:0")

def c_loads(a):
    srd(a,84,48,4096,add=65536)
    a(f"""v_and_b32 v0, 31, v{VL}
    s_and_b32 s44, s{S_W}, 3
    s_lshl_b32 s44, s44, 6
    v_lshlrev_b32 v1, 7, v{V_H16}
    v_lshl_add_u32 v1, v0, 1, v1
    v_add_u32 v1, s44, v1""")
    for i in range(8): a(f"buffer_load_ushort v{V_CR+i}, v1, s[84:87], 0 offen offset:{256*i}")
PROF=[0]
def tick(a,k):
    if not PROF[0]: return
    a(f"s_memtime s[92:93]\ns_waitcnt lgkmcnt(0)\ns_sub_u32 s91, s92, s90\ns_add_u32 s{95+k}, s{95+k}, s91\ns_mov_b32 s90, s92")
def e_slot(a, tt, dst):
    a(f"s_and_b32 s45, s{tt}, 15\ns_lshl_b32 s45, s45, 12\ns_add_u32 s{dst}, s{S_EWB}, s45")
def fetch_e(a, ahead, lab, own=False):
    if own: a(f"s_add_u32 s46, s{S_J}, {ahead}")
    else: a(f"s_cmp_gt_u32 s{S_J}, {E2[0]}\ns_cbranch_scc1 {lab}\ns_add_u32 s46, s{S_STEP}, {ahead}")
    a(f"""
    s_cmp_ge_u32 s46, s{S_NT}
    s_cbranch_scc1 {lab}
    s_lshl_b32 s44, s46, 7
    s_add_u32 s44, s44, s{S_P0}
    v_add_u32 v{V_T1}, s44, v{V_ML}
    ds_read_b32 v{V_T0}, v{V_T1}""")
    e_slot(a,46,44)
    a(f"""s_mov_b32 m0, s44
    s_waitcnt lgkmcnt(0)
    v_and_or_b32 v{V_T1}, v{V_T0}, s{S_M31}, v{V_H16}""")
    if E2[0]: a(f"s_lshl_b32 s44, s{S_J}, 20\nv_xor_b32 v{V_T1}, s44, v{V_T1}")
    if EM[0] is not None:
        a(f"s_cmp_lt_u32 s46, {EM[0]}\ns_cselect_b32 s44, -1, 0x1fffff\nv_and_b32 v{V_T1}, s44, v{V_T1}")
    a(f"""buffer_load_dwordx4 v{V_T1}, {sr(S_EA,4)}, 0 offen lds
    {lab}:""")
def fetch_e2(a, R, ED, lab):
    a(f"""s_mov_b32 s{S_EF}, 0
    s_add_u32 s46, s{S_STEP}, 11
    s_cmp_gt_u32 s{S_NE}, s46
    s_cbranch_scc1 {lab}
    s_cmp_ge_u32 s{S_NE}, s{S_NT}
    s_cbranch_scc1 {lab}
    s_lshl_b32 s44, s{S_NE}, 7
    s_add_u32 s44, s44, s{S_P0}
    v_add_u32 v{V_T1}, s44, v{V_ML}
    ds_read_b32 v{V_T0}, v{V_T1}""")
    e_slot(a,S_NE,44)
    a(f"""s_mov_b32 m0, s44
    s_add_u32 s{S_NE}, s{S_NE}, {R}
    s_mov_b32 s{S_EF}, 1
    s_waitcnt lgkmcnt(0)
    v_and_or_b32 v{V_T1}, v{V_T0}, s{S_M31}, v{V_H16}
    buffer_load_dwordx4 v{V_T1}, {sr(S_EA,4)}, 0 offen lds
    {lab}:""")
def fetch_g(a, par, ahead, lab):
    G=V_G+16*par
    a(f"""s_add_u32 s46, s{S_STEP}, {ahead}
    s_cmp_ge_u32 s46, s{S_NT}
    s_cbranch_scc1 {lab}
    v_add_u32 v{V_T1}, s{S_PA}, v{V_H16}""")
    for q in range(4): a(f"ds_read_b128 {vr(V_IDX+4*q,4)}, v{V_T1} offset:{32*q}")
    a(f"""v_add_u32 v{V_T1}, s{S_PA}, v{V_ML}
    ds_read_b32 v{V_META+par}, v{V_T1}
    s_add_u32 s{S_PA}, s{S_PA}, 128""")
    for q in range(4):
        a(f"s_waitcnt lgkmcnt({4-q})")
        for i in range(4*q,4*q+4): a(f"buffer_load_dword v{G+i}, v{V_IDX+i}, {sr(S_QH,4)}, 0 offen{QF[0]}")
    a(f"{lab}:")
QF=[' sc1']; EM=[None]; E2=[0]; CLDS=[1]; FINL=[1]; ULATE=[1]
def early_reads(a, par, ED):
    a(f"v_add_u32 v{V_T1}, s{S_PA}, v{V_H16}")
    for q in range(4): a(f"ds_read_b128 {vr(V_IDX+4*q,4)}, v{V_T1} offset:{32*q}")
    a(f"""v_add_u32 v{V_T1}, s{S_PA}, v{V_ML}
    ds_read_b32 v{V_META+par}, v{V_T1}
    ds_read_b32 v124, v{V_T1} offset:{128*(ED-2)}""")
def late_issue(a, par, ED, u):
    G=V_G+16*par
    a(f"""s_add_u32 s46, s{S_STEP}, {ED}
    s_cmp_lt_u32 s46, s{S_NT}
    s_cselect_b32 s45, s{S_J}, 1
    s_cmp_lg_u32 s45, 0
    s_cbranch_scc1 H_fe{u}""")
    e_slot(a,46,44)
    a(f"""s_mov_b32 m0, s44
    s_nop 0
    buffer_load_dwordx4 v124, {sr(S_EA,4)}, 0 offen lds
    H_fe{u}:
    s_add_u32 s46, s{S_STEP}, 2
    s_cmp_ge_u32 s46, s{S_NT}
    s_cbranch_scc1 H_fg{u}
    s_add_u32 s{S_PA}, s{S_PA}, 128""")
    for i in range(16): a(f"buffer_load_dword v{G+i}, v{V_IDX+i}, {sr(S_QH,4)}, 0 offen{QF[0]}")
    a(f"H_fg{u}:")
def step_body(a, par, opt, k4=None):
    prio=opt.get('prio',0); G=V_G+16*par; Z=V_Z; u=str(par if k4 is None else k4)
    BP=opt.get('bp',4); ED=opt.get('ed',BP+2)
    a("s_waitcnt lgkmcnt(0)")
    if k4 is not None:
        pm=opt.get('pm4',0)
        lo4={0:3-k4,1:2*(k4<2),2:int(k4<2),3:0}[pm]; hi4={0:None,1:lo4+1,2:lo4+2,3:1}[pm]
        if k4==0: a("s_barrier")
        a(f"s_setprio {lo4}")
    elif BP==1: a("s_barrier")
    elif BP==2:
        if par==0: a("s_barrier")
        if opt.get('pp',1): a(f"s_setprio {2*(1-par) if prio==3 else 1-par}")
    elif BP==8:
        if par==0:
            a(f"""s_and_b32 s44, s{S_STEP}, 6
            s_cbranch_scc1 H_q1
            s_barrier
            s_setprio 3
            s_branch H_q9
            H_q1:
            s_cmp_eq_u32 s44, 2
            s_cbranch_scc0 H_q2
            s_setprio 2
            s_branch H_q9
            H_q2:
            s_cmp_eq_u32 s44, 4
            s_cbranch_scc0 H_q3
            s_setprio 1
            s_branch H_q9
            H_q3:
            s_setprio 0
            H_q9:""")
    else:
        b='s_barrier' if par==0 else ''
        a(f"""s_and_b32 s44, s{S_STEP}, 2
        s_cbranch_scc1 H_p1{u}
        {b}
        s_setprio {3-par}
        s_branch H_p2{u}
        H_p1{u}:
        {f"s_cmp_lg_u32 s{S_STEP}, 2" if (par==0 and opt.get('ramp2',0)) else ''}
        {"s_cbranch_scc1 H_p3" if (par==0 and opt.get('ramp2',0)) else ''}
        {"s_barrier" if (par==0 and opt.get('ramp2',0)) else ''}
        {"H_p3:" if (par==0 and opt.get('ramp2',0)) else ''}
        s_setprio {1-par}
        H_p2{u}:""")
    tick(a,0)
    a(f"""s_cmp_ge_u32 s{S_STEP}, s{S_NT}
    s_cbranch_scc1 H_idle{u}
    v_and_b32 v{V_T0}, 31, v{V_META+par}
    v_mad_u32_u24 v{V_T1}, v{V_T0}, s{S_80}, v{V_H16}
    v_mad_u32_u24 v{V_T0}, v{V_T0}, s{S_80}, v{V_SW}
    ds_read_b128 {vr(V_S,4)}, v{V_T1} offset:{L_TBL}
    ds_read_b128 {vr(V_S+4,4)}, v{V_T1} offset:{L_TBL+32}""")
    e_slot(a,S_STEP,44)
    a(f"""v_add_u32 v{V_T1}, s44, v{V_EL}
    ds_read_b128 {vr(V_E,4)}, v{V_T1}
    ; younger operations: 16 table loads of the next tile, and one e request in the wave that makes them""")
    if par==0 and opt.get('ramp2',0):
        a(f"""s_waitcnt vmcnt({16+ED-opt['ramp2']})
        s_or_b32 s44, s{S_STEP}, s{S_J}
        s_cbranch_scc0 H_go0""")
    a(f"""s_waitcnt vmcnt(17)
""")
    if opt.get('er',0): a(f"s_cmp_lg_u32 s{S_EF}, 0\ns_cbranch_scc1 H_go{u}")
    else:
        a(f"""s_add_u32 s44, s{S_STEP}, {ED-1}
        s_cmp_lt_u32 s44, s{S_NT}
        s_cselect_b32 s45, s{S_J}, 3
        s_cmp_le_u32 s45, {E2[0]}
        s_cbranch_scc1 H_go{u}""")
    a(f"""s_waitcnt vmcnt(16)
    s_add_u32 s44, s{S_STEP}, 1
    s_cmp_lt_u32 s44, s{S_NT}
    s_cbranch_scc1 H_go{u}
    s_waitcnt vmcnt(0)
    H_go{u}:
    s_waitcnt lgkmcnt(0)""")
    tick(a,1)
    a(f"{MFMA} {vr(Z,16)}, {vr(V_E,4)}, {vr(V_C,4)}, {vr(G,16)}")
    X=opt.get('x',0)
    if not X&1: a(f"{MFMA} {vr(Z,16)}, {vr(V_S,4)}, {vr(V_P,4)}, {vr(Z,16)}")
    if not X&2: a(f"{MFMA} {vr(Z,16)}, {vr(V_S+4,4)}, {vr(V_P+4,4)}, {vr(Z,16)}")
    if X&3: a("s_nop 1")
    a(f"ds_write_b16_d16_hi v{V_T0}, v{V_ONE}")
    a(f"ds_read_b128 {vr(V_S,4)}, v{V_SR}")
    a(f"ds_read_b128 {vr(V_S+4,4)}, v{V_SR} offset:32")
    a(f"ds_write_b16 v{V_T0}, v{V_ONE}")
    er=opt.get('early',0)
    if opt.get('hl',2)==2:
        a(f"s_cmp_eq_u32 s{S_STEP}, s{S_HL}\ns_cbranch_scc0 H_full{u}")
        for i in range(2,8): a(f"v_mov_b32 v{V_MSG+i}, 0")
        for q in range(3):
            R=range(4*q,4*q+4)
            if q: a(f"s_cmp_le_u32 s{S_NQ}, {q}\ns_cbranch_scc1 H_lq{u}")
            for i in R: a(f"v_lshlrev_b32 v{G+i}, 16, v{G+i}")
            for i in R: a(f"v_exp_f32 v{Z+i}, v{Z+i}")
            for i in R: a(f"v_add_f32 v{Z+i}, 1.0, v{Z+i}")
            for i in R: a(f"v_rcp_f32 v{Z+i}, v{Z+i}")
            for i in R: a(f"v_mul_f32 v{Z+i}, v{Z+i}, v{G+i}")
            for i in range(2*q,2*q+2): a(f"v_cvt_pk_bf16_f32 v{V_MSG+i}, v{Z+2*i}, v{Z+2*i+1}")
        a(f"H_lq{u}:\ns_waitcnt lgkmcnt(0)\ns_nop 0")
        a(f"{MFMA} {vr(V_ACC,16)}, {vr(V_S,4)}, {vr(V_MSG,4)}, {vr(V_ACC,16)}")
        a(f"{MFMA} {vr(V_ACC,16)}, {vr(V_S+4,4)}, {vr(V_MSG+4,4)}, {vr(V_ACC,16)}")
        a(f"s_branch H_idle{u}\nH_full{u}:")
    elif opt.get('hl',2):
        a(f"s_cmp_eq_u32 s{S_STEP}, s{S_HL}\ns_cbranch_scc0 H_full{u}")
        for i in range(8): a(f"v_lshlrev_b32 v{G+i}, 16, v{G+i}")
        for i in range(8): a(f"v_exp_f32 v{Z+i}, v{Z+i}")
        for i in range(8): a(f"v_add_f32 v{Z+i}, 1.0, v{Z+i}")
        for i in range(8): a(f"v_rcp_f32 v{Z+i}, v{Z+i}")
        for i in range(8): a(f"v_mul_f32 v{Z+i}, v{Z+i}, v{G+i}")
        for i in range(4): a(f"v_cvt_pk_bf16_f32 v{V_MSG+i}, v{Z+2*i}, v{Z+2*i+1}")
        a("s_waitcnt lgkmcnt(0)\ns_nop 0")
        a(f"{MFMA} {vr(V_ACC,16)}, {vr(V_S,4)}, {vr(V_MSG,4)}, {vr(V_ACC,16)}")
        a(f"s_branch H_idle{u}\nH_full{u}:")
    elif er: early_reads(a,par,ED)
    else: a("s_nop 0")
    if X&4: a("s_nop 7")
    else:
        for i in range(16): a(f"v_lshlrev_b32 v{G+i}, 16, v{G+i}")
    pk=opt.get('pk',0)
    hi={0:None,1:1,2:3-par,3:2*(1-par)+1}[prio]; lo={0:None,1:0,2:1-par,3:2*(1-par)}[prio]
    if k4 is not None and hi4 is not None: prio=1; hi=hi4; lo=lo4
    if prio: a(f"s_setprio {hi}")
    for i in range(16): a(f"v_exp_f32 v{Z+i}, v{Z+i}")
    if prio: a(f"s_setprio {lo}")
    if pk&1:
        for i in range(8): a(f"v_pk_add_f32 v[{Z+2*i}:{Z+2*i+1}], v[{Z+2*i}:{Z+2*i+1}], 1.0 op_sel_hi:[1,0]")
    elif not X&8:
        for i in range(16): a(f"v_add_f32 v{Z+i}, 1.0, v{Z+i}")
    if prio: a(f"s_setprio {hi}")
    if not X&16:
        for i in range(16): a(f"v_rcp_f32 v{Z+i}, v{Z+i}")
    if prio: a(f"s_setprio {lo}")
    if pk&2:
        for i in range(8): a(f"v_pk_mul_f32 v[{Z+2*i}:{Z+2*i+1}], v[{Z+2*i}:{Z+2*i+1}], v[{G+2*i}:{G+2*i+1}]")
    else:
        for i in range(16): a(f"v_mul_f32 v{Z+i}, v{Z+i}, v{G+i}")
    if er==2:
        a("s_waitcnt lgkmcnt(0)")
        a(f"v_and_or_b32 v124, v124, s{S_M31}, v{V_H16}")
        late_issue(a,par,ED,u)
    for i in range(8): a(f"v_cvt_pk_bf16_f32 v{V_MSG+i}, v{Z+2*i}, v{Z+2*i+1}")
    a("s_waitcnt lgkmcnt(0)")
    if er==1: a(f"v_and_or_b32 v124, v124, s{S_M31}, v{V_H16}")
    else: a("s_nop 0")
    a(f"{MFMA} {vr(V_ACC,16)}, {vr(V_S,4)}, {vr(V_MSG,4)}, {vr(V_ACC,16)}")
    a(f"{MFMA} {vr(V_ACC,16)}, {vr(V_S+4,4)}, {vr(V_MSG+4,4)}, {vr(V_ACC,16)}")
    tick(a,2)
    if er==1: late_issue(a,par,ED,u)
    if opt.get('er',0): fetch_e2(a,opt['er'],ED,f"H_fe{u}")
    elif not er: fetch_e(a,ED,f"H_fe{u}")
    tick(a,3)
    if not er: fetch_g(a,par,2,f"H_fg{u}")
    tick(a,4)
    a(f"""H_idle{u}:
    s_add_u32 s{S_STEP}, s{S_STEP}, 1
    s_cmp_ge_u32 s{S_STEP}, s{S_NSTEP}""")

def main_loop(a,opt,st):
    EM[0]=opt.get('em'); E2[0]=opt.get('e2',0)
    QF[0]=['',' sc1'][opt.get('qf',1)]
    if opt.get('cyc',0): a('s_memtime s[92:93]\ns_waitcnt lgkmcnt(0)\ns_mov_b32 s79, s92')
    a(f"s_mov_b32 s{S_STEP}, 0")
    if opt.get('prof',0):
        PROF[0]=1
        a("s_memtime s[92:93]\ns_waitcnt lgkmcnt(0)\ns_mov_b32 s90, s92\ns_mov_b32 s79, s92")
        for k in range(6): a(f"s_mov_b32 s{95+k}, 1")
    BP=opt.get('bp',4); ED=opt.get('ed',BP+2)
    sp=opt.get('spread',0) and ED==6
    R2=opt.get('ramp2',0)
    if R2:
        for k in range(R2): fetch_e(a,k,f"H_pe{k}")
        fetch_g(a,0,0,"H_pg0")
        if opt.get('rb',1): a("s_barrier")
        for k in range(R2,ED): fetch_e(a,k,f"H_pe{k}")
        fetch_g(a,1,1,"H_pg1")
        n2=ED-R2
        a(f"""s_mov_b32 s{S_FIRST}, 0
        s_waitcnt vmcnt({32+n2})
        s_cmp_ge_u32 s{S_NT}, {ED}
        s_cbranch_scc1 H_loop
        s_waitcnt vmcnt(0)
        .p2align 3
        H_loop:""")
        step_body(a,0,opt)
        a("s_cbranch_scc1 H_done")
        step_body(a,1,opt)
        a("s_cbranch_scc0 H_loop\nH_done:")
        st(8)
        return
    if sp:
        fetch_e(a,0,"H_pe0",own=True); fetch_e(a,4,"H_pe4")
    else:
        for k in range(ED-1): fetch_e(a,k,f"H_pe{k}")
    fetch_g(a,0,0,"H_pg0")
    if opt.get('rb',1): a("s_barrier")
    fetch_e(a,ED-1,"H_pel")
    fetch_g(a,1,1,"H_pg1")
    if ULATE[0]:
        a(f"s_cmp_eq_u32 s{S_FIRST}, 0\ns_cbranch_scc1 H_nou\ns_lshr_b32 s46, s{S_W}, 2")
        gemm_addr(a,46,S_J,VL,V_T0,V_T1,125)
        gemm_one(a,V_T0,V_T1,125,V_ACC,V_E,V_IDX,1)
        a("H_nou:")
    if opt.get('er',0):
        a(f"""s_add_u32 s{S_NE}, s{S_J}, {ED}
        s_cmp_lt_u32 s{S_J}, {opt['er']}
        s_cselect_b32 s{S_NE}, s{S_NE}, 0x7fffffff
        s_cmp_gt_u32 s{S_NT}, {ED-1}
        s_cselect_b32 s44, s{S_J}, 1
        s_cmp_eq_u32 s44, 0
        s_cselect_b32 s{S_EF}, 1, 0""")
    st(7)
    if opt.get('xe',0):
        a(f"s_cmp_eq_u32 s{S_MORE}, 0\ns_cselect_b32 s{S_NSTEP}, s{S_NT}, s{S_NSTEP}")
    a(f"""s_mov_b32 s{S_FIRST}, 0
    s_waitcnt vmcnt(33)
    s_cmp_le_u32 s{S_J}, {E2[0]}
    s_cbranch_scc1 H_pw
    s_waitcnt vmcnt(32)
    H_pw:
    s_cmp_ge_u32 s{S_NT}, {ED}
    s_cbranch_scc1 H_loop
    s_waitcnt vmcnt(0)
    .p2align {opt.get('al',3)}
    {'s_nop 0' if opt.get('al4',0) else ''}
    H_loop:""")
    if opt.get('u4',0):
        for k in range(4):
            step_body(a,k&1,opt,k)
            a("s_cbranch_scc1 H_done" if k<3 else "s_cbranch_scc0 H_loop\nH_done:")
    else:
        step_body(a,0,opt)
        a("s_cbranch_scc1 H_done")
        step_body(a,1,opt)
        a("s_cbranch_scc0 H_loop\nH_done:")
    if opt.get('prof',0): a("s_sub_u32 s100, s90, s79")
    if opt.get('cyc',0): a('s_memtime s[92:93]\ns_waitcnt lgkmcnt(0)\ns_sub_u32 s95, s92, s79')
    if opt.get('nst',0): a(f's_add_u32 s96, s91, s87\ns_lshl_b32 s96, s96, 8\ns_add_u32 s95, s96, s{S_NSTEP}')
    st(8)
def e_touch(a, lo, hi, fl):
    a(f"""s_mul_i32 s44, s2, {CH*32}
    s_mul_i32 s45, s{S_W}, 3200
    s_add_u32 s44, s44, s45
    v_lshl_add_u32 v16, v{VL}, 7, s44
    s_mov_b64 exec, {((1<<hi)-1)^((1<<lo)-1):#x}
    buffer_load_dword v125, v16, s[12:15], 0 offen{fl}
    s_mov_b64 exec, -1""")
def q_touch(a, first, n, t=16):
    a(f"""s_lshr_b32 s44, s2, 3
    s_lshl_b32 s44, s44, 4
    s_add_u32 s44, s44, s{S_W}
    s_mul_i32 s44, s44, {n*128}
    s_add_u32 s44, s44, {first*512*128}
    v_lshl_add_u32 v{t}, v{VL}, 7, s44
    v_cmp_gt_u32 vcc, {n}, v{VL}
    s_mov_b64 exec, vcc
    buffer_load_dword v124, v{t}, s[72:75], 0 offen sc1
    s_mov_b64 exec, -1""")
def pu(a,regs,hook=None):
    ta,tb,tc,D,A,B=regs
    a(f"s_lshr_b32 s46, s{S_W}, 2\ns_and_b32 s47, s{S_W}, 3")
    gemm_addr(a,46,47,VL,ta,tb,tc)
    if CLDS[0]:
        a(f"v_add_u32 v{tc}, {L_CS-L_W}, v{tb}")
        for q in range(2): a(f"ds_read_b64_tr_b16 {vr(V_C+2*q,2)}, v{tc} offset:{1024*q}")
    if ULATE[0]: gemm_one(a,ta,tb,tc,D,A,B,0,hook)
    else: gemm_core(a,ta,tb,tc,D,V_ACC,A,B,hook)
    if not FINL[0]: pu_fin(a,D)
def pu_fin(a,D):
    a(f"s_mov_b32 s44, {f2u(-LOG2E):#x}")
    if CLDS[0]:
        for i in range(4): a(f"v_lshlrev_b32 v{V_CR+2*i}, 16, v{V_C+i}\nv_and_b32 v{V_CR+2*i+1}, 0xffff0000, v{V_C+i}")
        for i in range(8): a(f"v_mul_f32 v{V_CR+i}, s44, v{V_CR+i}")
    else:
        for i in range(8): a(f"v_lshlrev_b32 v{V_CR+i}, 16, v{V_CR+i}\nv_mul_f32 v{V_CR+i}, s44, v{V_CR+i}")
    for i in range(4): a(f"v_cvt_pk_bf16_f32 v{V_C+i}, v{V_CR+2*i}, v{V_CR+2*i+1}")
    for r in range(16): a(f"v_mul_f32 v{D+r}, s44, v{D+r}")
    for r in range(8): a(f"v_cvt_pk_bf16_f32 v{V_P+r}, v{D+2*r}, v{D+2*r+1}")

def prologue(a, opt, st):
    def BK(i):
        if opt.get('b16',1): return f"v_mul_u32_u24 v16, 42949, v{12+i}\nv_bfe_u32 v16, v16, 26, 4"
        return f"v_bfe_u32 v16, v{12+i}, 11, 4"
    CLDS[0]=opt.get('clds',1); FINL[0]=opt.get('finl',1); ULATE[0]=opt.get('ulate',0)
    xl=opt.get('xlate',1)
    a(f"""s_load_dwordx4 s[4:7], s[0:1], 0
    s_load_dwordx4 s[64:67], s[0:1], 16
    s_load_dwordx4 s[28:31], s[0:1], 32
    s_load_dwordx4 s[48:51], s[0:1], 48
    s_load_dwordx4 s[80:83], s[0:1], 64
    s_memrealtime s[58:59]""")
    if opt.get('cw',0):
        a(f"""s_getpc_b64 s[88:89]
        F_pc:
        s_mov_b32 s90, K2_exit-F_pc
        s_mov_b32 s91, 0x20000
        v_lshlrev_b32 v3, 7, v0
        v_subrev_u32 v3, {(1024-opt['cw'])*128}, v3
        buffer_load_dword v125, v3, s[88:91], 0 offen""")
    a(f"""v_lshrrev_b32 v2, 6, v0
    v_and_b32 v{VL}, 63, v0
    v_readfirstlane_b32 s{S_W}, v2
    v_mov_b32 v{VT}, v0
    s_mul_i32 s45, s2, {CH*4}
    v_lshlrev_b32 v4, 4, v0
    v_add_u32 v5, s45, v4
    v_cmp_gt_u32 vcc, {CH//4}, v0
    s_cmp_lt_u32 s2, {NCH}
    s_cselect_b64 s[78:79], vcc, 0
    s_waitcnt lgkmcnt(0)
    s_mov_b32 s68, s66
    s_mov_b32 s69, s67""")
    srd(a,64,64,E*4); srd(a,68,68,E*4)
    il=opt.get('il',0)
    def idx_loads():
        a(f"""s_mov_b64 exec, s[78:79]
        s_cbranch_execz F_noload
        buffer_load_dwordx4 v[8:11], v5, s[68:71], 0 offen
        buffer_load_dwordx4 v[12:15], v5, s[64:67], 0 offen
        F_noload:
        s_mov_b64 exec, -1""")
    if not il: idx_loads()
    a(f"""    s_mov_b32 s12, s6
    s_mov_b32 s13, s7
    s_mov_b32 s56, s82
    s_mov_b32 s57, s83
    s_mov_b32 s76, s28
    s_mov_b32 s77, s29""")
    srd(a,80,80,256)
    a("s_or_b32 s3, s58, 1")
    def nonce_store():
        a(f"""v_mov_b32 v6, 0
        v_mov_b32 v7, s3
        s_add_u32 s45, s2, s{S_W}
        s_cmp_lg_u32 s45, 0
        s_cbranch_scc1 F_nononce
        s_mov_b64 exec, 1
        buffer_store_dword v7, v6, s[80:83], 0 offen sc1
        s_mov_b64 exec, -1
        F_nononce:""")
    if not opt.get('nl',0): nonce_store()
    srd(a,4,4,N*256); srd(a,24,48,32768,add=32768); srd(a,28,30,32768)
    stage_x(a,S_W,2,4,VL,(16,17,18,19))
    def wstage():
        stage_w(a,S_W,24,28,VL,(16,17,18))
        a("v_mov_b32 v2, v18")
        if opt.get('clds',1):
            srd(a,84,48,4096,add=65536)
            a(f"""s_cmp_lt_u32 s{S_W}, 12
            s_cbranch_scc1 F_nocs
            s_and_b32 s44, s{S_W}, 3
            s_lshl_b32 s44, s44, 10
            v_and_b32 v18, 0x3ff, v18
            v_add_u32 v18, s44, v18
            s_add_u32 s44, s44, {L_CS}
            s_mov_b32 m0, s44
            s_nop 0
            buffer_load_dwordx4 v18, s[84:87], 0 offen lds
            F_nocs:""")
    if not opt.get('wlate',0): wstage()
    srd(a,12,12,E*32); srd(a,32,56,NCH*CH*8,add=WS_ENT); srd(a,36,56,NWG*2048,add=WS_CELL); srd(a,52,50,N*256)
    srd(a,72,56,N*RS,add=WS_QH)
    if opt.get('aut',0):
        srd(a,88,48,32768); srd(a,40,76,32768)
        a(f"""s_cmp_lg_u32 s{S_W}, 10
        s_cbranch_scc1 F_noaut
        s_lshr_b32 s44, s2, 3
        s_lshl_b32 s44, s44, 10
        v_lshl_add_u32 v16, v{VL}, 7, s44
        s_mov_b64 exec, 0xff
        buffer_load_dword v124, v16, s[88:91], 0 offen
        buffer_load_dword v125, v16, s[40:43], 0 offen
        s_mov_b64 exec, -1
        F_noaut:""")
    if opt.get('tlb',0):
        g=opt['tlb']
        srd(a,88,56,WS_CELL+NWG*2048)
        a(f"""s_cmp_lg_u32 s{S_W}, 11
        s_cbranch_scc1 F_notlb
        v_lshlrev_b32 v16, {g}, v{VL}
        buffer_load_dword v124, v16, s[88:91], 0 offen
        buffer_load_dword v125, v16, s[12:15], 0 offen
        buffer_load_dword v126, v16, s[52:55], 0 offen
        F_notlb:""")
    a(f"""s_and_b32 s46, s{S_W}, 3
    s_lshl_b32 s44, s46, 7
    s_add_u32 s44, s44, {WS_QH-128}
    s_add_u32 s8, s56, s44
    s_addc_u32 s9, s57, 0
    s_or_b32 s9, s9, 0x40000
    s_mov_b32 s10, {N*RS+128}
    s_mov_b32 s11, 0x800000
    v_lshrrev_b32 v16, 5, v{VL}
    v_lshlrev_b32 v{V_H16}, 4, v16
    v_and_b32 v17, 31, v{VL}
    """)
    a(f"""s_mul_i32 s19, s{S_W}, {STW}
    s_add_u32 s19, s19, {L_ST}
    s_movk_i32 s{S_80}, 80
    s_mov_b32 s{S_M31}, 0xffffffe0
    v_mad_u32_u24 v{V_SR}, v17, s{S_80}, v{V_H16}
    v_add_u32 v{V_SR}, s19, v{V_SR}
    v_and_b32 v19, 19, v17
    v_and_b32 v20, 4, v17
    v_lshl_add_u32 v19, v20, 1, v19
    v_and_b32 v20, 8, v17
    v_lshrrev_b32 v20, 1, v20
    v_add_u32 v19, v19, v20
    v_lshlrev_b32 v19, 1, v19
    v_add_u32 v{V_SW}, s19, v19
    v_mov_b32 v{V_ONE}, 0x3f800000
    v_lshlrev_b32 v{V_ML}, 2, v17
    v_add_u32 v{V_ML}, {L_META-L_OFFS}, v{V_ML}
    v_lshlrev_b32 v{V_EL}, 4, v{VL}
    v_mov_b32 v24, 0
    v_mov_b32 v25, 0
    v_mov_b32 v26, 0
    v_mov_b32 v27, 0
    s_cmp_lg_u32 s{S_W}, 7
    s_cbranch_scc1 F_noinit
    v_lshlrev_b32 v20, 4, v{VL}
    v_add_u32 v21, {B_CNT}, v20
    ds_write_b128 v21, v[24:27]
    ds_write_b128 v20, v[24:27]
    ds_write_b128 v20, v[24:27] offset:1024
    ds_write_b128 v20, v[24:27] offset:2048
    v_mad_u32_u24 v20, v17, s{S_80}, v19
    ds_write_b16_d16_hi v20, v{V_ONE} offset:{L_TBL}
    s_waitcnt lgkmcnt(0)
    F_noinit:
    s_mov_b32 s{S_FIRST}, 1
    s_barrier""")
    if opt.get('wlate',0): wstage()
    if opt.get('nl',0): nonce_store()
    def ranks(w):
        a(f"""s_mov_b64 exec, s[78:79]
        s_cbranch_execz F_norank
        s_mov_b32 s44, {M49}
        s_movk_i32 s45, {NB}
        s_movk_i32 s46, {RS}
        s_mul_i32 s47, s2, {CH}
        v_lshl_add_u32 v3, v0, 2, s47
        v_lshlrev_b32 v3, 5, v3
        v_mov_b32 v7, 1
        s_waitcnt vmcnt({w})""")
        for i in range(4):
            a(f"""v_lshrrev_b32 v16, 1, v{8+i}
            v_mul_hi_u32 v16, v16, s44
            v_mul_u32_u24 v17, s45, v16
            v_sub_u32 v17, v{8+i}, v17
            v_and_b32 v18, 7, v16
            v_bfe_u32 v16, v16, 3, 5
            v_lshl_add_u32 v16, v18, 5, v16
            v_lshlrev_b32 v{8+i}, 2, v16
            v_add_u32 v16, {B_CNT}, v{8+i}
            ds_add_rtn_u32 v{20+i}, v16, v7
            v_lshrrev_b32 v16, 2, v17
            v_add3_u32 v{41+2*i}, v3, v16, {32*i if i<3 else 64}
            v_and_b32 v17, 3, v17
            {BK(i)}
            v_lshl_add_u32 v16, v17, 4, v16
            v_mul_u32_u24 v17, s46, v{12+i}
            v_lshl_or_b32 v{40+2*i}, v16, 26, v17""")
            if i==3: a(f"v_add_u32 v{41+2*i}, 32, v{41+2*i}")
        a("F_norank:\ns_mov_b64 exec, -1")
    if not il:
        ranks(6)
        a("v_mov_b32 v6, 0\ns_waitcnt vmcnt(0) lgkmcnt(0)")
    else:
        idx_loads()
        a(f"""v_mov_b32 v6, 0
        s_waitcnt vmcnt(2)
        s_cmp_lg_u64 s[78:79], 0
        s_cbranch_scc1 F_b1
        s_waitcnt vmcnt(0)
        F_b1:""")
    st(1)
    a("s_barrier")
    if il:
        ranks(0)
        a(f"s_cmp_ge_u32 s{S_W}, 7\ns_cbranch_scc1 F_binsync\ns_waitcnt lgkmcnt(0)")
        lds_arrive(a,M_BIN,16); lds_wait(a,M_BIN,7,16,"F_binw")
        a("F_binsync:")
    a("buffer_load_dword v7, v6, s[80:83], 0 offen sc1")
    srd(a,24,48,32768); srd(a,28,76,32768)
    def au():
        for k in range(4): a(f"buffer_load_dwordx4 {vr(88+4*k,4)}, v2, s[{24+4*(k>>1)}:{27+4*(k>>1)}], 0 offen offset:{1024*(k&1)}")
    if not opt.get('auin',0) and not opt.get('auaft',0): au()
    if not opt.get('clds',1): c_loads(a)
    if opt.get('ew0',0): e_touch(a,0,opt['ew0'],['',' nt'][opt.get('ewf',0)])
    a(f"""    s_cmp_ge_u32 s{S_W}, 7
    s_cbranch_scc1 F_noscan
    v_lshlrev_b32 v16, 4, v{VL}
    v_add_u32 v17, {B_CNT}, v16
    ds_read_b128 v[24:27], v17
    s_lshl_b32 s44, s{S_W}, 10
    s_add_u32 s44, s44, {B_BASE}
    s_waitcnt lgkmcnt(0)
    v_add_u32 v29, v24, v25
    v_add_u32 v30, v29, v26
    v_add_u32 v31, v30, v27
    v_mov_b32 v32, v31""")
    scan_row(a,32)
    a(f"""s_nop 1
    v_add_u32_dpp v32, v32, v32 row_bcast:15 row_mask:0xa bank_mask:0xf
    s_nop 1
    v_add_u32_dpp v32, v32, v32 row_bcast:31 row_mask:0xc bank_mask:0xf
    s_nop 1
    v_sub_u32 v32, v32, v31
    v_add_u32 v33, v32, v24
    v_add_u32 v34, v32, v29
    v_add_u32 v35, v32, v30
    v_add_u32 v17, s44, v16
    ds_write_b128 v17, v[32:35]
    v_lshl_or_b32 v80, v24, 16, v32
    v_lshl_or_b32 v82, v25, 16, v33
    v_lshl_or_b32 v84, v26, 16, v34
    v_lshl_or_b32 v86, v27, 16, v35
    s_mov_b64 exec, s[78:79]""")
    for i in range(4):
        a(f"v_add_u32 v16, s44, v{8+i}\nds_read_b32 v{36+i}, v16")
    a("s_waitcnt lgkmcnt(0)")
    for i in range(4):
        a(f"v_add_u32 v16, v{36+i}, v{20+i}\nv_lshlrev_b32 v16, 3, v16\nv_add_u32 v16, {B_SORT}, v16\nds_write_b64 v16, v[{40+2*i}:{41+2*i}]")
    a(f"""s_mov_b64 exec, -1
    F_noscan:
    s_lshr_b32 s46, s{S_W}, 2
    s_and_b32 s47, s{S_W}, 3""")
    gemm_addr(a,46,47,VL,8,9,10)
    Q=48; H=64
    if 'wl' in opt: srd(a,88,56,48<<20,add=(64<<20)+WS_QH)
    gemm_core(a,8,9,10,Q,H,24,32,hook=(lambda ks: au() if (ks==opt.get('auin',0)-1 and opt.get('auin',0)) else None))
    st(2)
    if opt.get('sp',2): a(f"s_setprio {opt.get('sp',2)}")
    nw=opt.get('nw',0)
    a(f"""s_mov_b32 s44, {SPIN}
    {'s_waitcnt vmcnt(4)' if nw else ''}
    {'s_branch F_nonce_chk' if nw else ''}
    F_nonce_poll:
    s_waitcnt vmcnt(0)
    F_nonce_chk:
    v_readfirstlane_b32 s{S_NONCE}, v7
    s_sub_u32 s44, s44, 1
    s_cbranch_scc1 F_nonce_ok
    s_cmp_lg_u32 s{S_NONCE}, 0
    s_cbranch_scc1 F_nonce_ok
    buffer_load_dword v7, v6, s[80:83], 0 offen sc1
    s_branch F_nonce_poll
    F_nonce_ok:
    s_mul_i32 s44, s2, {NB}
    s_add_u32 s44, s44, s46
    s_mul_i32 s44, s44, {RS}
    s_lshl_b32 s45, s47, 7
    s_add_u32 s44, s44, s45
    v_mul_u32_u24 v11, {RS}, v{V_H16}
    v_and_b32 v12, 31, v{VL}
    v_lshl_add_u32 v11, v12, 2, v11
    v_add_u32 v11, s44, v11
    s_mov_b32 s45, {f2u(QSCALE):#x}
    s_nop 1""")
    for r in range(13):
        a(f"v_mul_f32 v{Q+r}, s45, v{Q+r}")
        a(f"v_cvt_pk_bf16_f32 v{Q+r}, v{H+r}, v{Q+r}")
        if r and (r&3)==0: a(f"v_add_u32 v11, {5*4*RS}, v11")
        elif r: a(f"v_add_u32 v11, {4*RS}, v11")
        if r==12: a(f"s_cmp_ge_u32 s46, 2\ns_cbranch_scc1 F_q\ns_mov_b32 exec_hi, 0")
        if 'wl' in opt:
            if r==0: a(f"s_getreg_b32 s59, hwreg(HW_REG_XCC_ID)\ns_lshr_b32 s59, s59, 2\ns_and_b32 s59, s59, 1\ns_xor_b32 s59, s59, {opt['wl']}\ns_lshl_b32 s59, s59, 13")
            a(f"""v_add_u32 v13, {WS_QH}, v11
            v_lshrrev_b32 v13, 8, v13
            v_xor_b32 v13, s59, v13
            v_and_b32 v13, 0x2000, v13
            v_and_b32 v14, 0xffffdfff, v11
            v_or_b32 v14, v14, v13
            v_and_b32 v13, 0x2000, v11
            v_lshl_add_u32 v14, v13, 11, v14
            buffer_store_dword v{Q+r}, v14, s[88:91], 0 offen sc1""")
        else: a(f"buffer_store_dword v{Q+r}, v11, s[72:75], 0 offen sc1")
    a(f"""F_q:
    {'s_setprio 0' if opt.get('sp',2) else ''}
    s_mov_b64 exec, -1""")
    def auw():
        a(f"""; the staged B and V are no longer needed: replace them by A and U
        s_lshl_b32 s44, s{S_W}, 11
        s_add_u32 s44, s44, {L_W}
        v_lshl_add_u32 v16, v{VL}, 4, s44
        ds_write_b128 v16, v[88:91]
        ds_write_b128 v16, v[92:95] offset:1024
        ds_write_b128 v16, v[96:99] offset:32768
        ds_write_b128 v16, v[100:103] offset:33792""")
    aa=opt.get('auaft',0)
    if aa==1: au()
    a("s_barrier")
    if aa==2:
        stage_w(a,S_W,24,28,VL,(16,17,18))
    if not aa:
        if nw: a("s_waitcnt vmcnt(12)")
        auw()
    a(f"""    ; sorted entries: 800 lanes x 16 bytes
    v_cmp_gt_u32 vcc, {CH//2}, v{VT}
    s_cmp_lt_u32 s2, {NCH}
    s_cselect_b64 s[46:47], vcc, 0
    s_mov_b64 exec, s[46:47]
    s_cbranch_execz F_noent
    v_add_u32 v16, {B_SORT}, v4
    ds_read_b128 v[8:11], v16
    s_mul_i32 s45, s2, {CH*8}
    v_add_u32 v5, s45, v4
    s_waitcnt lgkmcnt(0)
    buffer_store_dwordx4 v[8:11], v5, s[32:35], 0 offen sc1
    F_noent:
    s_mov_b64 exec, -1
    s_waitcnt vmcnt(0) lgkmcnt(0)""")
    if aa==1:
        auw(); a("s_waitcnt lgkmcnt(0)")
    st(3)
    a(f"""s_barrier
    s_cmp_lg_u32 s{S_W}, 0
    s_cbranch_scc1 F_nocell
    v_mov_b32 v81, s{S_NONCE}
    v_mov_b32 v83, s{S_NONCE}
    v_mov_b32 v85, s{S_NONCE}
    v_mov_b32 v87, s{S_NONCE}
    s_lshl_b32 s45, s2, 11
    v_lshl_add_u32 v16, v{VL}, 5, s45
    buffer_store_dwordx4 v[80:83], v16, s[36:39], 0 offen sc1
    buffer_store_dwordx4 v[84:87], v16, s[36:39], 0 offen offset:16 sc1
    F_nocell:
    v_mov_b32 v24, 0
    v_mov_b32 v25, 0
    v_mov_b32 v26, 0
    v_mov_b32 v27, 0
    v_add_u32 v16, {L_ST}, v4
    ds_write_b128 v16, v[24:27]
    ds_write_b128 v16, v[24:27] offset:16384
    v_and_b32 v16, 0x3f0, v4
    v_add_u32 v16, {L_ST+32768}, v16
    ds_write_b128 v16, v[24:27]""")
    ew=opt.get('ew',0); ewf=['',' nt'][opt.get('ewf',0)]
    if ew: e_touch(a,0,ew,ewf)
    if opt.get('pf0',0) and 'pf0at' not in opt: q_touch(a,0,opt['pf0'])
    if opt.get('pufirst',0): pu(a,(16,17,18,64,24,32))
    a(f"""s_and_b32 s44, s2, 7
    s_lshl_b32 s44, s44, 5
    s_lshr_b32 s45, s2, 3
    s_add_u32 s44, s44, s45
    s_lshl_b32 s44, s44, 3
    v_lshrrev_b32 v19, 2, v{VT}
    v_lshl_add_u32 v18, v19, 11, s44
    """)
    if not opt.get('pufirst',0):
        pat=opt.get('pat',5)
        poll=lambda: a("buffer_load_dwordx2 v[20:21], v18, s[36:39], 0 offen sc1")
        if pat<0: poll()
        pu(a,(16,17,22,64,24,32),hook=lambda ks: (poll() if ks==pat else None, q_touch(a,0,opt['pf0'],23) if ks==opt.get('pf0at',-1) else None))
        a(f"s_mov_b32 s44, {SPIN}\ns_branch F_cell_chk")
    a(f"""s_mov_b32 s44, {SPIN}
    F_cell_poll:
    buffer_load_dwordx2 v[20:21], v18, s[36:39], 0 offen sc1
    F_cell_chk:
    s_waitcnt vmcnt(0)
    v_cmp_eq_u32 vcc, s{S_NONCE}, v21
    s_cmp_eq_u64 vcc, -1
    s_cbranch_scc1 F_cell_ok
    s_sub_u32 s44, s44, 1
    s_cbranch_scc1 F_cell_ok
    s_sleep {opt.get('csleep',1)}
    s_branch F_cell_poll
    F_cell_ok:
    v_cndmask_b32 v21, 0, v20, vcc""")
    st(4)
    a(f"""s_branch F_take
    K2_round:""")
    lane_tid(a)
    a(f"""s_barrier
    s_cmp_lg_u32 s{S_W}, 7
    s_cbranch_scc1 F_noclr
    v_mov_b32 v24, 0
    v_mov_b32 v25, 0
    v_mov_b32 v26, 0
    v_mov_b32 v27, 0
    v_lshlrev_b32 v20, 4, v{VL}
    v_min_u32 v20, 304, v20
    ds_write_b128 v20, v[24:27] offset:{L_CNT}
    s_waitcnt lgkmcnt(0)
    F_noclr:
    s_barrier
    v_lshrrev_b32 v19, 2, v{VT}
    v_lshlrev_b32 v20, 2, v19
    ds_read_b32 v21, v20 offset:{L_STATE}
    s_waitcnt lgkmcnt(0)
    F_take:
    v_lshrrev_b32 v22, 16, v21
    v_min_u32 v23, 32, v22
    v_and_b32 v21, 0xffff, v21
    v_and_b32 v28, 3, v{VT}
    s_movk_i32 s46, {CH}
    v_mad_u32_u24 v30, v19, s46, v21
    v_lshlrev_b32 v27, 1, v28
    v_add_u32 v30, v30, v27
    v_lshlrev_b32 v30, 3, v30
    v_sub_u32 v26, v23, v27""")
    for k in range(4):
        a(f"""v_cmp_lt_i32 vcc, {8*k}, v26
        s_cbranch_vccz F_ld_done
        s_mov_b64 exec, vcc
        buffer_load_dwordx4 v[{32+4*k}:{35+4*k}], v30, s[32:35], 0 offen offset:{64*k} sc1
        s_mov_b64 exec, -1""")
    a(f"""F_ld_done:
    v_mov_b32 v29, 0
    v_cmp_eq_u32 vcc, 0, v28
    s_and_saveexec_b64 s[44:45], vcc
    ds_add_rtn_u32 v30, v29, v23 offset:{L_MISC+M_TICKET}
    s_waitcnt lgkmcnt(0)
    v_add_u32 v30, v30, v23
    v_cmp_ge_u32 vcc, {CAP}, v30
    s_nop 1
    v_cndmask_b32 v23, 0, v23, vcc
    v_sub_u32 v22, v22, v23
    v_add_u32 v30, v21, v23
    v_lshl_or_b32 v30, v22, 16, v30
    v_lshlrev_b32 v31, 2, v19
    ds_write_b32 v31, v30 offset:{L_STATE}
    v_cmp_lt_u32 vcc, 0, v22
    s_and_b64 exec, exec, vcc
    v_mov_b32 v30, 1
    ds_write_b32 v29, v30 offset:{L_MISC+M_MORE}
    s_mov_b64 exec, s[44:45]
    s_nop 4
    v_mov_b32_dpp v23, v23 quad_perm:[0,0,0,0] row_mask:0xf bank_mask:0xf
    v_sub_u32 v23, v23, v27
    v_mov_b32 v29, 1""")
    if FINL[0]:
        a(f"s_cmp_eq_u32 s{S_FIRST}, 0\ns_cbranch_scc1 F_nofin")
        pu_fin(a,64)
        a("F_nofin:")
    for k in range(4):
        for i in range(2): a(f"v_cmp_lt_i32 s[{80+4*k+2*i}:{81+4*k+2*i}], {8*k+i}, v23") if k<2 else None
    a(f"""s_mov_b32 s46, 0xffffff
    s_mov_b32 s47, {(N-1)*RS}
    s_waitcnt vmcnt(0)""")
    if 'emu' in opt:
        a(f"s_getreg_b32 s59, hwreg(HW_REG_XCC_ID)\ns_lshr_b32 s59, s59, 2\ns_and_b32 s59, s59, 1\ns_xor_b32 s59, s59, {opt['emu']}\ns_lshl_b32 s59, s59, 13")
    def mask(k,i):
        if k<2: return f"s[{80+4*k+2*i}:{81+4*k+2*i}]"
        a(f"v_cmp_lt_i32 vcc, {8*k+i}, v23"); return "vcc"
    for k in range(4):
        for i in range(2):
            m=mask(k,i); e=32+4*k+2*i
            if i==0: a(f"s_cmp_eq_u64 {m}, 0\ns_cbranch_scc1 F_rk_done")
            a(f"""v_lshrrev_b32 v{48+2*k+i}, 24, v{e}
            s_mov_b64 exec, {m}
            ds_add_rtn_u32 v{64+2*k+i}, v{48+2*k+i}, v29 offset:{L_CNT}
            s_mov_b64 exec, -1
            v_and_b32 v{e}, s46, v{e}
            v_min_u32 v{e}, s47, v{e}""")
            if 'emu' in opt:
                a(f"""v_add_u32 v16, {WS_QH}, v{e}
                v_lshrrev_b32 v16, 8, v16
                v_xor_b32 v16, s59, v16
                v_and_b32 v16, 0x2000, v16
                v_and_b32 v{e}, 0xffffdfff, v{e}
                v_or_b32 v{e}, v{e}, v16
                v_min_u32 v{e}, s47, v{e}""")
            a(f"v_add_u32 v{e}, 128, v{e}")
    a(f"""F_rk_done:
    s_waitcnt lgkmcnt(0)""")
    st(5)
    a("s_barrier")
    npf=opt.get('pf',16)
    if npf:
        a(f"""s_cmp_eq_u32 s{S_FIRST}, 0
        s_cbranch_scc1 F_nopf""")
        q_touch(a,opt.get("pf0",0),npf)
        if opt.get('ew2',0): e_touch(a,opt.get('ew',0),opt['ew2'],['',' nt'][opt.get('ewf',0)])
        a(f"""
        F_nopf:""")
    a(f"""v_lshlrev_b32 v16, 2, v{VL}
    ds_read_b32 v17, v16 offset:{L_CNT}
    v_mov_b32 v16, 0
    ds_read_b32 v18, v16 offset:{L_MISC+M_MORE}
    s_waitcnt lgkmcnt(0)
    v_mov_b32 v20, v17
    v_readfirstlane_b32 s{S_MORE}, v18""")
    scan_row(a,20)
    a(f"""s_lshr_b32 s47, s{S_W}, 2
    s_lshl_b32 s45, s47, 4
    s_add_u32 s44, s45, 15
    v_add_u32 v21, 31, v20
    v_lshrrev_b32 v21, 5, v21
    v_mov_b32 v18, 0
    v_mov_b32 v22, 0
    v_readlane_b32 s88, v20, s44
    v_mov_b32_dpp v18, v21 row_bcast:15 row_mask:0xa bank_mask:0xf
    v_readlane_b32 s{S_NT}, v21, s44
    v_add_u32 v16, v21, v18
    v_max_u32 v21, v21, v18
    v_sub_u32 v20, v20, v17
    v_mov_b32_dpp v22, v16 row_bcast:31 row_mask:0xc bank_mask:0xf
    v_readlane_b32 s89, v21, 31
    v_readlane_b32 s90, v21, 63
    v_add_u32 v18, v18, v22
    s_nop 0
    v_readlane_b32 s91, v18, s45
    v_lshl_add_u32 v20, v18, 5, v20
    s_max_u32 s{S_NSTEP}, s89, s90""")
    a(f"s_mov_b32 s46, {L_OFFS}\ns_movk_i32 s47, -128")
    for half in range(2):
        if half: a(f"v_cmp_lt_i32 vcc, 16, v23\ns_cbranch_vccz F_pos_done")
        for q in range(4*half,4*half+4): a(f"ds_bpermute_b32 v{48+q}, v{48+q}, v20")
        for k in range(2*half,2*half+2):
            if k==2*half: a("s_waitcnt lgkmcnt(0)")
            for i in range(2):
                q=2*k+i; e=32+4*k+2*i
                a(f"""v_add_u32 v{48+q}, v{48+q}, v{64+q}
                v_bfe_u32 v16, v{48+q}, 2, 1
                v_mad_i32_i24 v{e}, v16, s47, v{e}
                v_lshl_add_u32 v{48+q}, v{48+q}, 2, s46""")
                m=mask(k,i)
                a(f"""s_mov_b64 exec, {m}
                ds_write_b32 v{48+q}, v{e}
                ds_write_b32 v{48+q}, v{e+1} offset:{L_META-L_OFFS}
                s_mov_b64 exec, -1""")
    a(f"""F_pos_done:
    s_lshl_b32 s{S_PA}, s91, 7
    s_add_u32 s{S_PA}, s{S_PA}, {L_OFFS}
    s_mov_b32 s{S_P0}, s{S_PA}
    s_and_b32 s{S_J}, s{S_W}, 3
    s_lshr_b32 s{S_EWB}, s{S_W}, 2
    s_lshl_b32 s{S_EWB}, s{S_EWB}, 10
    s_add_u32 s{S_EWB}, s{S_EWB}, {L_W}
    s_mov_b32 s44, s88
    s_mov_b32 s45, s91
    s_mov_b32 s46, s{S_NT}
    s_sub_u32 s58, s44, 1
    s_bfe_u32 s{S_NQ}, s58, 0x20003
    s_add_u32 s{S_NQ}, s{S_NQ}, 1
    s_cmp_gt_u32 s{S_NQ}, {3 if opt.get('hl',2)==2 else 2}
    s_cselect_b32 s58, 0, s{S_NT}
    s_sub_u32 s{S_HL}, s58, 1
    s_and_b32 s58, s44, 31
    s_cbranch_scc0 K2_nopad
    s_cmp_lg_u32 s{S_J}, 3
    s_cbranch_scc1 K2_nopad
    v_and_b32 v16, 31, v{VL}
    v_cmp_le_u32 vcc, s58, v16
    s_add_u32 s59, s45, s46
    s_sub_u32 s59, s59, 1
    s_lshl_b32 s59, s59, 7
    s_add_u32 s59, s59, {L_OFFS}
    s_mul_i32 s58, s2, {NB*RS}
    v_and_b32 v17, 4, v16
    v_lshlrev_b32 v17, 5, v17
    v_sub_u32 v17, 128, v17
    v_add_u32 v17, s58, v17
    v_lshl_add_u32 v18, v16, 2, s59
    v_mov_b32 v19, {PADROW}
    s_and_saveexec_b64 s[46:47], vcc
    ds_write_b32 v18, v17
    ds_write_b32 v18, v19 offset:{L_META-L_OFFS}
    s_mov_b64 exec, s[46:47]
    K2_nopad:
    s_waitcnt lgkmcnt(0)""")
    st(6)
    a("s_barrier")

def epilogue(a,opt,st):
    a(f"""s_cmp_lg_u32 s{S_MORE}, 0
    s_cbranch_scc1 K2_round
    s_mul_i32 s44, s2, {NB}
    s_lshr_b32 s45, s{S_W}, 2
    s_add_u32 s44, s44, s45
    s_lshl_b32 s44, s44, 8
    s_and_b32 s46, s{S_W}, 3
    s_lshl_b32 s46, s46, 6
    s_add_u32 s44, s44, s46
    s_sub_u32 s44, s44, {(L_META-L_OFFS)//2}
    v_lshlrev_b32 v16, 8, v{V_H16}
    v_lshrrev_b32 v17, 1, v{V_ML}
    v_add3_u32 v16, v16, v17, s44
    s_mov_b32 s47, {f2u(-LOG2E):#x}
    s_nop 4""")
    if opt.get('eq',0):
        OF=['',' sc1',' nt',' sc0 sc1'][opt.get('of',1)]
        for q in range(4):
            R=range(4*q,min(4*q+4,13))
            if q==3: a(f"s_cmp_ge_u32 s45, 2\ns_cbranch_scc1 K2_done\ns_mov_b32 exec_hi, 0")
            for r in R: a(f"v_mul_f32 v{V_Z+r}, s47, v{V_ACC+r}")
            for r in R: a(f"v_exp_f32 v{V_Z+r}, v{V_Z+r}")
            if q==3: a("s_nop 0")
            for r in R: a(f"v_add_f32 v{V_Z+r}, 1.0, v{V_Z+r}")
            for r in R: a(f"v_rcp_f32 v{V_Z+r}, v{V_Z+r}")
            if q==3: a("s_nop 0")
            for r in R: a(f"v_mul_f32 v{V_Z+r}, v{V_Z+r}, v{V_ACC+r}")
            for r in R:
                if r%2==0: a(f"v_cvt_pk_bf16_f32 v{V_Z+r}, v{V_Z+r}, v{V_Z+min(r+1,12)}")
            if q: a(f"v_add_u32 v16, 8192, v16")
            for r in R: a(f"buffer_store_short{'_d16_hi' if r&1 else ''} v{V_Z+(r&~1)}, v16, s[52:55], 0 offen offset:{(r&3)*1024}{OF}")
        return
    for r in range(13): a(f"v_mul_f32 v{V_Z+r}, s47, v{V_ACC+r}")
    for r in range(13): a(f"v_exp_f32 v{V_Z+r}, v{V_Z+r}")
    for r in range(13): a(f"v_add_f32 v{V_Z+r}, 1.0, v{V_Z+r}")
    for r in range(13): a(f"v_rcp_f32 v{V_Z+r}, v{V_Z+r}")
    for r in range(13): a(f"v_mul_f32 v{V_Z+r}, v{V_Z+r}, v{V_ACC+r}")
    ep=opt.get('ep',1) and not opt.get('wide',0)
    for r in range(13):
        if not ep: a(f"v_cvt_pk_bf16_f32 v{V_Z+r}, v{V_Z+r}, v{V_Z+r}")
        elif r%2==0: a(f"v_cvt_pk_bf16_f32 v{V_Z+r}, v{V_Z+r}, v{V_Z+min(r+1,12)}")
    OF=['',' sc1',' nt',' sc0 sc1'][opt.get('of',1)]
    if opt.get('wide',0):
        a(f"""s_lshl_b32 s44, s45, 8
        s_add_u32 s44, s44, s46
        s_add_u32 s44, s44, {L_XS-(L_META-L_OFFS)//2}
        v_lshlrev_b32 v16, 8, v{V_H16}
        v_add3_u32 v16, v16, v17, s44""")
        for r in range(13): a(f"ds_write_b16 v16, v{V_Z+r} offset:{(r>>2)*8192+(r&3)*1024}")
        lane_tid(a)
        a(f"""v_lshlrev_b32 v16, 4, v{VT}
        v_add_u32 v17, {L_XS}, v16
        s_mul_i32 s44, s2, {NB*256}
        v_add_u32 v16, s44, v16
        v_add_u32 v18, 16384, v16
        v_cmp_gt_u32 vcc, {NB*16-1024}, v{VT}
        s_waitcnt lgkmcnt(0)
        s_barrier
        ds_read_b128 v[20:23], v17
        ds_read_b128 v[24:27], v17 offset:16384
        s_waitcnt lgkmcnt(1)
        buffer_store_dwordx4 v[20:23], v16, s[52:55], 0 offen{OF}
        s_and_saveexec_b64 s[46:47], vcc
        s_cbranch_execz K2_done
        s_waitcnt lgkmcnt(0)
        buffer_store_dwordx4 v[24:27], v18, s[52:55], 0 offen{OF}""")
        return
    for r in range(13):
        if r==12:
            a(f"""s_cmp_ge_u32 s45, 2
            s_cbranch_scc1 K2_done
            s_mov_b32 exec_hi, 0""")
        if r and (r&3)==0: a(f"v_add_u32 v16, 8192, v16")
        a(f"buffer_store_short{'_d16_hi' if (ep and r&1) else ''} v{V_Z+(r&~1 if ep else r)}, v16, s[52:55], 0 offen offset:{(r&3)*1024}{['',' sc1',' nt',' sc0 sc1'][opt.get('of',1)]}")


def gen(a,opt):
    st=Stamper(a,opt.get('stamp',0),94)
    a(kstart(KNAME))
    a(f"s_cmp_ge_u32 s2, {NWG}\ns_cbranch_scc1 K2_exit")
    st()
    prologue(a,opt,st); main_loop(a,opt,st); epilogue(a,opt,st)
    a("K2_done:"); st.flush(0,S_W,56,opt.get('amp')); a("K2_exit:\ns_endpgm")
    a(kdesc(KNAME,NV))
```
